```python
import torch

def _softmax(x, axis=-1):
    return torch.softmax(x, dim=axis)
def _gelu(x):
    return torch.nn.functional.gelu(x, approximate="tanh")
def _silu(x):
    return torch.nn.functional.silu(x)
def _sigmoid(x):
    return torch.sigmoid(x)
def _layernorm(x, axis=-1, eps=1e-5):
    m = x.mean(dim=axis, keepdim=True)
    v = x.var(dim=axis, keepdim=True, unbiased=False)
    return (x - m) / torch.sqrt(v + eps)
def _scatter_add(tgt, idx, src, axis=0):
    return tgt.clone().index_add_(axis, idx, src)
def _segment_sum(src, seg, n):
    out = torch.zeros((n,) + src.shape[1:], dtype=src.dtype)
    return out.index_add_(0, seg, src)
def _pad(x, pw):
    flat = tuple(v for pair in reversed(pw) for v in pair)
    return torch.nn.functional.pad(x, flat)

kernel_name = 'parallel_sum__sliding_local_dilated__mixer_channel_mlp__prompt'

def setup_inputs():

    _w = (lambda a: (lambda t: t.to(torch.bfloat16) if t.is_floating_point() else t)(torch.as_tensor(a)))
    def _A_setup():
        B, S, D = 1, 2048, 512
        return {
            "x": _w((lambda *s: torch.randn(*s, dtype=torch.bfloat16) * 0.05)(B, S, D)),
            "wqkv": _w((lambda *s: torch.randn(*s, dtype=torch.bfloat16) * 0.05)(D, 3 * D)),
            "wo": _w((lambda *s: torch.randn(*s, dtype=torch.bfloat16) * 0.05)(D, D)),
        }
    _A_in = _A_setup()

    def _B_setup():
        B, S, D, F = 1, 2048, 512, 1376
        return {
            "x": _w((lambda *s: torch.randn(*s, dtype=torch.bfloat16) * 0.05)(B, S, D)),
            "w1": _w((lambda *s: torch.randn(*s, dtype=torch.bfloat16) * 3.2)(D, F) * (D ** -0.5)),
            "b1": _w((lambda *s: torch.randn(*s, dtype=torch.bfloat16) * 1.6)(F)),
            "w2": _w((lambda *s: torch.randn(*s, dtype=torch.bfloat16) * 0.2)(F, D) * (F ** -0.5)),
            "b2": _w((lambda *s: torch.randn(*s, dtype=torch.bfloat16) * 0.2)(D)),
        }
    _B_in = _B_setup()

    return {
        "A_x": _A_in["x"],
        "A_wqkv": _A_in["wqkv"],
        "A_wo": _A_in["wo"],
        "B_x": _B_in["x"],
        "B_w1": _B_in["w1"],
        "B_b1": _B_in["b1"],
        "B_w2": _B_in["w2"],
        "B_b2": _B_in["b2"],
    }

def reference(A_x, A_wqkv, A_wo, B_x, B_w1, B_b1, B_w2, B_b2):
    def _A_ref(x, wqkv, wo):
        B, S, D = x.shape
        H = 32; Dh = D // H
        W, dil = 8, 2
        qkv = (lambda x, *d: x.permute(*d))((x @ wqkv).reshape(B, S, 3, H, Dh), 2, 0, 3, 1, 4)
        q, k, v = qkv[0], qkv[1], qkv[2]
        scale = Dh ** -0.5
        pos = torch.arange(S)
        off = torch.arange(W) * dil
        idx = pos[:, None] - off[None, :]
        mask = idx >= 0
        idx_c = torch.where(mask, idx, 0).reshape(-1)
        kg = k[:, :, idx_c, :].reshape(B, H, S, W, Dh)
        vg = v[:, :, idx_c, :].reshape(B, H, S, W, Dh)
        logits = torch.einsum("bhsd,bhswd->bhsw", q, kg) * scale
        logits = torch.where(mask[None, None, :, :], logits, -1e9)
        attn = _softmax(logits, axis=-1)
        o = torch.einsum("bhsw,bhswd->bhsd", attn, vg)
        return (lambda x, *d: x.permute(*d))(o, 0, 2, 1, 3).reshape(B, S, D) @ wo

    def _B_ref(x, w1, b1, w2, b2):
        y = _layernorm(x, axis=-1)
        h = _gelu(torch.einsum("bsd,df->bsf", y, w1) + b1)
        return torch.einsum("bsf,fd->bsd", h, w2) + b2

    x = A_x
    xn = _layernorm(x, axis=-1)
    return x + _A_ref(xn, A_wqkv, A_wo) + _B_ref(xn, B_w1, B_b1, B_w2, B_b2)
```

```python
import sys, math, struct

NAME = "parallel_sum__sliding_local_dilated__mixer_channel_mlp__prompt"

def f2u(x): return struct.unpack("<I", struct.pack("<f", x))[0]
def hexf(x): return "0x%08x" % f2u(x)

class A:
    def __init__(s): s.l = []; s.uid = 0
    def __call__(s, t): s.l.append(t)
    def lab(s, n): s.l.append(n + ":")
    def c(s, t): s.l.append("; " + t)
    def nop(s, n):
        while n > 0:
            k = min(n, 16); s.l.append(f"s_nop {k-1}"); n -= k
    def text(s): return "\n".join(s.l) + "\n"

def vr(b, n=1): return f"v{b}" if n == 1 else f"v[{b}:{b+n-1}]"
def sr(b, n=1): return f"s{b}" if n == 1 else f"s[{b}:{b+n-1}]"

def srd(a, d, lo, hi, size):
    a(f"s_mov_b32 s{d}, s{lo}"); a(f"s_and_b32 s{d+1}, s{hi}, 0xffff")
    a(f"s_mov_b32 s{d+2}, {size}"); a(f"s_mov_b32 s{d+3}, 0x20000")

def interleave(a, mf, fill, per=2):
    fi = 0
    for m in mf:
        a(m)
        for _ in range(per):
            if fi < len(fill): a(fill[fi]); fi += 1
    while fi < len(fill): a(fill[fi]); fi += 1

S, D, F = 2048, 512, 1376
NSTEP2 = 59
A2_BYTES = 128 * NSTEP2 * 1024
SLOT = 21504; NSLOT = 7; WOFF = 9216
TAB = SLOT * NSLOT
T_R1, T_MR1, T_RR, T_MRR = TAB, TAB + 576, TAB + 1152, TAB + 1728
T_CS = TAB + 2304
LDS1 = 163840
BIG = -1e30
C_EXP = 0.25 * math.log2(math.e)
G1 = -2.0 * math.sqrt(2.0 / math.pi) * math.log2(math.e)
G2 = G1 * 0.044715

def MF32(d, a_, b_, c_=None):
    c_ = vr(d, 4) if c_ is None else c_
    return f"v_mfma_f32_16x16x32_bf16 {vr(d,4)}, {vr(a_,4)}, {vr(b_,4)}, {c_}"

def bf16r(a, dst, src):
    a(f"v_cvt_pk_bf16_f32 v{dst}, v{src}, v{src}")
    a(f"v_and_b32 v{dst}, 0xffff0000, v{dst}")

def xlane_reduce(a, op, x, t):
    for sw in ("v_permlane16_swap_b32", "v_permlane32_swap_b32"):
        a(f"v_mov_b32 v{t}, v{x}"); a.nop(2)
        a(f"{sw} v{x}, v{t}"); a.nop(2)
        a(f"{op} v{x}, v{x}, v{t}")

def phase1(a, END):
    sX, sW, sWS, sB1 = 8, 12, 16, 20
    sWV, sRB, sJ, sFS, sNF, sR0 = 24, 25, 26, 27, 28, 29
    sSTEP, sSLW, sSLR, sKX, sKW, sKWs, sT0, sT1, sM0X, sM0W, sH16 = 30, 31, 32, 33, 34, 35, 36, 37, 38, 39, 46
    sMASK, sC1, sC2 = 47, 48, 50
    a("s_load_dwordx4 s[4:7], s[0:1], 0")
    a("s_load_dwordx4 s[40:43], s[0:1], 32")
    a("s_load_dwordx2 s[44:45], s[0:1], 80")
    a("v_lshrrev_b32 v1, 6, v0"); a("v_and_b32 v0, 63, v0")
    a(f"v_readfirstlane_b32 s{sWV}, v1")
    a("s_and_b32 s36, s2, 7"); a("s_lshr_b32 s37, s2, 3")
    a("s_lshr_b32 s25, s36, 1"); a("s_lshl_b32 s25, s25, 2"); a("s_lshr_b32 s26, s37, 3"); a("s_add_u32 s25, s25, s26")
    a("s_and_b32 s26, s36, 1"); a("s_lshl_b32 s26, s26, 3"); a("s_and_b32 s37, s37, 7"); a("s_add_u32 s26, s26, s37")
    a(f"s_mul_i32 s{sFS}, s{sJ}, 3"); a(f"s_lshl_b32 s36, s{sJ}, 1"); a("s_add_u32 s36, s36, 11")
    a(f"s_cmp_lt_u32 s{sJ}, 11"); a(f"s_cselect_b32 s{sFS}, s{sFS}, s36"); a(f"s_cselect_b32 s{sNF}, 3, 2")
    a(f"s_lshl_b32 s{sR0}, s{sRB}, 7")
    a(f"s_mov_b32 s{sMASK}, 0xffff0000")
    a("s_waitcnt lgkmcnt(0)")
    srd(a, sX, 4, 5, S * D * 2)
    srd(a, sWS, 44, 45, A2_BYTES)
    srd(a, sB1, 42, 43, F * 2)
    a(f"s_cmp_lt_u32 s{sWV}, 3")
    a(f"s_cselect_b32 s{sW}, s6, s40"); a(f"s_cselect_b32 s{sW+1}, s7, s41"); a(f"s_and_b32 s{sW+1}, s{sW+1}, 0xffff")
    a(f"s_cmp_lt_u32 s{sWV}, 3")
    a(f"s_mov_b32 s52, {D*F*2}"); a("s_mov_b32 s53, 2752")
    a(f"s_cselect_b32 s{sW+2}, {D*3*D*2}, s52"); a(f"s_mov_b32 s{sW+3}, 0x20000")
    a(f"s_cselect_b32 s{sT0}, 3072, s53")
    a(f"s_lshl_b32 s{sKWs}, s{sT0}, 5")
    a(f"s_lshl_b32 s{sH16}, s{sT0}, 4")
    vRow, vC, vXo, vWo, vHo, vT = 1, 2, 3, 4, 5, 6
    a(f"v_lshrrev_b32 v{vRow}, 2, v0"); a(f"v_and_b32 v{vC}, 3, v0")
    a(f"v_lshrrev_b32 v{vT}, 3, v{vRow}")
    a(f"v_mul_u32_u24 v7, 3, v{vT}"); a(f"v_xor_b32 v7, v7, v{vC}"); a("v_lshlrev_b32 v7, 4, v7")
    a(f"s_lshl_b32 s{sT1}, s{sWV}, 4"); a(f"s_add_u32 s{sT1}, s{sT1}, s{sR0}")
    a(f"v_add_u32 v{vXo}, s{sT1}, v{vRow}"); a(f"v_lshl_add_u32 v{vXo}, v{vXo}, 10, v7")
    a(f"s_sub_u32 s{sT1}, s{sR0}, 16")
    a(f"v_add_u32 v{vHo}, s{sT1}, v{vRow}"); a(f"v_lshl_add_u32 v{vHo}, v{vHo}, 10, v7")
    a(f"s_cmp_eq_u32 s{sRB}, 0"); a(f"s_cselect_b32 s{sT1}, 0x80000000, 0"); a(f"v_or_b32 v{vHo}, s{sT1}, v{vHo}")
    a(f"v_lshlrev_b32 v{vT}, 1, v{vT}"); a(f"v_xor_b32 v{vT}, v{vT}, v{vC}"); a(f"v_lshlrev_b32 v{vT}, 4, v{vT}")
    a(f"s_lshl_b32 s52, s{sWV}, 10"); a(f"s_lshl_b32 s53, s{sJ}, 6"); a("s_add_u32 s52, s52, s53")
    a(f"s_sub_u32 s53, s{sWV}, 4"); a("s_lshr_b32 s53, s53, 1"); a("s_add_u32 s53, s53, 1")
    a(f"s_cmp_eq_u32 s{sWV}, 3"); a("s_cselect_b32 s53, 0, s53")
    a(f"s_add_u32 s54, s53, s{sFS}"); a("s_lshl_b32 s54, s54, 6")
    a(f"s_cmp_lt_u32 s{sWV}, 3"); a("s_cselect_b32 s52, s52, s54")
    a(f"s_and_b32 s54, s{sWV}, 1"); a(f"s_cmp_ge_u32 s{sWV}, 4"); a("s_cselect_b32 s54, s54, 0"); a("s_lshl_b32 s54, s54, 4")
    a(f"v_add_u32 v{vWo}, s54, v{vRow}"); a(f"v_mul_u32_u24 v{vWo}, s{sT0}, v{vWo}")
    a(f"v_add3_u32 v{vWo}, v{vWo}, v{vT}, s52")
    a(f"s_cmp_ge_u32 s53, s{sNF}"); a("s_cselect_b32 s54, 0x80000000, 0")
    a(f"s_cmp_lt_u32 s{sWV}, 3"); a("s_cselect_b32 s54, 0, s54"); a(f"v_or_b32 v{vWo}, s54, v{vWo}")
    a(f"s_add_u32 s{sM0X}, s{sWV}, 1"); a(f"s_lshl_b32 s{sM0X}, s{sM0X}, 10")
    a(f"s_lshl_b32 s52, s{sWV}, 1"); a(f"s_add_u32 s53, s{sWV}, 4"); a(f"s_cmp_lt_u32 s{sWV}, 4"); a("s_cselect_b32 s52, s52, s53")
    a(f"s_lshl_b32 s{sM0W}, s52, 10"); a(f"s_add_u32 s{sM0W}, s{sM0W}, {WOFF}")
    vI, vG, vAX, vAW0, vAW1 = 8, 9, 10, 11, 12
    a(f"v_and_b32 v{vI}, 15, v0"); a(f"v_lshrrev_b32 v{vG}, 4, v0")
    a(f"v_lshrrev_b32 v{vT}, 3, v{vI}"); a(f"v_mul_u32_u24 v{vT}, 3, v{vT}"); a(f"v_xor_b32 v{vT}, v{vT}, v{vG}")
    a(f"v_lshlrev_b32 v{vT}, 4, v{vT}"); a(f"v_lshl_add_u32 v{vAX}, v{vI}, 6, v{vT}")
    a(f"s_lshr_b32 s52, s{sWV}, 1"); a("s_lshl_b32 s52, s52, 2")
    a(f"s_sub_u32 s53, s{sWV}, 4"); a("s_lshl_b32 s53, s53, 1"); a("s_add_u32 s53, s53, 1")
    a(f"s_cmp_lt_u32 s{sWV}, 4"); a("s_cselect_b32 s52, s52, s53"); a("s_lshl_b32 s52, s52, 10")
    a(f"v_add_u32 v{vAX}, s52, v{vAX}")
    a(f"v_lshrrev_b32 v{vT}, 2, v{vI}"); a(f"v_lshl_add_u32 v{vT}, v{vG}, 3, v{vT}"); a(f"v_lshlrev_b32 v{vT}, 6, v{vT}")
    a(f"v_and_b32 v7, 3, v{vI}"); a(f"v_lshl_add_u32 v{vT}, v7, 3, v{vT}"); a(f"v_add_u32 v{vT}, {WOFF}, v{vT}")
    a(f"v_and_b32 v7, 1, v{vG}"); a("v_lshlrev_b32 v7, 5, v7")
    a(f"v_add_u32 v{vAW0}, v{vT}, v7"); a("v_xor_b32 v7, 32, v7"); a(f"v_add_u32 v{vAW1}, v{vT}, v7")
    a(f"s_and_b32 s52, s{sWV}, 5"); a("s_cmp_eq_u32 s52, 1"); a("s_cselect_b64 vcc, -1, 0")
    a(f"v_cndmask_b32 v{vAW0}, v{vAW0}, v{vAW1}, vcc")
    vB1 = 16
    a(f"s_lshl_b32 s52, s{sFS}, 6"); a(f"v_lshl_add_u32 v{vT}, v{vG}, 3, s52")
    for c in range(6):
        a(f"buffer_load_dwordx2 {vr(vB1+2*c,2)}, v{vT}, {sr(sB1,4)}, 0 offen offset:{c*32}")
    NB1 = 6
    def dma(att):
        a(f"s_add_u32 m0, s{sSLW}, s{sM0X}"); a.nop(1)
        a(f"buffer_load_dwordx4 v{vXo}, {sr(sX,4)}, s{sKX} offen lds")
        a(f"s_add_u32 m0, s{sSLW}, s{sM0W}"); a.nop(1)
        a(f"buffer_load_dwordx4 v{vWo}, {sr(sW,4)}, s{sKW} offen lds")
        if att:
            a(f"s_add_u32 m0, m0, 1024"); a(f"s_add_u32 s{sT0}, s{sKW}, s{sH16}")
            a(f"buffer_load_dwordx4 v{vWo}, {sr(sW,4)}, s{sT0} offen lds")
        else:
            a.uid += 1; L = f"L_h{a.uid}"
            a(f"s_cmp_lg_u32 s{sWV}, 4"); a(f"s_cbranch_scc1 {L}")
            a(f"s_mov_b32 m0, s{sSLW}"); a.nop(1)
            a(f"buffer_load_dwordx4 v{vHo}, {sr(sX,4)}, s{sKX} offen lds")
            a.lab(L)
        a(f"s_add_u32 s{sKX}, s{sKX}, 64"); a(f"s_add_u32 s{sKW}, s{sKW}, s{sKWs}")
        a(f"s_add_u32 s{sSLW}, s{sSLW}, {SLOT}"); a(f"s_cmp_eq_u32 s{sSLW}, {SLOT*NSLOT}"); a(f"s_cselect_b32 s{sSLW}, 0, s{sSLW}")

    a(f"s_mov_b32 s{sSLW}, 0"); a(f"s_mov_b32 s{sSLR}, 0"); a(f"s_mov_b32 s{sKX}, 0"); a(f"s_mov_b32 s{sKW}, 0"); a(f"s_mov_b32 s{sSTEP}, 0")
    a(f"s_cmp_ge_u32 s{sWV}, 4"); a("s_cbranch_scc1 L_mlp")

    vONE = 28
    vCX, vCW0, vCW1 = 13, 14, 15
    def ones():
        for i in range(4): a(f"v_mov_b32 v{vONE+i}, 0x3f803f80")
    def adv_read():
        a(f"s_add_u32 s{sSLR}, s{sSLR}, {SLOT}"); a(f"s_cmp_eq_u32 s{sSLR}, {SLOT*NSLOT}"); a(f"s_cselect_b32 s{sSLR}, 0, s{sSLR}")

    XA = [32, 52]
    WA = [72, 84]
    aQ, aK, aV = 96, 112, 132
    cQ, cK, cV = 152, 156, 160
    st = 164
    def att_reads(buf):
        a(f"v_add_u32 v{vCX}, s{sSLR}, v{vAX}"); a(f"v_add_u32 v{vCW0}, s{sSLR}, v{vAW0}")
        for t in range(5): a(f"ds_read_b128 {vr(XA[buf]+4*t,4)}, v{vCX} offset:{t*1024}")
        for p in range(3):
            a(f"ds_read_b64_tr_b16 {vr(WA[buf]+4*p,2)}, v{vCW0} offset:{p*2048}")
            a(f"ds_read_b64_tr_b16 {vr(WA[buf]+4*p+2,2)}, v{vCW0} offset:{p*2048+256}")
        adv_read()
    def stats_ops(x, acc, tmp):
        o = []
        for d in range(4):
            t = tmp + 2*(d & 1)
            o.append(f"v_lshlrev_b32 v{t}, 16, v{x+d}")
            o.append(f"v_and_b32 v{t+1}, s{sMASK}, v{x+d}")
            o.append(f"v_pk_add_f32 {vr(acc,2)}, {vr(acc,2)}, {vr(t,2)}")
            o.append(f"v_pk_fma_f32 {vr(acc+2,2)}, {vr(t,2)}, {vr(t,2)}, {vr(acc+2,2)}")
        return o
    def top(n, att):
        a("s_waitcnt lgkmcnt(0)")
        a.uid += 1; L1, L2 = f"L_w{a.uid}a", f"L_w{a.uid}b"
        a(f"s_cmp_ge_u32 s{sSTEP}, 10"); a(f"s_cbranch_scc1 {L1}")
        a(f"s_waitcnt vmcnt({5*n})"); a("s_barrier")
        a(f"s_cmp_ge_u32 s{sSTEP}, 9"); a(f"s_cbranch_scc1 {L2}")
        dma(att)
        a(f"s_branch {L2}")
        a.lab(L1); a("s_waitcnt vmcnt(0)"); a("s_barrier"); a.lab(L2)
        a(f"s_add_u32 s{sSTEP}, s{sSTEP}, 1")
    def att_step(buf):
        top(3, True)
        att_reads(buf ^ 1)
        X, W = XA[buf], WA[buf]
        mf = []
        for t in range(5):
            mf.append(MF32(aK+4*t, W+4, X+4*t))
            mf.append(MF32(aV+4*t, X+4*t, W+8))
            if t >= 1: mf.append(MF32(aQ+4*(t-1), W, X+4*t))
        mf.append(MF32(cQ, W, vONE)); mf.append(MF32(cK, W+4, vONE)); mf.append(MF32(cV, vONE, W+8))
        interleave(a, mf, stats_ops(X, st, st+4), per=2)
    ones()
    for r in list(range(aQ, cV+4)) + list(range(st, st+4)): a(f"v_mov_b32 v{r}, 0")
    for i in range(NSLOT): dma(True)
    a(f"s_waitcnt vmcnt({3*(NSLOT-1)})"); a("s_barrier")
    att_reads(0)
    a.lab("L_att_loop")
    att_step(0); att_step(1)
    a(f"s_cmp_lt_u32 s{sSTEP}, 16"); a("s_cbranch_scc1 L_att_loop")
    a("s_waitcnt lgkmcnt(0)")
    a.nop(8)
    def stats_final(acc, tmp, rowbase_sgpr_bytes_or_none, rowoff):
        sm, sq, t0, t1, t2, t3 = acc, acc+2, tmp, tmp+1, tmp+2, tmp+3
        a(f"v_add_f32 v{sm}, v{sm}, v{sm+1}"); a(f"v_add_f32 v{sq}, v{sq}, v{sq+1}")
        xlane_reduce(a, "v_add_f32", sm, t0); xlane_reduce(a, "v_add_f32", sq, t0)
        a(f"v_mul_f32 v{sm}, {hexf(1/512)}, v{sm}")
        a(f"v_mul_f32 v{sq}, {hexf(1/512)}, v{sq}")
        a(f"v_fma_f32 v{sq}, -v{sm}, v{sm}, v{sq}"); a(f"v_max_f32 v{sq}, 0, v{sq}")
        bf16r(a, t0, sm)
        bf16r(a, t1, sq)
        a(f"v_add_f32 v{t1}, {hexf(1e-5)}, v{t1}"); bf16r(a, t1, t1)
        a(f"v_sqrt_f32 v{t1}, v{t1}"); a.nop(1); bf16r(a, t1, t1)
        a(f"v_rcp_f32 v{t1}, v{t1}"); a.nop(1)
        a(f"v_mul_f32 v{t2}, v{sq}, v{t1}"); a(f"v_mul_f32 v{t2}, v{t2}, v{t1}"); bf16r(a, t2, t2)
        a(f"v_add_f32 v{t2}, {hexf(1e-5)}, v{t2}"); bf16r(a, t2, t2)
        a(f"v_sqrt_f32 v{t2}, v{t2}"); a.nop(1); bf16r(a, t2, t2)
        a(f"v_rcp_f32 v{t2}, v{t2}"); a.nop(1)
        a(f"v_mul_f32 v{t2}, v{t2}, v{t1}")
        a(f"v_mul_f32 v{t0}, v{t0}, v{t1}")
        a(f"v_mul_f32 v{t3}, v{sm}, v{t2}")
        a(f"v_lshlrev_b32 v{sq}, 2, v{vI}")
        if rowbase_sgpr_bytes_or_none is not None:
            a(f"v_add_u32 v{sq}, s{rowbase_sgpr_bytes_or_none}, v{sq}")
        ad = TAB + rowoff*4
        a(f"v_add_u32 v{sq}, {ad}, v{sq}")
        a("s_mov_b64 exec, 0xffff")
        a(f"ds_write_b32 v{sq}, v{t1}"); a(f"ds_write_b32 v{sq}, v{t0} offset:576")
        a(f"ds_write_b32 v{sq}, v{t2} offset:1152"); a(f"ds_write_b32 v{sq}, v{t3} offset:1728")
        a("s_mov_b64 exec, -1")
    a(f"s_cmp_lg_u32 s{sWV}, 0"); a("s_cbranch_scc1 L_att_nostat")
    stats_final(st, st+4, None, 0)
    a.lab("L_att_nostat")
    a("s_waitcnt lgkmcnt(0)"); a("s_barrier")
    vTA, vTB = 13, 14
    a(f"s_lshr_b32 s52, s{sWV}, 1"); a("s_lshl_b32 s52, s52, 8")
    a(f"v_lshl_add_u32 v{vTA}, v{vI}, 2, s52"); a(f"v_add_u32 v{vTA}, {TAB}, v{vTA}")
    a(f"v_lshl_add_u32 v{vTB}, v{vG}, 4, s52"); a(f"v_add_u32 v{vTB}, {TAB}, v{vTB}")
    RA, MA = 32, 37
    RB_, MB_ = 44, 64
    for t in range(5):
        a(f"ds_read_b32 v{RA+t}, v{vTA} offset:{t*64}"); a(f"ds_read_b32 v{MA+t}, v{vTA} offset:{576+t*64}")
    a("s_waitcnt lgkmcnt(0)")
    for t in range(5):
        a(f"ds_read_b128 {vr(RB_+4*t,4)}, v{vTB} offset:{t*64}"); a(f"ds_read_b128 {vr(MB_+4*t,4)}, v{vTB} offset:{576+t*64}")
    bC, bP, bPF = 172, 176, 180
    Mc0, Mc1, Mp0, Mp1 = 184, 185, 186, 187
    tt = 188
    a(f"v_mov_b32 v{tt+3}, {hexf(BIG)}")
    for r in range(4):
        a(f"v_lshl_add_u32 v{tt}, v{vG}, 2, {r}"); a(f"v_sub_u32 v{tt}, v{vI}, v{tt}")
        a(f"v_and_b32 v{tt+1}, 1, v{tt}")
        a(f"v_cmp_eq_u32 vcc, 0, v{tt+1}"); a(f"v_cmp_le_i32 s[52:53], 0, v{tt}"); a.nop(2)
        a("s_and_b64 s[54:55], vcc, s[52:53]"); a("s_andn2_b64 s[56:57], vcc, s[52:53]")
        a(f"v_cndmask_b32 v{bC+r}, v{tt+3}, 0, s[54:55]")
        a(f"v_cndmask_b32 v{bP+r}, v{tt+3}, 0, s[56:57]")
        hm = "0xffff0000" if (r & 1) else "0xffff"
        a(f"v_mov_b32 v{tt+2}, {hm}")
        mc, mp = (Mc0, Mp0) if r < 2 else (Mc1, Mp1)
        if (r & 1) == 0:
            a(f"v_cndmask_b32 v{mc}, 0, v{tt+2}, s[54:55]"); a(f"v_cndmask_b32 v{mp}, 0, v{tt+2}, s[56:57]")
        else:
            a(f"v_cndmask_b32 v{mc}, v{mc}, v{tt+2}, s[54:55]"); a(f"v_cndmask_b32 v{mp}, v{mp}, v{tt+2}, s[56:57]")
    a(f"s_lshr_b32 s52, s{sWV}, 1"); a(f"s_or_b32 s52, s52, s{sRB}"); a("s_cmp_eq_u32 s52, 0"); a("s_cselect_b64 vcc, -1, 0")
    for r in range(4): a(f"v_cndmask_b32 v{bPF+r}, v{bP+r}, v{tt+3}, vcc")
    a("s_waitcnt lgkmcnt(0)")
    Qb, Kb, Vb = 200, 208, 218
    def conv(acc, dst, r, m, cs, layout_b):
        t = 192
        for h in range(2):
            if not layout_b:
                a(f"v_pk_mul_f32 {vr(t,2)}, {vr(cs+2*h,2)}, {vr(m & ~1,2)} op_sel:[0,{m&1}] op_sel_hi:[1,{m&1}]")
                a(f"v_pk_fma_f32 {vr(t,2)}, {vr(acc+2*h,2)}, {vr(r & ~1,2)}, {vr(t,2)} op_sel:[0,{r&1},0] op_sel_hi:[1,{r&1},1] neg_lo:[0,0,1] neg_hi:[0,0,1]")
            else:
                a(f"v_pk_mul_f32 {vr(t,2)}, {vr(m+2*h,2)}, {vr(cs,2)} op_sel:[0,0] op_sel_hi:[1,0]")
                a(f"v_pk_fma_f32 {vr(t,2)}, {vr(acc+2*h,2)}, {vr(r+2*h,2)}, {vr(t,2)} neg_lo:[0,0,1] neg_hi:[0,0,1]")
            a(f"v_cvt_pk_bf16_f32 v{dst+h}, v{t}, v{t+1}")
    for t in range(5):
        conv(aK+4*t, Kb+2*t, RA+t, MA+t, cK, False)
        conv(aV+4*t, Vb+2*t, RB_+4*t, MB_+4*t, cV, True)
        if t >= 1: conv(aQ+4*(t-1), Qb+2*(t-1), RA+t, MA+t, cQ, False)
    vO = 15
    a(f"s_lshr_b32 s52, s{sWV}, 1"); a("s_lshl_b32 s52, s52, 2"); a(f"s_lshl_b32 s53, s{sRB}, 3"); a("s_add_u32 s52, s52, s53")
    a(f"s_mul_i32 s52, s52, {NSTEP2}"); a(f"s_add_u32 s52, s52, s{sJ}"); a("s_lshl_b32 s52, s52, 10")
    a(f"s_and_b32 s53, s{sWV}, 1"); a("s_lshl_b32 s53, s53, 3"); a("s_add_u32 s52, s52, s53")
    a(f"v_lshlrev_b32 v{vO}, 4, v0")
    a(f"s_mov_b32 s54, {hexf(C_EXP)}")
    Sp, Sc, Pp, Os, Sm = 96, 100, 104, 108, 112
    for u in range(4):
        t = u + 1
        bp = bPF if u == 0 else bP
        a.nop(2)
        a(f"v_mfma_f32_16x16x16_bf16 {vr(Sp,4)}, {vr(Kb+2*(t-1),2)}, {vr(Qb+2*u,2)}, {vr(bp,4)}")
        a(f"v_mfma_f32_16x16x16_bf16 {vr(Sc,4)}, {vr(Kb+2*t,2)}, {vr(Qb+2*u,2)}, {vr(bC,4)}")
        a.nop(8)
        a0, a1, m_, tm = 116, 117, 118, 119
        a(f"v_max3_f32 v{a0}, v{Sp}, v{Sp+1}, v{Sc}"); a(f"v_max3_f32 v{a1}, v{Sp+2}, v{Sp+3}, v{Sc+2}")
        a(f"v_max_f32 v{a0}, v{a0}, v{Sc+1}"); a(f"v_max_f32 v{a1}, v{a1}, v{Sc+3}")
        a(f"v_max_f32 v{m_}, v{a0}, v{a1}")
        xlane_reduce(a, "v_max_f32", m_, tm)
        a(f"v_mul_f32 v{m_}, s54, v{m_}")
        a(f"v_fma_f32 v{a0}, v{a0}, s54, -v{m_}"); a(f"v_fma_f32 v{a1}, v{a1}, s54, -v{m_}")
        a(f"v_exp_f32 v{a0}, v{a0}"); a(f"v_exp_f32 v{a1}, v{a1}"); a.nop(1)
        a(f"v_cvt_pk_bf16_f32 v{a0}, v{a0}, v{a0}"); a(f"v_cvt_pk_bf16_f32 v{a1}, v{a1}, v{a1}")
        a(f"v_and_b32 v{Pp}, v{a0}, v{Mp0}"); a(f"v_and_b32 v{Pp+1}, v{a1}, v{Mp1}")
        a(f"v_and_b32 v{Pp+2}, v{a0}, v{Mc0}"); a(f"v_and_b32 v{Pp+3}, v{a1}, v{Mc1}")
        a.nop(2)
        a(MF32(Sm, vONE, Pp, "0")); a(MF32(Os, Vb+2*(t-1), Pp, "0"))
        a.nop(8)
        a(f"v_rcp_f32 v{Sm}, v{Sm}"); a.nop(1)
        a(f"v_pk_mul_f32 {vr(Os,2)}, {vr(Os,2)}, {vr(Sm,2)} op_sel_hi:[1,0]")
        a(f"v_pk_mul_f32 {vr(Os+2,2)}, {vr(Os+2,2)}, {vr(Sm,2)} op_sel_hi:[1,0]")
        a(f"v_cvt_pk_bf16_f32 v{120+2*(u&1)}, v{Os}, v{Os+1}"); a(f"v_cvt_pk_bf16_f32 v{121+2*(u&1)}, v{Os+2}, v{Os+3}")
        a(f"buffer_store_dwordx2 {vr(120+2*(u&1),2)}, v{vO}, {sr(sWS,4)}, s52 offen")
        a(f"s_add_u32 s52, s52, {NSTEP2*1024}")
    a(f"s_branch {END}")

    a.lab("L_mlp")
    XM = [32, 40]
    FM = [48, 72]
    aH = 96
    cF = 144
    s0_, s1_ = 152, 156
    tmp = 160
    def mlp_reads(buf):
        a(f"v_add_u32 v{vCX}, s{sSLR}, v{vAX}"); a(f"v_add_u32 v{vCW0}, s{sSLR}, v{vAW0}"); a(f"v_add_u32 v{vCW1}, s{sSLR}, v{vAW1}")
        for t in range(2): a(f"ds_read_b128 {vr(XM[buf]+4*t,4)}, v{vCX} offset:{t*1024}")
        for c in range(6):
            ad = vCW0 if (c & 1) == 0 else vCW1
            off = (3 + (c >> 1)) * 2048
            a(f"ds_read_b64_tr_b16 {vr(FM[buf]+4*c,2)}, v{ad} offset:{off}")
            a(f"ds_read_b64_tr_b16 {vr(FM[buf]+4*c+2,2)}, v{ad} offset:{off+256}")
        adv_read()
    def mlp_step(buf):
        top(2, False)
        mlp_reads(buf ^ 1)
        X, Fr = XM[buf], FM[buf]
        mf = []
        for c in range(6):
            for t in range(2): mf.append(MF32(aH+(c*2+t)*4, Fr+4*c, X+4*t))
        interleave(a, mf, stats_ops(X, s0_, tmp) + stats_ops(X+4, s1_, tmp+4), per=2)
        a.uid += 1; u = a.uid
        for m in range(4):
            if m < 3:
                a(f"s_cmp_lg_u32 s{sWV}, {4+m}"); a(f"s_cbranch_scc1 L_cs{u}_{m+1}")
            a(MF32(cF, Fr+4*m, vONE))
            if m < 2: a(MF32(cF+4, Fr+4*(m+4), vONE))
            if m < 3: a(f"s_branch L_cs{u}_e")
            if m < 3: a.lab(f"L_cs{u}_{m+1}")
        a.lab(f"L_cs{u}_e")
    ones()
    for r in list(range(aH, tmp)): a(f"v_mov_b32 v{r}, 0")
    for i in range(NSLOT): dma(False)
    a(f"s_waitcnt vmcnt({2*(NSLOT-1)})"); a("s_barrier")
    mlp_reads(0)
    a.lab("L_mlp_loop")
    mlp_step(0); mlp_step(1)
    a(f"s_cmp_lt_u32 s{sSTEP}, 16"); a("s_cbranch_scc1 L_mlp_loop")
    a("s_waitcnt lgkmcnt(0)")
    a.nop(8)
    a(f"s_sub_u32 s52, s{sWV}, 4"); a("s_lshl_b32 s52, s52, 7")
    stats_final(s0_, tmp, 52, 16)
    stats_final(s1_, tmp, 52, 32)
    a(f"v_lshlrev_b32 v{tmp}, 4, v{vG}"); a(f"s_sub_u32 s52, s{sWV}, 4"); a("s_lshl_b32 s52, s52, 6")
    a(f"v_add_u32 v{tmp}, s52, v{tmp}"); a(f"v_add_u32 v{tmp}, {T_CS}, v{tmp}")
    a("s_mov_b32 exec_lo, 0x00010001"); a("s_mov_b32 exec_hi, 0x00010001")
    a(f"ds_write_b128 v{tmp}, {vr(cF,4)}")
    a(f"s_cmp_ge_u32 s{sWV}, 6"); a("s_cbranch_scc1 L_cs_w2")
    a(f"ds_write_b128 v{tmp}, {vr(cF+4,4)} offset:256")
    a.lab("L_cs_w2")
    a("s_mov_b64 exec, -1")
    a("s_waitcnt lgkmcnt(0)"); a("s_barrier")
    vTA = 13
    a(f"s_sub_u32 s52, s{sWV}, 4"); a("s_lshl_b32 s52, s52, 7")
    a(f"v_lshl_add_u32 v{vTA}, v{vI}, 2, s52"); a(f"v_add_u32 v{vTA}, {TAB + 16*4}, v{vTA}")
    Rr, Mm = 32, 34
    for t in range(2):
        a(f"ds_read_b32 v{Rr+t}, v{vTA} offset:{1152+t*64}"); a(f"ds_read_b32 v{Mm+t}, v{vTA} offset:{1728+t*64}")
    CS = 40
    a(f"v_lshlrev_b32 v14, 4, v{vG}"); a(f"v_add_u32 v14, {T_CS}, v14")
    for c in range(6): a(f"ds_read_b128 {vr(CS+4*c,4)}, v14 offset:{c*64}")
    B1 = 64
    a("s_waitcnt vmcnt(0)")
    for c in range(6):
        for h in range(2):
            a(f"v_lshlrev_b32 v{B1+4*c+2*h}, 16, v{vB1+2*c+h}"); a(f"v_and_b32 v{B1+4*c+2*h+1}, s{sMASK}, v{vB1+2*c+h}")
    a(f"s_mov_b32 s{sC1}, {hexf(G1)}"); a(f"s_mov_b32 s{sC1+1}, {hexf(G1)}")
    a(f"s_mov_b32 s{sC2}, {hexf(G2)}"); a(f"s_mov_b32 s{sC2+1}, {hexf(G2)}")
    a(f"v_mov_b32 v88, s{sC1}"); a(f"v_mov_b32 v89, s{sC1}")
    a("s_waitcnt lgkmcnt(0)")
    vO = 15
    a(f"v_lshlrev_b32 v{vO}, 4, v0")
    a(f"s_sub_u32 s52, s{sWV}, 4"); a("s_lshl_b32 s52, s52, 1"); a(f"s_lshl_b32 s53, s{sRB}, 3"); a("s_add_u32 s52, s52, s53")
    a(f"s_mul_i32 s52, s52, {NSTEP2}"); a(f"s_add_u32 s52, s52, s{sFS}"); a("s_add_u32 s52, s52, 16"); a("s_lshl_b32 s52, s52, 10")
    for q in range(3):
        if q == 2:
            a(f"s_cmp_lt_u32 s{sNF}, 3"); a(f"s_cbranch_scc1 {END}")
        for t in range(2):
            o = 168 + 4*(t & 1)
            for cl in range(2):
                c = 2*q + cl
                acc = aH + (c*2+t)*4
                for h in range(2):
                    u, w_, z = 176, 178, 180
                    r, m = Rr+t, Mm+t
                    a(f"v_pk_fma_f32 {vr(u,2)}, {vr(CS+4*c+2*h,2)}, {vr(m&~1,2)}, {vr(B1+4*c+2*h,2)} op_sel:[0,{m&1},0] op_sel_hi:[1,{m&1},1] neg_lo:[0,1,0] neg_hi:[0,1,0]")
                    a(f"v_pk_fma_f32 {vr(u,2)}, {vr(acc+2*h,2)}, {vr(r&~1,2)}, {vr(u,2)} op_sel:[0,{r&1},0] op_sel_hi:[1,{r&1},1]")
                    a(f"v_pk_mul_f32 {vr(w_,2)}, {vr(u,2)}, {vr(u,2)}")
                    a(f"v_pk_fma_f32 {vr(w_,2)}, {vr(w_,2)}, {sr(sC2,2)}, {vr(88,2)}")
                    a(f"v_pk_mul_f32 {vr(w_,2)}, {vr(w_,2)}, {vr(u,2)}")
                    a(f"v_exp_f32 v{w_}, v{w_}"); a(f"v_exp_f32 v{w_+1}, v{w_+1}"); a.nop(1)
                    a(f"v_pk_add_f32 {vr(w_,2)}, {vr(w_,2)}, 1.0 op_sel_hi:[1,0]")
                    a(f"v_rcp_f32 v{w_}, v{w_}"); a(f"v_rcp_f32 v{w_+1}, v{w_+1}"); a.nop(1)
                    a(f"v_pk_mul_f32 {vr(w_,2)}, {vr(w_,2)}, {vr(u,2)}")
                    a(f"v_cvt_pk_bf16_f32 v{o+2*cl+h}, v{w_}, v{w_+1}")
            a(f"s_add_u32 s53, s52, {(t*NSTEP2+q)*1024}")
            a(f"buffer_store_dwordx4 {vr(o,4)}, v{vO}, {sr(sWS,4)}, s53 offen")
    a(f"s_branch {END}")

def phase2(a, END):
    sA2, sWO, sW2, sXs, sOUT, sB2 = 8, 12, 16, 20, 24, 28
    sWV, sRG, sCG = 32, 33, 34
    a("s_load_dwordx2 s[4:5], s[0:1], 0")
    a("s_load_dwordx2 s[6:7], s[0:1], 16")
    a("s_load_dwordx4 s[40:43], s[0:1], 48")
    a("s_load_dwordx2 s[44:45], s[0:1], 64")
    a("s_load_dwordx2 s[46:47], s[0:1], 80")
    a("v_mov_b32 v2, v0")
    a("v_lshrrev_b32 v1, 6, v0"); a("v_and_b32 v0, 63, v0")
    a(f"v_readfirstlane_b32 s{sWV}, v1")
    a("s_and_b32 s36, s2, 7"); a("s_lshr_b32 s37, s2, 3")
    a(f"s_lshl_b32 s{sRG}, s36, 2"); a("s_lshr_b32 s38, s37, 3"); a(f"s_add_u32 s{sRG}, s{sRG}, s38"); a(f"s_and_b32 s{sCG}, s37, 7")
    a("s_waitcnt lgkmcnt(0)")
    srd(a, sA2, 46, 47, A2_BYTES); srd(a, sWO, 6, 7, D*D*2); srd(a, sW2, 40, 41, F*D*2)
    srd(a, sXs, 4, 5, S*D*2); srd(a, sOUT, 44, 45, S*D*2); srd(a, sB2, 42, 43, D*2)
    vXO, vXD, vB2 = 3, 4, 8
    a("v_lshrrev_b32 v12, 3, v2"); a("v_and_b32 v13, 7, v2")
    a(f"s_lshl_b32 s36, s{sRG}, 6"); a("v_add_u32 v14, s36, v12"); a("v_lshlrev_b32 v14, 10, v14")
    a(f"s_lshl_b32 s37, s{sCG}, 7"); a("v_lshlrev_b32 v15, 4, v13"); a("v_add_u32 v15, s37, v15")
    a(f"v_add_u32 v{vXO}, v14, v15")
    a(f"buffer_load_dwordx4 {vr(vXD,4)}, v{vXO}, {sr(sXs,4)}, 0 offen")
    a(f"buffer_load_dwordx4 {vr(vB2,4)}, v15, {sr(sB2,4)}, 0 offen")
    vWo, vAo = 16, 17
    a("v_lshrrev_b32 v18, 4, v0"); a("v_lshlrev_b32 v18, 1, v18"); a("v_and_b32 v19, 7, v0"); a("v_xor_b32 v18, v18, v19")
    a("v_lshlrev_b32 v18, 4, v18"); a("v_lshrrev_b32 v19, 3, v0"); a("v_lshl_add_u32 v18, v19, 10, v18"); a(f"v_add_u32 v{vWo}, s37, v18")
    a(f"v_lshlrev_b32 v{vAo}, 4, v0")
    vI, vG = 18, 19
    RING = 5; WSL = 4096
    a(f"v_and_b32 v{vI}, 15, v0"); a(f"v_lshrrev_b32 v{vG}, 4, v0")
    a(f"v_lshrrev_b32 v20, 2, v{vI}"); a(f"v_lshl_add_u32 v20, v{vG}, 2, v20")
    a("v_lshrrev_b32 v21, 1, v20"); a("v_and_b32 v21, 3, v21"); a("v_lshlrev_b32 v21, 5, v21")
    a("v_lshlrev_b32 v20, 7, v20"); a(f"v_and_b32 v22, 3, v{vI}"); a("v_lshl_add_u32 v20, v22, 3, v20")
    a(f"s_mul_i32 s38, s{sWV}, {RING*WSL}"); a("v_add_u32 v20, s38, v20")
    vRA = 24
    for cb in range(4):
        a(f"v_xor_b32 v22, {cb*32}, v21"); a(f"v_add_u32 v{vRA+cb}, v20, v22")
    acc = 128
    for r in range(acc, acc+64): a(f"v_mov_b32 v{r}, 0")
    AB = [32, 48, 64, 80, 96, 112, 192, 208]
    WF = 224
    a(f"s_lshl_b32 s39, s{sRG}, 2"); a(f"s_mul_i32 s39, s39, {NSTEP2}"); a(f"s_add_u32 s39, s39, s{sWV}"); a("s_lshl_b32 s39, s39, 10")
    def wdma(i):
        base = sWO if i < 2 else sW2
        trel = 8*i if i < 2 else 8*i - 16
        a(f"s_add_u32 s48, s{sWV}, {trel}"); a("s_lshl_b32 s48, s48, 15")
        for q in range(4):
            a(f"s_add_u32 m0, s38, {(i % RING)*WSL + q*1024}")
            a(f"s_add_u32 s49, s48, {q*8192}")
            a(f"buffer_load_dwordx4 v{vWo}, {sr(base,4)}, s49 offen lds")
    def aload(i):
        for b in range(4):
            a(f"s_add_u32 s49, s39, {(b*NSTEP2 + 8*i)*1024}")
            a(f"buffer_load_dwordx4 {vr(AB[i]+4*b,4)}, v{vAo}, {sr(sA2,4)}, s49 offen")
    for i in range(RING):
        aload(i); wdma(i)
    for i in range(RING, 7): aload(i)
    def comp(i, nwait):
        a(f"s_waitcnt vmcnt({nwait})")
        for cb in range(4):
            off = (i % RING)*WSL
            a(f"ds_read_b64_tr_b16 {vr(WF+4*cb,2)}, v{vRA+cb} offset:{off}")
            a(f"ds_read_b64_tr_b16 {vr(WF+4*cb+2,2)}, v{vRA+cb} offset:{off+2048}")
        a("s_waitcnt lgkmcnt(0)")
    def mm(i):
        for cb in range(4):
            for b in range(4): a(MF32(acc+(cb*4+b)*4, WF+4*cb, AB[i]+4*b))
    comp(0, 40); wdma(5); mm(0)
    comp(1, 36); wdma(6); mm(1)
    comp(2, 32)
    a(f"s_cmp_ge_u32 s{sWV}, 3"); a("s_cbranch_scc1 L_p2_skip7")
    aload(7); wdma(7)
    a.lab("L_p2_skip7")
    mm(2)
    comp(3, 24); mm(3)
    comp(4, 16); mm(4)
    comp(5, 4); mm(5)
    comp(6, 0); mm(6)
    a(f"s_cmp_ge_u32 s{sWV}, 3"); a("s_cbranch_scc1 L_p2_done")
    comp(7, 0); mm(7)
    a.lab("L_p2_done")
    a.nop(8)
    a("s_barrier")
    a(f"s_mul_i32 s38, s{sWV}, 17408"); a(f"v_mul_u32_u24 v20, 272, v{vI}"); a(f"v_lshl_add_u32 v20, v{vG}, 4, v20"); a("v_add_u32 v20, s38, v20")
    for cb in range(4):
        for b in range(4):
            a(f"ds_write_b128 v20, {vr(acc+(cb*4+b)*4,4)} offset:{b*16*272 + cb*64}")
    a("s_waitcnt lgkmcnt(0)"); a("s_barrier")
    a("v_mul_u32_u24 v20, 272, v12"); a("v_lshl_add_u32 v20, v13, 5, v20")
    P = 32
    for w in range(8):
        if w == 4: a("v_add_u32 v20, %d, v20" % (4*17408))
        o = (w % 4)*17408
        a(f"ds_read_b128 {vr(P+8*w,4)}, v20 offset:{o}"); a(f"ds_read_b128 {vr(P+8*w+4,4)}, v20 offset:{o+16}")
        if w == 3 or w == 7: pass
    a("s_mov_b32 s36, 0xffff0000")
    R = 100
    for d in range(4):
        a(f"v_lshlrev_b32 v{R+2*d}, 16, v{vXD+d}"); a(f"v_and_b32 v{R+2*d+1}, s36, v{vXD+d}")
        a(f"v_lshlrev_b32 v110, 16, v{vB2+d}"); a(f"v_and_b32 v111, s36, v{vB2+d}")
        a(f"v_pk_add_f32 {vr(R+2*d,2)}, {vr(R+2*d,2)}, {vr(110,2)}")
    a("s_waitcnt lgkmcnt(0)")
    for w in range(8):
        for d in range(4):
            a(f"v_pk_add_f32 {vr(R+2*d,2)}, {vr(R+2*d,2)}, {vr(P+8*w+2*d,2)}")
    for d in range(4): a(f"v_cvt_pk_bf16_f32 v{112+d}, v{R+2*d}, v{R+2*d+1}")
    a(f"buffer_store_dwordx4 {vr(112,4)}, v{vXO}, {sr(sOUT,4)}, 0 offen")

def kernel_desc(name, nv=256):
    return f""".amdhsa_kernel {name}
  .amdhsa_next_free_vgpr {nv}
  .amdhsa_next_free_sgpr 102
  .amdhsa_accum_offset {nv}
  .amdhsa_group_segment_fixed_size 0
  .amdhsa_kernarg_size 88
  .amdhsa_user_sgpr_count 2
  .amdhsa_user_sgpr_kernarg_segment_ptr 1
  .amdhsa_system_sgpr_workgroup_id_x 1
.end_amdhsa_kernel
"""

HEADER = """; Kernarg layout (88 bytes): A_x@0 A_wqkv@8 A_wo@16 B_x@24 B_w1@32 B_b1@40 B_w2@48 B_b2@56 out@64 debug@72 ws@80
"""

def build(extra_empty=0):
    a = A()
    a(HEADER.rstrip())
    a("; @launch kernel=p1_kernel grid=(256,1,1) block=(512,1,1) lds=163840")
    a("; @launch kernel=p2_kernel grid=(256,1,1) block=(512,1,1) lds=163840")
    for i in range(extra_empty):
        a("; @launch kernel=p3_kernel grid=(256,1,1) block=(512,1,1) lds=0")
    a('.amdgcn_target "amdgcn-amd-amdhsa--gfx950"')
    a(".text")
    for nm, fn in (("p1_kernel", phase1), ("p2_kernel", phase2)):
        a(f".globl {nm}"); a(".p2align 8"); a(f".type {nm},@function"); a.lab(nm)
        end = f"L_end_{nm}"
        a("s_cmp_ge_u32 s2, 256"); a(f"s_cbranch_scc1 {end}")
        fn(a, end)
        a.lab(end); a("s_endpgm")
    if extra_empty:
        a(".globl p3_kernel"); a(".p2align 8"); a(".type p3_kernel,@function"); a.lab("p3_kernel"); a("s_endpgm")
    a('.section .rodata,"a"')
    t = a.text()
    ks = ["p1_kernel", "p2_kernel"] + (["p3_kernel"] if extra_empty else [])
    for k in ks: t += ".p2align 6\n" + kernel_desc(k)
    return t

if __name__ == "__main__":
    out = sys.argv[1] if len(sys.argv) > 1 else "v1.s"
    ee = int(sys.argv[2]) if len(sys.argv) > 2 else 0
    open(out, "w").write(build(ee))
```

```python
import sys, math, struct

NAME = "parallel_sum__sliding_local_dilated__mixer_channel_mlp__prompt"

def f2u(x): return struct.unpack("<I", struct.pack("<f", x))[0]
def hexf(x): return "0x%08x" % f2u(x)

class A:
    def __init__(s): s.l = []; s.uid = 0
    def __call__(s, t): s.l.append(t)
    def lab(s, n): s.l.append(n + ":")
    def c(s, t): s.l.append("; " + t)
    def nop(s, n):
        while n > 0:
            k = min(n, 16); s.l.append(f"s_nop {k-1}"); n -= k
    def text(s): return "\n".join(s.l) + "\n"

PROF = False
def stamp(a, i):
    if not PROF: return
    a(f"s_memtime s[{64+2*i}:{65+2*i}]"); a("s_waitcnt lgkmcnt(0)")
def stamp_rt(a, i):
    if not PROF: return
    a(f"s_memrealtime s[{64+2*i}:{65+2*i}]"); a("s_waitcnt lgkmcnt(0)")
def stamp_out(a, kidx, wsreg_lo, wave_sgpr, n):
    if not PROF: return
    a("s_waitcnt vmcnt(0)")
    stamp(a, n-2); stamp_rt(a, n-1)
    a(f"s_mov_b32 s96, s{wsreg_lo}"); a(f"s_and_b32 s97, s{wsreg_lo+1}, 0xffff"); a("s_mov_b32 s98, 0x10000000"); a("s_mov_b32 s99, 0x20000")
    a(f"s_lshl_b32 s94, s2, 3"); a(f"s_add_u32 s94, s94, s{wave_sgpr}"); a("s_lshl_b32 s94, s94, 6"); a(f"s_add_u32 s94, s94, {0x4000000 + kidx*0x100000}")
    a("v_mov_b32 v250, 0")
    for i in range(n):
        a(f"v_mov_b32 v251, s{64+2*i}"); a(f"buffer_store_dword v251, v250, s[96:99], s94 offen offset:{4*i}")
    a("s_waitcnt vmcnt(0)")

def vr(b, n=1): return f"v{b}" if n == 1 else f"v[{b}:{b+n-1}]"
def sr(b, n=1): return f"s{b}" if n == 1 else f"s[{b}:{b+n-1}]"

def srd(a, d, lo, hi, size):
    a(f"s_mov_b32 s{d}, s{lo}"); a(f"s_and_b32 s{d+1}, s{hi}, 0xffff")
    a(f"s_mov_b32 s{d+2}, {size}"); a(f"s_mov_b32 s{d+3}, 0x20000")

def interleave(a, mf, fill, per=2):
    fi = 0
    for m in mf:
        a(m)
        for _ in range(per):
            if fi < len(fill): a(fill[fi]); fi += 1
    while fi < len(fill): a(fill[fi]); fi += 1

S, D, F = 2048, 512, 1376
NSTEP2 = 59
A2_BYTES = 128 * NSTEP2 * 1024
SLOT = 21504; NSLOT = 7; WOFF = 9216
TAB = SLOT * NSLOT
T_R1, T_MR1, T_RR, T_MRR = TAB, TAB + 576, TAB + 1152, TAB + 1728
T_CS = TAB + 2304
LDS1 = 163840
BIG = -1e30
C_EXP = 0.25 * math.log2(math.e)
G1 = -2.0 * math.sqrt(2.0 / math.pi) * math.log2(math.e)
G2 = G1 * 0.044715

def MF32(d, a_, b_, c_=None):
    c_ = vr(d, 4) if c_ is None else c_
    return f"v_mfma_f32_16x16x32_bf16 {vr(d,4)}, {vr(a_,4)}, {vr(b_,4)}, {c_}"

def bf16r(a, dst, src):
    a(f"v_cvt_pk_bf16_f32 v{dst}, v{src}, v{src}")
    a(f"v_and_b32 v{dst}, 0xffff0000, v{dst}")

def xlane_reduce(a, op, x, t):
    for sw in ("v_permlane16_swap_b32", "v_permlane32_swap_b32"):
        a(f"v_mov_b32 v{t}, v{x}"); a.nop(2)
        a(f"{sw} v{x}, v{t}"); a.nop(2)
        a(f"{op} v{x}, v{x}, v{t}")

def phase1(a, END):
    sX, sW, sWS, sB1 = 8, 12, 16, 20
    sWV, sRB, sJ, sFS, sNF, sR0 = 24, 25, 26, 27, 28, 29
    sSTEP, sSLW, sSLR, sKX, sKW, sKWs, sT0, sT1, sM0X, sM0W, sH16 = 30, 31, 32, 33, 34, 35, 36, 37, 38, 39, 46
    sMASK, sC1, sC2 = 47, 48, 50
    stamp_rt(a, 0); stamp(a, 1)
    a("s_load_dwordx4 s[4:7], s[0:1], 0")
    a("s_load_dwordx4 s[40:43], s[0:1], 32")
    a("s_load_dwordx2 s[44:45], s[0:1], 80")
    a("v_lshrrev_b32 v1, 6, v0"); a("v_and_b32 v0, 63, v0")
    a(f"v_readfirstlane_b32 s{sWV}, v1")
    a("s_and_b32 s36, s2, 7"); a("s_lshr_b32 s37, s2, 3")
    a("s_lshr_b32 s25, s36, 1"); a("s_lshl_b32 s25, s25, 2"); a("s_lshr_b32 s26, s37, 3"); a("s_add_u32 s25, s25, s26")
    a("s_and_b32 s26, s36, 1"); a("s_lshl_b32 s26, s26, 3"); a("s_and_b32 s37, s37, 7"); a("s_add_u32 s26, s26, s37")
    a(f"s_mul_i32 s{sFS}, s{sJ}, 3"); a(f"s_lshl_b32 s36, s{sJ}, 1"); a("s_add_u32 s36, s36, 11")
    a(f"s_cmp_lt_u32 s{sJ}, 11"); a(f"s_cselect_b32 s{sFS}, s{sFS}, s36"); a(f"s_cselect_b32 s{sNF}, 3, 2")
    a(f"s_lshl_b32 s{sR0}, s{sRB}, 7")
    a(f"s_mov_b32 s{sMASK}, 0xffff0000")
    a("s_waitcnt lgkmcnt(0)")
    srd(a, sX, 4, 5, S * D * 2)
    srd(a, sWS, 44, 45, A2_BYTES)
    srd(a, sB1, 42, 43, F * 2)
    a(f"s_cmp_lt_u32 s{sWV}, 3")
    a(f"s_cselect_b32 s{sW}, s6, s40"); a(f"s_cselect_b32 s{sW+1}, s7, s41"); a(f"s_and_b32 s{sW+1}, s{sW+1}, 0xffff")
    a(f"s_cmp_lt_u32 s{sWV}, 3")
    a(f"s_mov_b32 s52, {D*F*2}"); a("s_mov_b32 s53, 2752")
    a(f"s_cselect_b32 s{sW+2}, {D*3*D*2}, s52"); a(f"s_mov_b32 s{sW+3}, 0x20000")
    a(f"s_cselect_b32 s{sT0}, 3072, s53")
    a(f"s_lshl_b32 s{sKWs}, s{sT0}, 5")
    a(f"s_lshl_b32 s{sH16}, s{sT0}, 4")
    vRow, vC, vXo, vWo, vHo, vT = 1, 2, 3, 4, 5, 6
    a(f"v_lshrrev_b32 v{vRow}, 2, v0"); a(f"v_and_b32 v{vC}, 3, v0")
    a(f"v_lshrrev_b32 v{vT}, 3, v{vRow}")
    a(f"v_mul_u32_u24 v7, 3, v{vT}"); a(f"v_xor_b32 v7, v7, v{vC}"); a("v_lshlrev_b32 v7, 4, v7")
    a(f"s_lshl_b32 s{sT1}, s{sWV}, 4"); a(f"s_add_u32 s{sT1}, s{sT1}, s{sR0}")
    a(f"v_add_u32 v{vXo}, s{sT1}, v{vRow}"); a(f"v_lshl_add_u32 v{vXo}, v{vXo}, 10, v7")
    a(f"s_sub_u32 s{sT1}, s{sR0}, 16")
    a(f"v_add_u32 v{vHo}, s{sT1}, v{vRow}"); a(f"v_lshl_add_u32 v{vHo}, v{vHo}, 10, v7")
    a(f"s_cmp_eq_u32 s{sRB}, 0"); a(f"s_cselect_b32 s{sT1}, 0x80000000, 0"); a(f"v_or_b32 v{vHo}, s{sT1}, v{vHo}")
    a(f"v_lshlrev_b32 v{vT}, 1, v{vT}"); a(f"v_xor_b32 v{vT}, v{vT}, v{vC}"); a(f"v_lshlrev_b32 v{vT}, 4, v{vT}")
    a(f"s_lshl_b32 s52, s{sWV}, 10"); a(f"s_lshl_b32 s53, s{sJ}, 6"); a("s_add_u32 s52, s52, s53")
    a(f"s_sub_u32 s53, s{sWV}, 4"); a("s_lshr_b32 s53, s53, 1"); a("s_add_u32 s53, s53, 1")
    a(f"s_cmp_eq_u32 s{sWV}, 3"); a("s_cselect_b32 s53, 0, s53")
    a(f"s_add_u32 s54, s53, s{sFS}"); a("s_lshl_b32 s54, s54, 6")
    a(f"s_cmp_lt_u32 s{sWV}, 3"); a("s_cselect_b32 s52, s52, s54")
    a(f"s_and_b32 s54, s{sWV}, 1"); a(f"s_cmp_ge_u32 s{sWV}, 4"); a("s_cselect_b32 s54, s54, 0"); a("s_lshl_b32 s54, s54, 4")
    a(f"v_add_u32 v{vWo}, s54, v{vRow}"); a(f"v_mul_u32_u24 v{vWo}, s{sT0}, v{vWo}")
    a(f"v_add3_u32 v{vWo}, v{vWo}, v{vT}, s52")
    a(f"s_cmp_ge_u32 s53, s{sNF}"); a("s_cselect_b32 s54, 0x80000000, 0")
    a(f"s_cmp_lt_u32 s{sWV}, 3"); a("s_cselect_b32 s54, 0, s54"); a(f"v_or_b32 v{vWo}, s54, v{vWo}")
    a(f"s_add_u32 s{sM0X}, s{sWV}, 1"); a(f"s_lshl_b32 s{sM0X}, s{sM0X}, 10")
    a(f"s_lshl_b32 s52, s{sWV}, 1"); a(f"s_add_u32 s53, s{sWV}, 4"); a(f"s_cmp_lt_u32 s{sWV}, 4"); a("s_cselect_b32 s52, s52, s53")
    a(f"s_lshl_b32 s{sM0W}, s52, 10"); a(f"s_add_u32 s{sM0W}, s{sM0W}, {WOFF}")
    vI, vG, vAX, vAW0, vAW1 = 8, 9, 10, 11, 12
    a(f"v_and_b32 v{vI}, 15, v0"); a(f"v_lshrrev_b32 v{vG}, 4, v0")
    a(f"v_lshrrev_b32 v{vT}, 3, v{vI}"); a(f"v_mul_u32_u24 v{vT}, 3, v{vT}"); a(f"v_xor_b32 v{vT}, v{vT}, v{vG}")
    a(f"v_lshlrev_b32 v{vT}, 4, v{vT}"); a(f"v_lshl_add_u32 v{vAX}, v{vI}, 6, v{vT}")
    a(f"s_lshr_b32 s52, s{sWV}, 1"); a("s_lshl_b32 s52, s52, 2")
    a(f"s_sub_u32 s53, s{sWV}, 4"); a("s_lshl_b32 s53, s53, 1"); a("s_add_u32 s53, s53, 1")
    a(f"s_cmp_lt_u32 s{sWV}, 4"); a("s_cselect_b32 s52, s52, s53"); a("s_lshl_b32 s52, s52, 10")
    a(f"v_add_u32 v{vAX}, s52, v{vAX}")
    a(f"v_lshrrev_b32 v{vT}, 2, v{vI}"); a(f"v_lshl_add_u32 v{vT}, v{vG}, 3, v{vT}"); a(f"v_lshlrev_b32 v{vT}, 6, v{vT}")
    a(f"v_and_b32 v7, 3, v{vI}"); a(f"v_lshl_add_u32 v{vT}, v7, 3, v{vT}"); a(f"v_add_u32 v{vT}, {WOFF}, v{vT}")
    a(f"v_and_b32 v7, 1, v{vG}"); a("v_lshlrev_b32 v7, 5, v7")
    a(f"v_add_u32 v{vAW0}, v{vT}, v7"); a("v_xor_b32 v7, 32, v7"); a(f"v_add_u32 v{vAW1}, v{vT}, v7")
    a(f"s_and_b32 s52, s{sWV}, 5"); a("s_cmp_eq_u32 s52, 1"); a("s_cselect_b64 vcc, -1, 0")
    a(f"v_cndmask_b32 v{vAW0}, v{vAW0}, v{vAW1}, vcc")
    vB1 = 16
    a(f"s_lshl_b32 s52, s{sFS}, 6"); a(f"v_lshl_add_u32 v{vT}, v{vG}, 3, s52")
    for c in range(6):
        a(f"buffer_load_dwordx2 {vr(vB1+2*c,2)}, v{vT}, {sr(sB1,4)}, 0 offen offset:{c*32}")
    NB1 = 6
    def dma(att):
        a(f"s_add_u32 m0, s{sSLW}, s{sM0X}"); a.nop(1)
        a(f"buffer_load_dwordx4 v{vXo}, {sr(sX,4)}, s{sKX} offen lds")
        a(f"s_add_u32 m0, s{sSLW}, s{sM0W}"); a.nop(1)
        a(f"buffer_load_dwordx4 v{vWo}, {sr(sW,4)}, s{sKW} offen lds")
        if att:
            a(f"s_add_u32 m0, m0, 1024"); a(f"s_add_u32 s{sT0}, s{sKW}, s{sH16}")
            a(f"buffer_load_dwordx4 v{vWo}, {sr(sW,4)}, s{sT0} offen lds")
        else:
            a.uid += 1; L = f"L_h{a.uid}"
            a(f"s_cmp_lg_u32 s{sWV}, 4"); a(f"s_cbranch_scc1 {L}")
            a(f"s_mov_b32 m0, s{sSLW}"); a.nop(1)
            a(f"buffer_load_dwordx4 v{vHo}, {sr(sX,4)}, s{sKX} offen lds")
            a.lab(L)
        a(f"s_add_u32 s{sKX}, s{sKX}, 64"); a(f"s_add_u32 s{sKW}, s{sKW}, s{sKWs}")
        a(f"s_add_u32 s{sSLW}, s{sSLW}, {SLOT}"); a(f"s_cmp_eq_u32 s{sSLW}, {SLOT*NSLOT}"); a(f"s_cselect_b32 s{sSLW}, 0, s{sSLW}")

    a(f"s_mov_b32 s{sSLW}, 0"); a(f"s_mov_b32 s{sSLR}, 0"); a(f"s_mov_b32 s{sKX}, 0"); a(f"s_mov_b32 s{sKW}, 0"); a(f"s_mov_b32 s{sSTEP}, 0")
    a(f"s_cmp_ge_u32 s{sWV}, 4"); a("s_cbranch_scc1 L_mlp")

    vONE = 28
    vCX, vCW0, vCW1 = 13, 14, 15
    def ones():
        for i in range(4): a(f"v_mov_b32 v{vONE+i}, 0x3f803f80")
    def adv_read():
        a(f"s_add_u32 s{sSLR}, s{sSLR}, {SLOT}"); a(f"s_cmp_eq_u32 s{sSLR}, {SLOT*NSLOT}"); a(f"s_cselect_b32 s{sSLR}, 0, s{sSLR}")

    XA = [32, 52]
    WA = [72, 84]
    aQ, aK, aV = 96, 112, 132
    cQ, cK, cV = 152, 156, 160
    st = 164
    def att_reads(buf):
        a(f"v_add_u32 v{vCX}, s{sSLR}, v{vAX}"); a(f"v_add_u32 v{vCW0}, s{sSLR}, v{vAW0}")
        for t in range(5): a(f"ds_read_b128 {vr(XA[buf]+4*t,4)}, v{vCX} offset:{t*1024}")
        for p in range(3):
            a(f"ds_read_b64_tr_b16 {vr(WA[buf]+4*p,2)}, v{vCW0} offset:{p*2048}")
            a(f"ds_read_b64_tr_b16 {vr(WA[buf]+4*p+2,2)}, v{vCW0} offset:{p*2048+256}")
        adv_read()
    def stats_ops(x, acc, tmp):
        o = []
        for d in range(4):
            t = tmp + 2*(d & 1)
            o.append(f"v_lshlrev_b32 v{t}, 16, v{x+d}")
            o.append(f"v_and_b32 v{t+1}, s{sMASK}, v{x+d}")
            o.append(f"v_pk_add_f32 {vr(acc,2)}, {vr(acc,2)}, {vr(t,2)}")
            o.append(f"v_pk_fma_f32 {vr(acc+2,2)}, {vr(t,2)}, {vr(t,2)}, {vr(acc+2,2)}")
        return o
    def top(n, att):
        a("s_waitcnt lgkmcnt(0)")
        a.uid += 1; L1, L2 = f"L_w{a.uid}a", f"L_w{a.uid}b"
        a(f"s_cmp_ge_u32 s{sSTEP}, 10"); a(f"s_cbranch_scc1 {L1}")
        a(f"s_waitcnt vmcnt({5*n})"); a("s_barrier")
        a(f"s_cmp_ge_u32 s{sSTEP}, 9"); a(f"s_cbranch_scc1 {L2}")
        dma(att)
        a(f"s_branch {L2}")
        a.lab(L1); a("s_waitcnt vmcnt(0)"); a("s_barrier"); a.lab(L2)
        a(f"s_add_u32 s{sSTEP}, s{sSTEP}, 1")
    def att_step(buf):
        top(3, True)
        att_reads(buf ^ 1)
        X, W = XA[buf], WA[buf]
        mf = []
        for t in range(5):
            mf.append(MF32(aK+4*t, W+4, X+4*t))
            mf.append(MF32(aV+4*t, X+4*t, W+8))
            if t >= 1: mf.append(MF32(aQ+4*(t-1), W, X+4*t))
        mf.append(MF32(cQ, W, vONE)); mf.append(MF32(cK, W+4, vONE)); mf.append(MF32(cV, vONE, W+8))
        interleave(a, mf, stats_ops(X, st, st+4), per=2)
    ones()
    for r in list(range(aQ, cV+4)) + list(range(st, st+4)): a(f"v_mov_b32 v{r}, 0")
    for i in range(NSLOT): dma(True)
    stamp(a, 2)
    a(f"s_waitcnt vmcnt({3*(NSLOT-1)})"); a("s_barrier")
    stamp(a, 3)
    att_reads(0)
    a.lab("L_att_loop")
    att_step(0); att_step(1)
    a(f"s_cmp_lt_u32 s{sSTEP}, 16"); a("s_cbranch_scc1 L_att_loop")
    a("s_waitcnt lgkmcnt(0)")
    stamp(a, 4)
    a.nop(8)
    def stats_final(acc, tmp, rowbase_sgpr_bytes_or_none, rowoff):
        sm, sq, t0, t1, t2, t3 = acc, acc+2, tmp, tmp+1, tmp+2, tmp+3
        a(f"v_add_f32 v{sm}, v{sm}, v{sm+1}"); a(f"v_add_f32 v{sq}, v{sq}, v{sq+1}")
        xlane_reduce(a, "v_add_f32", sm, t0); xlane_reduce(a, "v_add_f32", sq, t0)
        a(f"v_mul_f32 v{sm}, {hexf(1/512)}, v{sm}")
        a(f"v_mul_f32 v{sq}, {hexf(1/512)}, v{sq}")
        a(f"v_fma_f32 v{sq}, -v{sm}, v{sm}, v{sq}"); a(f"v_max_f32 v{sq}, 0, v{sq}")
        bf16r(a, t0, sm)
        bf16r(a, t1, sq)
        a(f"v_add_f32 v{t1}, {hexf(1e-5)}, v{t1}"); bf16r(a, t1, t1)
        a(f"v_sqrt_f32 v{t1}, v{t1}"); a.nop(1); bf16r(a, t1, t1)
        a(f"v_rcp_f32 v{t1}, v{t1}"); a.nop(1)
        a(f"v_mul_f32 v{t2}, v{sq}, v{t1}"); a(f"v_mul_f32 v{t2}, v{t2}, v{t1}"); bf16r(a, t2, t2)
        a(f"v_add_f32 v{t2}, {hexf(1e-5)}, v{t2}"); bf16r(a, t2, t2)
        a(f"v_sqrt_f32 v{t2}, v{t2}"); a.nop(1); bf16r(a, t2, t2)
        a(f"v_rcp_f32 v{t2}, v{t2}"); a.nop(1)
        a(f"v_mul_f32 v{t2}, v{t2}, v{t1}")
        a(f"v_mul_f32 v{t0}, v{t0}, v{t1}")
        a(f"v_mul_f32 v{t3}, v{sm}, v{t2}")
        a(f"v_lshlrev_b32 v{sq}, 2, v{vI}")
        if rowbase_sgpr_bytes_or_none is not None:
            a(f"v_add_u32 v{sq}, s{rowbase_sgpr_bytes_or_none}, v{sq}")
        ad = TAB + rowoff*4
        a(f"v_add_u32 v{sq}, {ad}, v{sq}")
        a("s_mov_b64 exec, 0xffff")
        a(f"ds_write_b32 v{sq}, v{t1}"); a(f"ds_write_b32 v{sq}, v{t0} offset:576")
        a(f"ds_write_b32 v{sq}, v{t2} offset:1152"); a(f"ds_write_b32 v{sq}, v{t3} offset:1728")
        a("s_mov_b64 exec, -1")
    a(f"s_cmp_lg_u32 s{sWV}, 0"); a("s_cbranch_scc1 L_att_nostat")
    stats_final(st, st+4, None, 0)
    a.lab("L_att_nostat")
    a("s_waitcnt lgkmcnt(0)"); a("s_barrier")
    stamp(a, 5)
    vTA, vTB = 13, 14
    a(f"s_lshr_b32 s52, s{sWV}, 1"); a("s_lshl_b32 s52, s52, 8")
    a(f"v_lshl_add_u32 v{vTA}, v{vI}, 2, s52"); a(f"v_add_u32 v{vTA}, {TAB}, v{vTA}")
    a(f"v_lshl_add_u32 v{vTB}, v{vG}, 4, s52"); a(f"v_add_u32 v{vTB}, {TAB}, v{vTB}")
    RA, MA = 32, 37
    RB_, MB_ = 44, 64
    for t in range(5):
        a(f"ds_read_b32 v{RA+t}, v{vTA} offset:{t*64}"); a(f"ds_read_b32 v{MA+t}, v{vTA} offset:{576+t*64}")
    a("s_waitcnt lgkmcnt(0)")
    for t in range(5):
        a(f"ds_read_b128 {vr(RB_+4*t,4)}, v{vTB} offset:{t*64}"); a(f"ds_read_b128 {vr(MB_+4*t,4)}, v{vTB} offset:{576+t*64}")
    bC, bP, bPF = 172, 176, 180
    Mc0, Mc1, Mp0, Mp1 = 184, 185, 186, 187
    tt = 188
    a(f"v_mov_b32 v{tt+3}, {hexf(BIG)}")
    for r in range(4):
        a(f"v_lshl_add_u32 v{tt}, v{vG}, 2, {r}"); a(f"v_sub_u32 v{tt}, v{vI}, v{tt}")
        a(f"v_and_b32 v{tt+1}, 1, v{tt}")
        a(f"v_cmp_eq_u32 vcc, 0, v{tt+1}"); a(f"v_cmp_le_i32 s[52:53], 0, v{tt}"); a.nop(2)
        a("s_and_b64 s[54:55], vcc, s[52:53]"); a("s_andn2_b64 s[56:57], vcc, s[52:53]")
        a(f"v_cndmask_b32 v{bC+r}, v{tt+3}, 0, s[54:55]")
        a(f"v_cndmask_b32 v{bP+r}, v{tt+3}, 0, s[56:57]")
        hm = "0xffff0000" if (r & 1) else "0xffff"
        a(f"v_mov_b32 v{tt+2}, {hm}")
        mc, mp = (Mc0, Mp0) if r < 2 else (Mc1, Mp1)
        if (r & 1) == 0:
            a(f"v_cndmask_b32 v{mc}, 0, v{tt+2}, s[54:55]"); a(f"v_cndmask_b32 v{mp}, 0, v{tt+2}, s[56:57]")
        else:
            a(f"v_cndmask_b32 v{mc}, v{mc}, v{tt+2}, s[54:55]"); a(f"v_cndmask_b32 v{mp}, v{mp}, v{tt+2}, s[56:57]")
    a(f"s_lshr_b32 s52, s{sWV}, 1"); a(f"s_or_b32 s52, s52, s{sRB}"); a("s_cmp_eq_u32 s52, 0"); a("s_cselect_b64 vcc, -1, 0")
    for r in range(4): a(f"v_cndmask_b32 v{bPF+r}, v{bP+r}, v{tt+3}, vcc")
    a("s_waitcnt lgkmcnt(0)")
    Qb, Kb, Vb = 200, 208, 218
    def conv(acc, dst, r, m, cs, layout_b):
        t = 192
        for h in range(2):
            if not layout_b:
                a(f"v_pk_mul_f32 {vr(t,2)}, {vr(cs+2*h,2)}, {vr(m & ~1,2)} op_sel:[0,{m&1}] op_sel_hi:[1,{m&1}]")
                a(f"v_pk_fma_f32 {vr(t,2)}, {vr(acc+2*h,2)}, {vr(r & ~1,2)}, {vr(t,2)} op_sel:[0,{r&1},0] op_sel_hi:[1,{r&1},1] neg_lo:[0,0,1] neg_hi:[0,0,1]")
            else:
                a(f"v_pk_mul_f32 {vr(t,2)}, {vr(m+2*h,2)}, {vr(cs,2)} op_sel:[0,0] op_sel_hi:[1,0]")
                a(f"v_pk_fma_f32 {vr(t,2)}, {vr(acc+2*h,2)}, {vr(r+2*h,2)}, {vr(t,2)} neg_lo:[0,0,1] neg_hi:[0,0,1]")
            a(f"v_cvt_pk_bf16_f32 v{dst+h}, v{t}, v{t+1}")
    for t in range(5):
        conv(aK+4*t, Kb+2*t, RA+t, MA+t, cK, False)
        conv(aV+4*t, Vb+2*t, RB_+4*t, MB_+4*t, cV, True)
        if t >= 1: conv(aQ+4*(t-1), Qb+2*(t-1), RA+t, MA+t, cQ, False)
    vO = 15
    a(f"s_lshr_b32 s52, s{sWV}, 1"); a("s_lshl_b32 s52, s52, 2"); a(f"s_lshl_b32 s53, s{sRB}, 3"); a("s_add_u32 s52, s52, s53")
    a(f"s_mul_i32 s52, s52, {NSTEP2}"); a(f"s_add_u32 s52, s52, s{sJ}"); a("s_lshl_b32 s52, s52, 10")
    a(f"s_and_b32 s53, s{sWV}, 1"); a("s_lshl_b32 s53, s53, 3"); a("s_add_u32 s52, s52, s53")
    a(f"v_lshlrev_b32 v{vO}, 4, v0")
    a(f"s_mov_b32 s54, {hexf(C_EXP)}")
    Sp, Sc, Pp, Os, Sm = 96, 100, 104, 108, 112
    for u in range(4):
        t = u + 1
        bp = bPF if u == 0 else bP
        a.nop(2)
        a(f"v_mfma_f32_16x16x16_bf16 {vr(Sp,4)}, {vr(Kb+2*(t-1),2)}, {vr(Qb+2*u,2)}, {vr(bp,4)}")
        a(f"v_mfma_f32_16x16x16_bf16 {vr(Sc,4)}, {vr(Kb+2*t,2)}, {vr(Qb+2*u,2)}, {vr(bC,4)}")
        a.nop(8)
        a0, a1, m_, tm = 116, 117, 118, 119
        a(f"v_max3_f32 v{a0}, v{Sp}, v{Sp+1}, v{Sc}"); a(f"v_max3_f32 v{a1}, v{Sp+2}, v{Sp+3}, v{Sc+2}")
        a(f"v_max_f32 v{a0}, v{a0}, v{Sc+1}"); a(f"v_max_f32 v{a1}, v{a1}, v{Sc+3}")
        a(f"v_max_f32 v{m_}, v{a0}, v{a1}")
        xlane_reduce(a, "v_max_f32", m_, tm)
        a(f"v_mul_f32 v{m_}, s54, v{m_}")
        a(f"v_fma_f32 v{a0}, v{a0}, s54, -v{m_}"); a(f"v_fma_f32 v{a1}, v{a1}, s54, -v{m_}")
        a(f"v_exp_f32 v{a0}, v{a0}"); a(f"v_exp_f32 v{a1}, v{a1}"); a.nop(1)
        a(f"v_cvt_pk_bf16_f32 v{a0}, v{a0}, v{a0}"); a(f"v_cvt_pk_bf16_f32 v{a1}, v{a1}, v{a1}")
        a(f"v_and_b32 v{Pp}, v{a0}, v{Mp0}"); a(f"v_and_b32 v{Pp+1}, v{a1}, v{Mp1}")
        a(f"v_and_b32 v{Pp+2}, v{a0}, v{Mc0}"); a(f"v_and_b32 v{Pp+3}, v{a1}, v{Mc1}")
        a.nop(2)
        a(MF32(Sm, vONE, Pp, "0")); a(MF32(Os, Vb+2*(t-1), Pp, "0"))
        a.nop(8)
        a(f"v_rcp_f32 v{Sm}, v{Sm}"); a.nop(1)
        a(f"v_pk_mul_f32 {vr(Os,2)}, {vr(Os,2)}, {vr(Sm,2)} op_sel_hi:[1,0]")
        a(f"v_pk_mul_f32 {vr(Os+2,2)}, {vr(Os+2,2)}, {vr(Sm,2)} op_sel_hi:[1,0]")
        a(f"v_cvt_pk_bf16_f32 v{120+2*(u&1)}, v{Os}, v{Os+1}"); a(f"v_cvt_pk_bf16_f32 v{121+2*(u&1)}, v{Os+2}, v{Os+3}")
        a(f"buffer_store_dwordx2 {vr(120+2*(u&1),2)}, v{vO}, {sr(sWS,4)}, s52 offen")
        a(f"s_add_u32 s52, s52, {NSTEP2*1024}")
    stamp(a, 6)
    a(f"s_branch L_p1_fin")

    a.lab("L_mlp")
    XM = [32, 40]
    FM = [48, 72]
    aH = 96
    cF = 144
    s0_, s1_ = 152, 156
    tmp = 160
    def mlp_reads(buf):
        a(f"v_add_u32 v{vCX}, s{sSLR}, v{vAX}"); a(f"v_add_u32 v{vCW0}, s{sSLR}, v{vAW0}"); a(f"v_add_u32 v{vCW1}, s{sSLR}, v{vAW1}")
        for t in range(2): a(f"ds_read_b128 {vr(XM[buf]+4*t,4)}, v{vCX} offset:{t*1024}")
        for c in range(6):
            ad = vCW0 if (c & 1) == 0 else vCW1
            off = (3 + (c >> 1)) * 2048
            a(f"ds_read_b64_tr_b16 {vr(FM[buf]+4*c,2)}, v{ad} offset:{off}")
            a(f"ds_read_b64_tr_b16 {vr(FM[buf]+4*c+2,2)}, v{ad} offset:{off+256}")
        adv_read()
    def mlp_step(buf):
        top(2, False)
        mlp_reads(buf ^ 1)
        X, Fr = XM[buf], FM[buf]
        mf = []
        for c in range(6):
            for t in range(2): mf.append(MF32(aH+(c*2+t)*4, Fr+4*c, X+4*t))
        interleave(a, mf, stats_ops(X, s0_, tmp) + stats_ops(X+4, s1_, tmp+4), per=2)
        a.uid += 1; u = a.uid
        for m in range(4):
            if m < 3:
                a(f"s_cmp_lg_u32 s{sWV}, {4+m}"); a(f"s_cbranch_scc1 L_cs{u}_{m+1}")
            a(MF32(cF, Fr+4*m, vONE))
            if m < 2: a(MF32(cF+4, Fr+4*(m+4), vONE))
            if m < 3: a(f"s_branch L_cs{u}_e")
            if m < 3: a.lab(f"L_cs{u}_{m+1}")
        a.lab(f"L_cs{u}_e")
    ones()
    for r in list(range(aH, tmp)): a(f"v_mov_b32 v{r}, 0")
    for i in range(NSLOT): dma(False)
    stamp(a, 2)
    a(f"s_waitcnt vmcnt({2*(NSLOT-1)})"); a("s_barrier")
    stamp(a, 3)
    mlp_reads(0)
    a.lab("L_mlp_loop")
    mlp_step(0); mlp_step(1)
    a(f"s_cmp_lt_u32 s{sSTEP}, 16"); a("s_cbranch_scc1 L_mlp_loop")
    a("s_waitcnt lgkmcnt(0)")
    stamp(a, 4)
    a.nop(8)
    a(f"s_sub_u32 s52, s{sWV}, 4"); a("s_lshl_b32 s52, s52, 7")
    stats_final(s0_, tmp, 52, 16)
    stats_final(s1_, tmp, 52, 32)
    a(f"v_lshlrev_b32 v{tmp}, 4, v{vG}"); a(f"s_sub_u32 s52, s{sWV}, 4"); a("s_lshl_b32 s52, s52, 6")
    a(f"v_add_u32 v{tmp}, s52, v{tmp}"); a(f"v_add_u32 v{tmp}, {T_CS}, v{tmp}")
    a("s_mov_b32 exec_lo, 0x00010001"); a("s_mov_b32 exec_hi, 0x00010001")
    a(f"ds_write_b128 v{tmp}, {vr(cF,4)}")
    a(f"s_cmp_ge_u32 s{sWV}, 6"); a("s_cbranch_scc1 L_cs_w2")
    a(f"ds_write_b128 v{tmp}, {vr(cF+4,4)} offset:256")
    a.lab("L_cs_w2")
    a("s_mov_b64 exec, -1")
    a("s_waitcnt lgkmcnt(0)"); a("s_barrier")
    stamp(a, 5)
    vTA = 13
    a(f"s_sub_u32 s52, s{sWV}, 4"); a("s_lshl_b32 s52, s52, 7")
    a(f"v_lshl_add_u32 v{vTA}, v{vI}, 2, s52"); a(f"v_add_u32 v{vTA}, {TAB + 16*4}, v{vTA}")
    Rr, Mm = 32, 34
    for t in range(2):
        a(f"ds_read_b32 v{Rr+t}, v{vTA} offset:{1152+t*64}"); a(f"ds_read_b32 v{Mm+t}, v{vTA} offset:{1728+t*64}")
    CS = 40
    a(f"v_lshlrev_b32 v14, 4, v{vG}"); a(f"v_add_u32 v14, {T_CS}, v14")
    for c in range(6): a(f"ds_read_b128 {vr(CS+4*c,4)}, v14 offset:{c*64}")
    B1 = 64
    a("s_waitcnt vmcnt(0)")
    for c in range(6):
        for h in range(2):
            a(f"v_lshlrev_b32 v{B1+4*c+2*h}, 16, v{vB1+2*c+h}"); a(f"v_and_b32 v{B1+4*c+2*h+1}, s{sMASK}, v{vB1+2*c+h}")
    a(f"s_mov_b32 s{sC1}, {hexf(G1)}"); a(f"s_mov_b32 s{sC1+1}, {hexf(G1)}")
    a(f"s_mov_b32 s{sC2}, {hexf(G2)}"); a(f"s_mov_b32 s{sC2+1}, {hexf(G2)}")
    a(f"v_mov_b32 v88, s{sC1}"); a(f"v_mov_b32 v89, s{sC1}")
    a("s_waitcnt lgkmcnt(0)")
    vO = 15
    a(f"v_lshlrev_b32 v{vO}, 4, v0")
    a(f"s_sub_u32 s52, s{sWV}, 4"); a("s_lshl_b32 s52, s52, 1"); a(f"s_lshl_b32 s53, s{sRB}, 3"); a("s_add_u32 s52, s52, s53")
    a(f"s_mul_i32 s52, s52, {NSTEP2}"); a(f"s_add_u32 s52, s52, s{sFS}"); a("s_add_u32 s52, s52, 16"); a("s_lshl_b32 s52, s52, 10")
    for q in range(3):
        if q == 2:
            a(f"s_cmp_lt_u32 s{sNF}, 3"); a(f"s_cbranch_scc1 L_mlp_fin")
        for t in range(2):
            o = 168 + 4*(t & 1)
            for cl in range(2):
                c = 2*q + cl
                acc = aH + (c*2+t)*4
                for h in range(2):
                    u, w_, z = 176, 178, 180
                    r, m = Rr+t, Mm+t
                    a(f"v_pk_fma_f32 {vr(u,2)}, {vr(CS+4*c+2*h,2)}, {vr(m&~1,2)}, {vr(B1+4*c+2*h,2)} op_sel:[0,{m&1},0] op_sel_hi:[1,{m&1},1] neg_lo:[0,1,0] neg_hi:[0,1,0]")
                    a(f"v_pk_fma_f32 {vr(u,2)}, {vr(acc+2*h,2)}, {vr(r&~1,2)}, {vr(u,2)} op_sel:[0,{r&1},0] op_sel_hi:[1,{r&1},1]")
                    a(f"v_pk_mul_f32 {vr(w_,2)}, {vr(u,2)}, {vr(u,2)}")
                    a(f"v_pk_fma_f32 {vr(w_,2)}, {vr(w_,2)}, {sr(sC2,2)}, {vr(88,2)}")
                    a(f"v_pk_mul_f32 {vr(w_,2)}, {vr(w_,2)}, {vr(u,2)}")
                    a(f"v_exp_f32 v{w_}, v{w_}"); a(f"v_exp_f32 v{w_+1}, v{w_+1}"); a.nop(1)
                    a(f"v_pk_add_f32 {vr(w_,2)}, {vr(w_,2)}, 1.0 op_sel_hi:[1,0]")
                    a(f"v_rcp_f32 v{w_}, v{w_}"); a(f"v_rcp_f32 v{w_+1}, v{w_+1}"); a.nop(1)
                    a(f"v_pk_mul_f32 {vr(w_,2)}, {vr(w_,2)}, {vr(u,2)}")
                    a(f"v_cvt_pk_bf16_f32 v{o+2*cl+h}, v{w_}, v{w_+1}")
            a(f"s_add_u32 s53, s52, {(t*NSTEP2+q)*1024}")
            a(f"buffer_store_dwordx4 {vr(o,4)}, v{vO}, {sr(sWS,4)}, s53 offen")
    a.lab("L_mlp_fin")
    stamp(a, 6)
    a.lab("L_p1_fin")
    stamp_out(a, 0, 44, sWV, 9)

def phase2(a, END):
    sA2, sWO, sW2, sXs, sOUT, sB2 = 8, 12, 16, 20, 24, 28
    sWV, sRG, sCG = 32, 33, 34
    stamp_rt(a, 0); stamp(a, 1)
    a("s_load_dwordx2 s[4:5], s[0:1], 0")
    a("s_load_dwordx2 s[6:7], s[0:1], 16")
    a("s_load_dwordx4 s[40:43], s[0:1], 48")
    a("s_load_dwordx2 s[44:45], s[0:1], 64")
    a("s_load_dwordx2 s[46:47], s[0:1], 80")
    a("v_mov_b32 v2, v0")
    a("v_lshrrev_b32 v1, 6, v0"); a("v_and_b32 v0, 63, v0")
    a(f"v_readfirstlane_b32 s{sWV}, v1")
    a("s_and_b32 s36, s2, 7"); a("s_lshr_b32 s37, s2, 3")
    a(f"s_lshl_b32 s{sRG}, s36, 2"); a("s_lshr_b32 s38, s37, 3"); a(f"s_add_u32 s{sRG}, s{sRG}, s38"); a(f"s_and_b32 s{sCG}, s37, 7")
    a("s_waitcnt lgkmcnt(0)")
    srd(a, sA2, 46, 47, A2_BYTES); srd(a, sWO, 6, 7, D*D*2); srd(a, sW2, 40, 41, F*D*2)
    srd(a, sXs, 4, 5, S*D*2); srd(a, sOUT, 44, 45, S*D*2); srd(a, sB2, 42, 43, D*2)
    vXO, vXD, vB2 = 3, 4, 8
    a("v_lshrrev_b32 v12, 3, v2"); a("v_and_b32 v13, 7, v2")
    a(f"s_lshl_b32 s36, s{sRG}, 6"); a("v_add_u32 v14, s36, v12"); a("v_lshlrev_b32 v14, 10, v14")
    a(f"s_lshl_b32 s37, s{sCG}, 7"); a("v_lshlrev_b32 v15, 4, v13"); a("v_add_u32 v15, s37, v15")
    a(f"v_add_u32 v{vXO}, v14, v15")
    a(f"buffer_load_dwordx4 {vr(vXD,4)}, v{vXO}, {sr(sXs,4)}, 0 offen")
    a(f"buffer_load_dwordx4 {vr(vB2,4)}, v15, {sr(sB2,4)}, 0 offen")
    vWo, vAo = 16, 17
    a("v_lshrrev_b32 v18, 4, v0"); a("v_lshlrev_b32 v18, 1, v18"); a("v_and_b32 v19, 7, v0"); a("v_xor_b32 v18, v18, v19")
    a("v_lshlrev_b32 v18, 4, v18"); a("v_lshrrev_b32 v19, 3, v0"); a("v_lshl_add_u32 v18, v19, 10, v18"); a(f"v_add_u32 v{vWo}, s37, v18")
    a(f"v_lshlrev_b32 v{vAo}, 4, v0")
    vI, vG = 18, 19
    RING = 5; WSL = 4096
    a(f"v_and_b32 v{vI}, 15, v0"); a(f"v_lshrrev_b32 v{vG}, 4, v0")
    a(f"v_lshrrev_b32 v20, 2, v{vI}"); a(f"v_lshl_add_u32 v20, v{vG}, 2, v20")
    a("v_lshrrev_b32 v21, 1, v20"); a("v_and_b32 v21, 3, v21"); a("v_lshlrev_b32 v21, 5, v21")
    a("v_lshlrev_b32 v20, 7, v20"); a(f"v_and_b32 v22, 3, v{vI}"); a("v_lshl_add_u32 v20, v22, 3, v20")
    a(f"s_mul_i32 s38, s{sWV}, {RING*WSL}"); a("v_add_u32 v20, s38, v20")
    vRA = 24
    for cb in range(4):
        a(f"v_xor_b32 v22, {cb*32}, v21"); a(f"v_add_u32 v{vRA+cb}, v20, v22")
    acc = 128
    for r in range(acc, acc+64): a(f"v_mov_b32 v{r}, 0")
    AB = [32, 48, 64, 80, 96, 112, 192, 208]
    WF = 224
    a(f"s_lshl_b32 s39, s{sRG}, 2"); a(f"s_mul_i32 s39, s39, {NSTEP2}"); a(f"s_add_u32 s39, s39, s{sWV}"); a("s_lshl_b32 s39, s39, 10")
    def wdma(i):
        base = sWO if i < 2 else sW2
        trel = 8*i if i < 2 else 8*i - 16
        a(f"s_add_u32 s48, s{sWV}, {trel}"); a("s_lshl_b32 s48, s48, 15")
        for q in range(4):
            a(f"s_add_u32 m0, s38, {(i % RING)*WSL + q*1024}")
            a(f"s_add_u32 s49, s48, {q*8192}")
            a(f"buffer_load_dwordx4 v{vWo}, {sr(base,4)}, s49 offen lds")
    def aload(i):
        for b in range(4):
            a(f"s_add_u32 s49, s39, {(b*NSTEP2 + 8*i)*1024}")
            a(f"buffer_load_dwordx4 {vr(AB[i]+4*b,4)}, v{vAo}, {sr(sA2,4)}, s49 offen")
    for i in range(RING):
        aload(i); wdma(i)
    for i in range(RING, 7): aload(i)
    def comp(i, nwait):
        a(f"s_waitcnt vmcnt({nwait})")
        for cb in range(4):
            off = (i % RING)*WSL
            a(f"ds_read_b64_tr_b16 {vr(WF+4*cb,2)}, v{vRA+cb} offset:{off}")
            a(f"ds_read_b64_tr_b16 {vr(WF+4*cb+2,2)}, v{vRA+cb} offset:{off+2048}")
        a("s_waitcnt lgkmcnt(0)")
    def mm(i):
        for cb in range(4):
            for b in range(4): a(MF32(acc+(cb*4+b)*4, WF+4*cb, AB[i]+4*b))
    stamp(a, 2)
    comp(0, 40); stamp(a, 3); wdma(5); mm(0)
    comp(1, 36); wdma(6); mm(1)
    comp(2, 32)
    a(f"s_cmp_ge_u32 s{sWV}, 3"); a("s_cbranch_scc1 L_p2_skip7")
    aload(7); wdma(7)
    a.lab("L_p2_skip7")
    mm(2)
    comp(3, 24); mm(3)
    comp(4, 16); mm(4)
    comp(5, 4); mm(5)
    comp(6, 0); mm(6)
    a(f"s_cmp_ge_u32 s{sWV}, 3"); a("s_cbranch_scc1 L_p2_done")
    comp(7, 0); mm(7)
    a.lab("L_p2_done")
    stamp(a, 4)
    a.nop(8)
    a("s_barrier")
    a(f"s_mul_i32 s38, s{sWV}, 17408"); a(f"v_mul_u32_u24 v20, 272, v{vI}"); a(f"v_lshl_add_u32 v20, v{vG}, 4, v20"); a("v_add_u32 v20, s38, v20")
    for cb in range(4):
        for b in range(4):
            a(f"ds_write_b128 v20, {vr(acc+(cb*4+b)*4,4)} offset:{b*16*272 + cb*64}")
    a("s_waitcnt lgkmcnt(0)"); a("s_barrier")
    stamp(a, 5)
    a("v_mul_u32_u24 v20, 272, v12"); a("v_lshl_add_u32 v20, v13, 5, v20")
    P = 32
    for w in range(8):
        if w == 4: a("v_add_u32 v20, %d, v20" % (4*17408))
        o = (w % 4)*17408
        a(f"ds_read_b128 {vr(P+8*w,4)}, v20 offset:{o}"); a(f"ds_read_b128 {vr(P+8*w+4,4)}, v20 offset:{o+16}")
        if w == 3 or w == 7: pass
    a("s_mov_b32 s36, 0xffff0000")
    R = 100
    for d in range(4):
        a(f"v_lshlrev_b32 v{R+2*d}, 16, v{vXD+d}"); a(f"v_and_b32 v{R+2*d+1}, s36, v{vXD+d}")
        a(f"v_lshlrev_b32 v110, 16, v{vB2+d}"); a(f"v_and_b32 v111, s36, v{vB2+d}")
        a(f"v_pk_add_f32 {vr(R+2*d,2)}, {vr(R+2*d,2)}, {vr(110,2)}")
    a("s_waitcnt lgkmcnt(0)")
    for w in range(8):
        for d in range(4):
            a(f"v_pk_add_f32 {vr(R+2*d,2)}, {vr(R+2*d,2)}, {vr(P+8*w+2*d,2)}")
    for d in range(4): a(f"v_cvt_pk_bf16_f32 v{112+d}, v{R+2*d}, v{R+2*d+1}")
    a(f"buffer_store_dwordx4 {vr(112,4)}, v{vXO}, {sr(sOUT,4)}, 0 offen")
    stamp(a, 6)
    stamp_out(a, 1, 46, sWV, 9)

def kernel_desc(name, nv=256):
    return f""".amdhsa_kernel {name}
  .amdhsa_next_free_vgpr {nv}
  .amdhsa_next_free_sgpr 102
  .amdhsa_accum_offset {nv}
  .amdhsa_group_segment_fixed_size 0
  .amdhsa_kernarg_size 88
  .amdhsa_user_sgpr_count 2
  .amdhsa_user_sgpr_kernarg_segment_ptr 1
  .amdhsa_system_sgpr_workgroup_id_x 1
.end_amdhsa_kernel
"""

HEADER = """; Kernarg layout (88 bytes): A_x@0 A_wqkv@8 A_wo@16 B_x@24 B_w1@32 B_b1@40 B_w2@48 B_b2@56 out@64 debug@72 ws@80
"""

def build(extra_empty=0):
    a = A()
    a(HEADER.rstrip())
    a("; @launch kernel=p1_kernel grid=(256,1,1) block=(512,1,1) lds=163840")
    a("; @launch kernel=p2_kernel grid=(256,1,1) block=(512,1,1) lds=163840")
    for i in range(extra_empty):
        a("; @launch kernel=p3_kernel grid=(256,1,1) block=(512,1,1) lds=0")
    a('.amdgcn_target "amdgcn-amd-amdhsa--gfx950"')
    a(".text")
    for nm, fn in (("p1_kernel", phase1), ("p2_kernel", phase2)):
        a(f".globl {nm}"); a(".p2align 8"); a(f".type {nm},@function"); a.lab(nm)
        end = f"L_end_{nm}"
        a("s_cmp_ge_u32 s2, 256"); a(f"s_cbranch_scc1 {end}")
        fn(a, end)
        a.lab(end); a("s_endpgm")
    if extra_empty:
        a(".globl p3_kernel"); a(".p2align 8"); a(".type p3_kernel,@function"); a.lab("p3_kernel"); a("s_endpgm")
    a('.section .rodata,"a"')
    t = a.text()
    ks = ["p1_kernel", "p2_kernel"] + (["p3_kernel"] if extra_empty else [])
    for k in ks: t += ".p2align 6\n" + kernel_desc(k)
    return t

if __name__ == "__main__":
    out = sys.argv[1] if len(sys.argv) > 1 else "v1.s"
    ee = int(sys.argv[2]) if len(sys.argv) > 2 else 0
    PROF = len(sys.argv) > 3 and sys.argv[3] == "p"
    open(out, "w").write(build(ee))
```

```python
import sys, math, struct

NAME = "parallel_sum__sliding_local_dilated__mixer_channel_mlp__prompt"

def f2u(x): return struct.unpack("<I", struct.pack("<f", x))[0]
def hexf(x): return "0x%08x" % f2u(x)

class A:
    def __init__(s): s.l = []; s.uid = 0
    def __call__(s, t): s.l.append(t)
    def lab(s, n): s.l.append(n + ":")
    def c(s, t): s.l.append("; " + t)
    def nop(s, n):
        while n > 0:
            k = min(n, 16); s.l.append(f"s_nop {k-1}"); n -= k
    def text(s): return "\n".join(s.l) + "\n"

PROF = False
def stamp(a, i):
    if not PROF: return
    a(f"s_memtime s[{64+2*i}:{65+2*i}]"); a("s_waitcnt lgkmcnt(0)")
def stamp_rt(a, i):
    if not PROF: return
    a(f"s_memrealtime s[{64+2*i}:{65+2*i}]"); a("s_waitcnt lgkmcnt(0)")
def stamp_out(a, kidx, wsreg_lo, wave_sgpr, n):
    if not PROF: return
    a("s_waitcnt vmcnt(0)")
    stamp(a, n-2); stamp_rt(a, n-1)
    a(f"s_mov_b32 s96, s{wsreg_lo}"); a(f"s_and_b32 s97, s{wsreg_lo+1}, 0xffff"); a("s_mov_b32 s98, 0x10000000"); a("s_mov_b32 s99, 0x20000")
    a(f"s_lshl_b32 s94, s2, 3"); a(f"s_add_u32 s94, s94, s{wave_sgpr}"); a("s_lshl_b32 s94, s94, 6"); a(f"s_add_u32 s94, s94, {0x4000000 + kidx*0x100000}")
    a("v_mov_b32 v250, 0")
    for i in range(n):
        a(f"v_mov_b32 v251, s{64+2*i}"); a(f"buffer_store_dword v251, v250, s[96:99], s94 offen offset:{4*i}")
    a("s_waitcnt vmcnt(0)")
    a.uid += 1; L = f"L_dbg{a.uid}"
    a("s_cmp_lg_u32 s2, 5"); a(f"s_cbranch_scc1 {L}"); a(f"s_cmp_lg_u32 s{wave_sgpr}, 0"); a(f"s_cbranch_scc1 {L}")
    a("s_load_dwordx2 s[92:93], s[0:1], 72"); a("s_waitcnt lgkmcnt(0)")
    if kidx: a(f"s_sub_u32 s92, s92, {512*kidx}"); a("s_subb_u32 s93, s93, 0")
    a("s_mov_b32 s96, s92"); a("s_and_b32 s97, s93, 0xffff"); a("s_mov_b32 s98, 256"); a("s_mov_b32 s99, 0x20000")
    a("v_mov_b32 v251, s64"); a(f"buffer_store_dword v251, v250, s[96:99], 0 offen offset:{32*kidx}")
    for i in range(2, 8):
        a(f"s_sub_u32 s94, s{64+2*i}, s66"); a("v_mov_b32 v251, s94"); a(f"buffer_store_dword v251, v250, s[96:99], 0 offen offset:{32*kidx+4*(i-1)}")
    a(f"v_mov_b32 v251, s{64+2*(n-1)}"); a(f"buffer_store_dword v251, v250, s[96:99], 0 offen offset:{32*kidx+28}")
    a("s_waitcnt vmcnt(0)")
    a.lab(L)

def vr(b, n=1): return f"v{b}" if n == 1 else f"v[{b}:{b+n-1}]"
def sr(b, n=1): return f"s{b}" if n == 1 else f"s[{b}:{b+n-1}]"

def srd(a, d, lo, hi, size):
    a(f"s_mov_b32 s{d}, s{lo}"); a(f"s_and_b32 s{d+1}, s{hi}, 0xffff")
    a(f"s_mov_b32 s{d+2}, {size}"); a(f"s_mov_b32 s{d+3}, 0x20000")

def interleave(a, mf, fill, per=2):
    fi = 0
    for m in mf:
        a(m)
        for _ in range(per):
            if fi < len(fill): a(fill[fi]); fi += 1
    while fi < len(fill): a(fill[fi]); fi += 1

S, D, F = 2048, 512, 1376
NSTEP2 = 59
A2_BYTES = 128 * NSTEP2 * 1024
SLOT = 21504; NSLOT = 7; WOFF = 9216
TAB = SLOT * NSLOT
T_R1, T_MR1, T_RR, T_MRR = TAB, TAB + 576, TAB + 1152, TAB + 1728
T_CS = TAB + 2304
LDS1 = 163840
BIG = -1e30
C_EXP = 0.25 * math.log2(math.e)
G1 = -2.0 * math.sqrt(2.0 / math.pi) * math.log2(math.e)
G2 = G1 * 0.044715

def MF32(d, a_, b_, c_=None):
    c_ = vr(d, 4) if c_ is None else c_
    return f"v_mfma_f32_16x16x32_bf16 {vr(d,4)}, {vr(a_,4)}, {vr(b_,4)}, {c_}"

def bf16r(a, dst, src):
    a(f"v_cvt_pk_bf16_f32 v{dst}, v{src}, v{src}")
    a(f"v_and_b32 v{dst}, 0xffff0000, v{dst}")

def xlane_reduce(a, op, x, t):
    for sw in ("v_permlane16_swap_b32", "v_permlane32_swap_b32"):
        a(f"v_mov_b32 v{t}, v{x}"); a.nop(2)
        a(f"{sw} v{x}, v{t}"); a.nop(2)
        a(f"{op} v{x}, v{x}, v{t}")

def phase1(a, END):
    sX, sW, sWS, sB1 = 8, 12, 16, 20
    sWV, sRB, sJ, sFS, sNF, sR0 = 24, 25, 26, 27, 28, 29
    sSTEP, sSLW, sSLR, sKX, sKW, sKWs, sT0, sT1, sM0X, sM0W, sH16 = 30, 31, 32, 33, 34, 35, 36, 37, 38, 39, 46
    sMASK, sC1, sC2 = 47, 48, 50
    stamp_rt(a, 0); stamp(a, 1)
    a("s_load_dwordx4 s[4:7], s[0:1], 0")
    a("s_load_dwordx4 s[40:43], s[0:1], 32")
    a("s_load_dwordx2 s[44:45], s[0:1], 80")
    a("v_lshrrev_b32 v1, 6, v0"); a("v_and_b32 v0, 63, v0")
    a(f"v_readfirstlane_b32 s{sWV}, v1")
    a("s_and_b32 s36, s2, 7"); a("s_lshr_b32 s37, s2, 3")
    a("s_lshr_b32 s25, s36, 1"); a("s_lshl_b32 s25, s25, 2"); a("s_lshr_b32 s26, s37, 3"); a("s_add_u32 s25, s25, s26")
    a("s_and_b32 s26, s36, 1"); a("s_lshl_b32 s26, s26, 3"); a("s_and_b32 s37, s37, 7"); a("s_add_u32 s26, s26, s37")
    a(f"s_mul_i32 s{sFS}, s{sJ}, 3"); a(f"s_lshl_b32 s36, s{sJ}, 1"); a("s_add_u32 s36, s36, 11")
    a(f"s_cmp_lt_u32 s{sJ}, 11"); a(f"s_cselect_b32 s{sFS}, s{sFS}, s36"); a(f"s_cselect_b32 s{sNF}, 3, 2")
    a(f"s_lshl_b32 s{sR0}, s{sRB}, 7")
    a(f"s_mov_b32 s{sMASK}, 0xffff0000")
    a("s_waitcnt lgkmcnt(0)")
    srd(a, sX, 4, 5, S * D * 2)
    srd(a, sWS, 44, 45, A2_BYTES)
    srd(a, sB1, 42, 43, F * 2)
    a(f"s_cmp_lt_u32 s{sWV}, 3")
    a(f"s_cselect_b32 s{sW}, s6, s40"); a(f"s_cselect_b32 s{sW+1}, s7, s41"); a(f"s_and_b32 s{sW+1}, s{sW+1}, 0xffff")
    a(f"s_cmp_lt_u32 s{sWV}, 3")
    a(f"s_mov_b32 s52, {D*F*2}"); a("s_mov_b32 s53, 2752")
    a(f"s_cselect_b32 s{sW+2}, {D*3*D*2}, s52"); a(f"s_mov_b32 s{sW+3}, 0x20000")
    a(f"s_cselect_b32 s{sT0}, 3072, s53")
    a(f"s_lshl_b32 s{sKWs}, s{sT0}, 5")
    a(f"s_lshl_b32 s{sH16}, s{sT0}, 4")
    vRow, vC, vXo, vWo, vHo, vT = 1, 2, 3, 4, 5, 6
    a(f"v_lshrrev_b32 v{vRow}, 2, v0"); a(f"v_and_b32 v{vC}, 3, v0")
    a(f"v_lshrrev_b32 v{vT}, 3, v{vRow}")
    a(f"v_mul_u32_u24 v7, 3, v{vT}"); a(f"v_xor_b32 v7, v7, v{vC}"); a("v_lshlrev_b32 v7, 4, v7")
    a(f"s_lshl_b32 s{sT1}, s{sWV}, 4"); a(f"s_add_u32 s{sT1}, s{sT1}, s{sR0}")
    a(f"v_add_u32 v{vXo}, s{sT1}, v{vRow}"); a(f"v_lshl_add_u32 v{vXo}, v{vXo}, 10, v7")
    a(f"s_sub_u32 s{sT1}, s{sR0}, 16")
    a(f"v_add_u32 v{vHo}, s{sT1}, v{vRow}"); a(f"v_lshl_add_u32 v{vHo}, v{vHo}, 10, v7")
    a(f"s_cmp_eq_u32 s{sRB}, 0"); a(f"s_cselect_b32 s{sT1}, 0x80000000, 0"); a(f"v_or_b32 v{vHo}, s{sT1}, v{vHo}")
    a(f"v_lshlrev_b32 v{vT}, 1, v{vT}"); a(f"v_xor_b32 v{vT}, v{vT}, v{vC}"); a(f"v_lshlrev_b32 v{vT}, 4, v{vT}")
    a(f"s_lshl_b32 s52, s{sWV}, 10"); a(f"s_lshl_b32 s53, s{sJ}, 6"); a("s_add_u32 s52, s52, s53")
    a(f"s_sub_u32 s53, s{sWV}, 4"); a("s_lshr_b32 s53, s53, 1"); a("s_add_u32 s53, s53, 1")
    a(f"s_cmp_eq_u32 s{sWV}, 3"); a("s_cselect_b32 s53, 0, s53")
    a(f"s_add_u32 s54, s53, s{sFS}"); a("s_lshl_b32 s54, s54, 6")
    a(f"s_cmp_lt_u32 s{sWV}, 3"); a("s_cselect_b32 s52, s52, s54")
    a(f"s_and_b32 s54, s{sWV}, 1"); a(f"s_cmp_ge_u32 s{sWV}, 4"); a("s_cselect_b32 s54, s54, 0"); a("s_lshl_b32 s54, s54, 4")
    a(f"v_add_u32 v{vWo}, s54, v{vRow}"); a(f"v_mul_u32_u24 v{vWo}, s{sT0}, v{vWo}")
    a(f"v_add3_u32 v{vWo}, v{vWo}, v{vT}, s52")
    a(f"s_cmp_ge_u32 s53, s{sNF}"); a("s_cselect_b32 s54, 0x80000000, 0")
    a(f"s_cmp_lt_u32 s{sWV}, 3"); a("s_cselect_b32 s54, 0, s54"); a(f"v_or_b32 v{vWo}, s54, v{vWo}")
    a(f"s_add_u32 s{sM0X}, s{sWV}, 1"); a(f"s_lshl_b32 s{sM0X}, s{sM0X}, 10")
    a(f"s_lshl_b32 s52, s{sWV}, 1"); a(f"s_add_u32 s53, s{sWV}, 4"); a(f"s_cmp_lt_u32 s{sWV}, 4"); a("s_cselect_b32 s52, s52, s53")
    a(f"s_lshl_b32 s{sM0W}, s52, 10"); a(f"s_add_u32 s{sM0W}, s{sM0W}, {WOFF}")
    vI, vG, vAX, vAW0, vAW1 = 8, 9, 10, 11, 12
    a(f"v_and_b32 v{vI}, 15, v0"); a(f"v_lshrrev_b32 v{vG}, 4, v0")
    a(f"v_lshrrev_b32 v{vT}, 3, v{vI}"); a(f"v_mul_u32_u24 v{vT}, 3, v{vT}"); a(f"v_xor_b32 v{vT}, v{vT}, v{vG}")
    a(f"v_lshlrev_b32 v{vT}, 4, v{vT}"); a(f"v_lshl_add_u32 v{vAX}, v{vI}, 6, v{vT}")
    a(f"s_lshr_b32 s52, s{sWV}, 1"); a("s_lshl_b32 s52, s52, 2")
    a(f"s_sub_u32 s53, s{sWV}, 4"); a("s_lshl_b32 s53, s53, 1"); a("s_add_u32 s53, s53, 1")
    a(f"s_cmp_lt_u32 s{sWV}, 4"); a("s_cselect_b32 s52, s52, s53"); a("s_lshl_b32 s52, s52, 10")
    a(f"v_add_u32 v{vAX}, s52, v{vAX}")
    a(f"v_lshrrev_b32 v{vT}, 2, v{vI}"); a(f"v_lshl_add_u32 v{vT}, v{vG}, 3, v{vT}"); a(f"v_lshlrev_b32 v{vT}, 6, v{vT}")
    a(f"v_and_b32 v7, 3, v{vI}"); a(f"v_lshl_add_u32 v{vT}, v7, 3, v{vT}"); a(f"v_add_u32 v{vT}, {WOFF}, v{vT}")
    a(f"v_and_b32 v7, 1, v{vG}"); a("v_lshlrev_b32 v7, 5, v7")
    a(f"v_add_u32 v{vAW0}, v{vT}, v7"); a("v_xor_b32 v7, 32, v7"); a(f"v_add_u32 v{vAW1}, v{vT}, v7")
    a(f"s_and_b32 s52, s{sWV}, 5"); a("s_cmp_eq_u32 s52, 1"); a("s_cselect_b64 vcc, -1, 0")
    a(f"v_cndmask_b32 v{vAW0}, v{vAW0}, v{vAW1}, vcc")
    vB1 = 16
    a(f"s_lshl_b32 s52, s{sFS}, 6"); a(f"v_lshl_add_u32 v{vT}, v{vG}, 3, s52")
    for c in range(6):
        a(f"buffer_load_dwordx2 {vr(vB1+2*c,2)}, v{vT}, {sr(sB1,4)}, 0 offen offset:{c*32}")
    NB1 = 6
    def dma(att):
        a(f"s_add_u32 m0, s{sSLW}, s{sM0X}"); a.nop(1)
        a(f"buffer_load_dwordx4 v{vXo}, {sr(sX,4)}, s{sKX} offen lds")
        a(f"s_add_u32 m0, s{sSLW}, s{sM0W}"); a.nop(1)
        a(f"buffer_load_dwordx4 v{vWo}, {sr(sW,4)}, s{sKW} offen lds")
        if att:
            a(f"s_add_u32 m0, m0, 1024"); a(f"s_add_u32 s{sT0}, s{sKW}, s{sH16}")
            a(f"buffer_load_dwordx4 v{vWo}, {sr(sW,4)}, s{sT0} offen lds")
        else:
            a.uid += 1; L = f"L_h{a.uid}"
            a(f"s_cmp_lg_u32 s{sWV}, 4"); a(f"s_cbranch_scc1 {L}")
            a(f"s_mov_b32 m0, s{sSLW}"); a.nop(1)
            a(f"buffer_load_dwordx4 v{vHo}, {sr(sX,4)}, s{sKX} offen lds")
            a.lab(L)
        a(f"s_add_u32 s{sKX}, s{sKX}, 64"); a(f"s_add_u32 s{sKW}, s{sKW}, s{sKWs}")
        a(f"s_add_u32 s{sSLW}, s{sSLW}, {SLOT}"); a(f"s_cmp_eq_u32 s{sSLW}, {SLOT*NSLOT}"); a(f"s_cselect_b32 s{sSLW}, 0, s{sSLW}")

    a(f"s_mov_b32 s{sSLW}, 0"); a(f"s_mov_b32 s{sSLR}, 0"); a(f"s_mov_b32 s{sKX}, 0"); a(f"s_mov_b32 s{sKW}, 0"); a(f"s_mov_b32 s{sSTEP}, 0")
    a(f"s_cmp_ge_u32 s{sWV}, 4"); a("s_cbranch_scc1 L_mlp")

    vONE = 28
    vCX, vCW0, vCW1 = 13, 14, 15
    def ones():
        for i in range(4): a(f"v_mov_b32 v{vONE+i}, 0x3f803f80")
    def adv_read():
        a(f"s_add_u32 s{sSLR}, s{sSLR}, {SLOT}"); a(f"s_cmp_eq_u32 s{sSLR}, {SLOT*NSLOT}"); a(f"s_cselect_b32 s{sSLR}, 0, s{sSLR}")

    XA = [32, 52]
    WA = [72, 84]
    aQ, aK, aV = 96, 112, 132
    cQ, cK, cV = 152, 156, 160
    st = 164
    def att_reads(buf):
        a(f"v_add_u32 v{vCX}, s{sSLR}, v{vAX}"); a(f"v_add_u32 v{vCW0}, s{sSLR}, v{vAW0}")
        for t in range(5): a(f"ds_read_b128 {vr(XA[buf]+4*t,4)}, v{vCX} offset:{t*1024}")
        for p in range(3):
            a(f"ds_read_b64_tr_b16 {vr(WA[buf]+4*p,2)}, v{vCW0} offset:{p*2048}")
            a(f"ds_read_b64_tr_b16 {vr(WA[buf]+4*p+2,2)}, v{vCW0} offset:{p*2048+256}")
        adv_read()
    def stats_ops(x, acc, tmp):
        o = []
        for d in range(4):
            t = tmp + 2*(d & 1)
            o.append(f"v_lshlrev_b32 v{t}, 16, v{x+d}")
            o.append(f"v_and_b32 v{t+1}, s{sMASK}, v{x+d}")
            o.append(f"v_pk_add_f32 {vr(acc,2)}, {vr(acc,2)}, {vr(t,2)}")
            o.append(f"v_pk_fma_f32 {vr(acc+2,2)}, {vr(t,2)}, {vr(t,2)}, {vr(acc+2,2)}")
        return o
    def top(n, att):
        a("s_waitcnt lgkmcnt(0)")
        a.uid += 1; L1, L2 = f"L_w{a.uid}a", f"L_w{a.uid}b"
        a(f"s_cmp_ge_u32 s{sSTEP}, 10"); a(f"s_cbranch_scc1 {L1}")
        a(f"s_waitcnt vmcnt({5*n})"); a("s_barrier")
        a(f"s_cmp_ge_u32 s{sSTEP}, 9"); a(f"s_cbranch_scc1 {L2}")
        dma(att)
        a(f"s_branch {L2}")
        a.lab(L1); a("s_waitcnt vmcnt(0)"); a("s_barrier"); a.lab(L2)
        a(f"s_add_u32 s{sSTEP}, s{sSTEP}, 1")
    def att_step(buf):
        top(3, True)
        att_reads(buf ^ 1)
        X, W = XA[buf], WA[buf]
        mf = []
        for t in range(5):
            mf.append(MF32(aK+4*t, W+4, X+4*t))
            mf.append(MF32(aV+4*t, X+4*t, W+8))
            if t >= 1: mf.append(MF32(aQ+4*(t-1), W, X+4*t))
        mf.append(MF32(cQ, W, vONE)); mf.append(MF32(cK, W+4, vONE)); mf.append(MF32(cV, vONE, W+8))
        interleave(a, mf, stats_ops(X, st, st+4), per=2)
    ones()
    for r in list(range(aQ, cV+4)) + list(range(st, st+4)): a(f"v_mov_b32 v{r}, 0")
    for i in range(NSLOT): dma(True)
    stamp(a, 2)
    a(f"s_waitcnt vmcnt({3*(NSLOT-1)})"); a("s_barrier")
    stamp(a, 3)
    att_reads(0)
    a.lab("L_att_loop")
    att_step(0); att_step(1)
    a(f"s_cmp_lt_u32 s{sSTEP}, 16"); a("s_cbranch_scc1 L_att_loop")
    a("s_waitcnt lgkmcnt(0)")
    stamp(a, 4)
    a.nop(8)
    def stats_final(acc, tmp, rowbase_sgpr_bytes_or_none, rowoff):
        sm, sq, t0, t1, t2, t3 = acc, acc+2, tmp, tmp+1, tmp+2, tmp+3
        a(f"v_add_f32 v{sm}, v{sm}, v{sm+1}"); a(f"v_add_f32 v{sq}, v{sq}, v{sq+1}")
        xlane_reduce(a, "v_add_f32", sm, t0); xlane_reduce(a, "v_add_f32", sq, t0)
        a(f"v_mul_f32 v{sm}, {hexf(1/512)}, v{sm}")
        a(f"v_mul_f32 v{sq}, {hexf(1/512)}, v{sq}")
        a(f"v_fma_f32 v{sq}, -v{sm}, v{sm}, v{sq}"); a(f"v_max_f32 v{sq}, 0, v{sq}")
        bf16r(a, t0, sm)
        bf16r(a, t1, sq)
        a(f"v_add_f32 v{t1}, {hexf(1e-5)}, v{t1}"); bf16r(a, t1, t1)
        a(f"v_sqrt_f32 v{t1}, v{t1}"); a.nop(1); bf16r(a, t1, t1)
        a(f"v_rcp_f32 v{t1}, v{t1}"); a.nop(1)
        a(f"v_mul_f32 v{t2}, v{sq}, v{t1}"); a(f"v_mul_f32 v{t2}, v{t2}, v{t1}"); bf16r(a, t2, t2)
        a(f"v_add_f32 v{t2}, {hexf(1e-5)}, v{t2}"); bf16r(a, t2, t2)
        a(f"v_sqrt_f32 v{t2}, v{t2}"); a.nop(1); bf16r(a, t2, t2)
        a(f"v_rcp_f32 v{t2}, v{t2}"); a.nop(1)
        a(f"v_mul_f32 v{t2}, v{t2}, v{t1}")
        a(f"v_mul_f32 v{t0}, v{t0}, v{t1}")
        a(f"v_mul_f32 v{t3}, v{sm}, v{t2}")
        a(f"v_lshlrev_b32 v{sq}, 2, v{vI}")
        if rowbase_sgpr_bytes_or_none is not None:
            a(f"v_add_u32 v{sq}, s{rowbase_sgpr_bytes_or_none}, v{sq}")
        ad = TAB + rowoff*4
        a(f"v_add_u32 v{sq}, {ad}, v{sq}")
        a("s_mov_b64 exec, 0xffff")
        a(f"ds_write_b32 v{sq}, v{t1}"); a(f"ds_write_b32 v{sq}, v{t0} offset:576")
        a(f"ds_write_b32 v{sq}, v{t2} offset:1152"); a(f"ds_write_b32 v{sq}, v{t3} offset:1728")
        a("s_mov_b64 exec, -1")
    a(f"s_cmp_lg_u32 s{sWV}, 0"); a("s_cbranch_scc1 L_att_nostat")
    stats_final(st, st+4, None, 0)
    a.lab("L_att_nostat")
    a("s_waitcnt lgkmcnt(0)"); a("s_barrier")
    stamp(a, 5)
    vTA, vTB = 13, 14
    a(f"s_lshr_b32 s52, s{sWV}, 1"); a("s_lshl_b32 s52, s52, 8")
    a(f"v_lshl_add_u32 v{vTA}, v{vI}, 2, s52"); a(f"v_add_u32 v{vTA}, {TAB}, v{vTA}")
    a(f"v_lshl_add_u32 v{vTB}, v{vG}, 4, s52"); a(f"v_add_u32 v{vTB}, {TAB}, v{vTB}")
    RA, MA = 32, 37
    RB_, MB_ = 44, 64
    for t in range(5):
        a(f"ds_read_b32 v{RA+t}, v{vTA} offset:{t*64}"); a(f"ds_read_b32 v{MA+t}, v{vTA} offset:{576+t*64}")
    a("s_waitcnt lgkmcnt(0)")
    for t in range(5):
        a(f"ds_read_b128 {vr(RB_+4*t,4)}, v{vTB} offset:{t*64}"); a(f"ds_read_b128 {vr(MB_+4*t,4)}, v{vTB} offset:{576+t*64}")
    bC, bP, bPF = 172, 176, 180
    Mc0, Mc1, Mp0, Mp1 = 184, 185, 186, 187
    tt = 188
    a(f"v_mov_b32 v{tt+3}, {hexf(BIG)}")
    for r in range(4):
        a(f"v_lshl_add_u32 v{tt}, v{vG}, 2, {r}"); a(f"v_sub_u32 v{tt}, v{vI}, v{tt}")
        a(f"v_and_b32 v{tt+1}, 1, v{tt}")
        a(f"v_cmp_eq_u32 vcc, 0, v{tt+1}"); a(f"v_cmp_le_i32 s[52:53], 0, v{tt}"); a.nop(2)
        a("s_and_b64 s[54:55], vcc, s[52:53]"); a("s_andn2_b64 s[56:57], vcc, s[52:53]")
        a(f"v_cndmask_b32 v{bC+r}, v{tt+3}, 0, s[54:55]")
        a(f"v_cndmask_b32 v{bP+r}, v{tt+3}, 0, s[56:57]")
        hm = "0xffff0000" if (r & 1) else "0xffff"
        a(f"v_mov_b32 v{tt+2}, {hm}")
        mc, mp = (Mc0, Mp0) if r < 2 else (Mc1, Mp1)
        if (r & 1) == 0:
            a(f"v_cndmask_b32 v{mc}, 0, v{tt+2}, s[54:55]"); a(f"v_cndmask_b32 v{mp}, 0, v{tt+2}, s[56:57]")
        else:
            a(f"v_cndmask_b32 v{mc}, v{mc}, v{tt+2}, s[54:55]"); a(f"v_cndmask_b32 v{mp}, v{mp}, v{tt+2}, s[56:57]")
    a(f"s_lshr_b32 s52, s{sWV}, 1"); a(f"s_or_b32 s52, s52, s{sRB}"); a("s_cmp_eq_u32 s52, 0"); a("s_cselect_b64 vcc, -1, 0")
    for r in range(4): a(f"v_cndmask_b32 v{bPF+r}, v{bP+r}, v{tt+3}, vcc")
    a("s_waitcnt lgkmcnt(0)")
    Qb, Kb, Vb = 200, 208, 218
    def conv(acc, dst, r, m, cs, layout_b):
        t = 192
        for h in range(2):
            if not layout_b:
                a(f"v_pk_mul_f32 {vr(t,2)}, {vr(cs+2*h,2)}, {vr(m & ~1,2)} op_sel:[0,{m&1}] op_sel_hi:[1,{m&1}]")
                a(f"v_pk_fma_f32 {vr(t,2)}, {vr(acc+2*h,2)}, {vr(r & ~1,2)}, {vr(t,2)} op_sel:[0,{r&1},0] op_sel_hi:[1,{r&1},1] neg_lo:[0,0,1] neg_hi:[0,0,1]")
            else:
                a(f"v_pk_mul_f32 {vr(t,2)}, {vr(m+2*h,2)}, {vr(cs,2)} op_sel:[0,0] op_sel_hi:[1,0]")
                a(f"v_pk_fma_f32 {vr(t,2)}, {vr(acc+2*h,2)}, {vr(r+2*h,2)}, {vr(t,2)} neg_lo:[0,0,1] neg_hi:[0,0,1]")
            a(f"v_cvt_pk_bf16_f32 v{dst+h}, v{t}, v{t+1}")
    for t in range(5):
        conv(aK+4*t, Kb+2*t, RA+t, MA+t, cK, False)
        conv(aV+4*t, Vb+2*t, RB_+4*t, MB_+4*t, cV, True)
        if t >= 1: conv(aQ+4*(t-1), Qb+2*(t-1), RA+t, MA+t, cQ, False)
    vO = 15
    a(f"s_lshr_b32 s52, s{sWV}, 1"); a("s_lshl_b32 s52, s52, 2"); a(f"s_lshl_b32 s53, s{sRB}, 3"); a("s_add_u32 s52, s52, s53")
    a(f"s_mul_i32 s52, s52, {NSTEP2}"); a(f"s_add_u32 s52, s52, s{sJ}"); a("s_lshl_b32 s52, s52, 10")
    a(f"s_and_b32 s53, s{sWV}, 1"); a("s_lshl_b32 s53, s53, 3"); a("s_add_u32 s52, s52, s53")
    a(f"v_lshlrev_b32 v{vO}, 4, v0")
    a(f"s_mov_b32 s54, {hexf(C_EXP)}")
    Sp, Sc, Pp, Os, Sm = 96, 100, 104, 108, 112
    for u in range(4):
        t = u + 1
        bp = bPF if u == 0 else bP
        a.nop(2)
        a(f"v_mfma_f32_16x16x16_bf16 {vr(Sp,4)}, {vr(Kb+2*(t-1),2)}, {vr(Qb+2*u,2)}, {vr(bp,4)}")
        a(f"v_mfma_f32_16x16x16_bf16 {vr(Sc,4)}, {vr(Kb+2*t,2)}, {vr(Qb+2*u,2)}, {vr(bC,4)}")
        a.nop(8)
        a0, a1, m_, tm = 116, 117, 118, 119
        a(f"v_max3_f32 v{a0}, v{Sp}, v{Sp+1}, v{Sc}"); a(f"v_max3_f32 v{a1}, v{Sp+2}, v{Sp+3}, v{Sc+2}")
        a(f"v_max_f32 v{a0}, v{a0}, v{Sc+1}"); a(f"v_max_f32 v{a1}, v{a1}, v{Sc+3}")
        a(f"v_max_f32 v{m_}, v{a0}, v{a1}")
        xlane_reduce(a, "v_max_f32", m_, tm)
        a(f"v_mul_f32 v{m_}, s54, v{m_}")
        a(f"v_fma_f32 v{a0}, v{a0}, s54, -v{m_}"); a(f"v_fma_f32 v{a1}, v{a1}, s54, -v{m_}")
        a(f"v_exp_f32 v{a0}, v{a0}"); a(f"v_exp_f32 v{a1}, v{a1}"); a.nop(1)
        a(f"v_cvt_pk_bf16_f32 v{a0}, v{a0}, v{a0}"); a(f"v_cvt_pk_bf16_f32 v{a1}, v{a1}, v{a1}")
        a(f"v_and_b32 v{Pp}, v{a0}, v{Mp0}"); a(f"v_and_b32 v{Pp+1}, v{a1}, v{Mp1}")
        a(f"v_and_b32 v{Pp+2}, v{a0}, v{Mc0}"); a(f"v_and_b32 v{Pp+3}, v{a1}, v{Mc1}")
        a.nop(2)
        a(MF32(Sm, vONE, Pp, "0")); a(MF32(Os, Vb+2*(t-1), Pp, "0"))
        a.nop(8)
        a(f"v_rcp_f32 v{Sm}, v{Sm}"); a.nop(1)
        a(f"v_pk_mul_f32 {vr(Os,2)}, {vr(Os,2)}, {vr(Sm,2)} op_sel_hi:[1,0]")
        a(f"v_pk_mul_f32 {vr(Os+2,2)}, {vr(Os+2,2)}, {vr(Sm,2)} op_sel_hi:[1,0]")
        a(f"v_cvt_pk_bf16_f32 v{120+2*(u&1)}, v{Os}, v{Os+1}"); a(f"v_cvt_pk_bf16_f32 v{121+2*(u&1)}, v{Os+2}, v{Os+3}")
        a(f"buffer_store_dwordx2 {vr(120+2*(u&1),2)}, v{vO}, {sr(sWS,4)}, s52 offen")
        a(f"s_add_u32 s52, s52, {NSTEP2*1024}")
    stamp(a, 6)
    a(f"s_branch L_p1_fin")

    a.lab("L_mlp")
    XM = [32, 40]
    FM = [48, 72]
    aH = 96
    cF = 144
    s0_, s1_ = 152, 156
    tmp = 160
    def mlp_reads(buf):
        a(f"v_add_u32 v{vCX}, s{sSLR}, v{vAX}"); a(f"v_add_u32 v{vCW0}, s{sSLR}, v{vAW0}"); a(f"v_add_u32 v{vCW1}, s{sSLR}, v{vAW1}")
        for t in range(2): a(f"ds_read_b128 {vr(XM[buf]+4*t,4)}, v{vCX} offset:{t*1024}")
        for c in range(6):
            ad = vCW0 if (c & 1) == 0 else vCW1
            off = (3 + (c >> 1)) * 2048
            a(f"ds_read_b64_tr_b16 {vr(FM[buf]+4*c,2)}, v{ad} offset:{off}")
            a(f"ds_read_b64_tr_b16 {vr(FM[buf]+4*c+2,2)}, v{ad} offset:{off+256}")
        adv_read()
    def mlp_step(buf):
        top(2, False)
        mlp_reads(buf ^ 1)
        X, Fr = XM[buf], FM[buf]
        mf = []
        for c in range(6):
            for t in range(2): mf.append(MF32(aH+(c*2+t)*4, Fr+4*c, X+4*t))
        interleave(a, mf, stats_ops(X, s0_, tmp) + stats_ops(X+4, s1_, tmp+4), per=2)
        a.uid += 1; u = a.uid
        for m in range(4):
            if m < 3:
                a(f"s_cmp_lg_u32 s{sWV}, {4+m}"); a(f"s_cbranch_scc1 L_cs{u}_{m+1}")
            a(MF32(cF, Fr+4*m, vONE))
            if m < 2: a(MF32(cF+4, Fr+4*(m+4), vONE))
            if m < 3: a(f"s_branch L_cs{u}_e")
            if m < 3: a.lab(f"L_cs{u}_{m+1}")
        a.lab(f"L_cs{u}_e")
    ones()
    for r in list(range(aH, tmp)): a(f"v_mov_b32 v{r}, 0")
    for i in range(NSLOT): dma(False)
    stamp(a, 2)
    a(f"s_waitcnt vmcnt({2*(NSLOT-1)})"); a("s_barrier")
    stamp(a, 3)
    mlp_reads(0)
    a.lab("L_mlp_loop")
    mlp_step(0); mlp_step(1)
    a(f"s_cmp_lt_u32 s{sSTEP}, 16"); a("s_cbranch_scc1 L_mlp_loop")
    a("s_waitcnt lgkmcnt(0)")
    stamp(a, 4)
    a.nop(8)
    a(f"s_sub_u32 s52, s{sWV}, 4"); a("s_lshl_b32 s52, s52, 7")
    stats_final(s0_, tmp, 52, 16)
    stats_final(s1_, tmp, 52, 32)
    a(f"v_lshlrev_b32 v{tmp}, 4, v{vG}"); a(f"s_sub_u32 s52, s{sWV}, 4"); a("s_lshl_b32 s52, s52, 6")
    a(f"v_add_u32 v{tmp}, s52, v{tmp}"); a(f"v_add_u32 v{tmp}, {T_CS}, v{tmp}")
    a("s_mov_b32 exec_lo, 0x00010001"); a("s_mov_b32 exec_hi, 0x00010001")
    a(f"ds_write_b128 v{tmp}, {vr(cF,4)}")
    a(f"s_cmp_ge_u32 s{sWV}, 6"); a("s_cbranch_scc1 L_cs_w2")
    a(f"ds_write_b128 v{tmp}, {vr(cF+4,4)} offset:256")
    a.lab("L_cs_w2")
    a("s_mov_b64 exec, -1")
    a("s_waitcnt lgkmcnt(0)"); a("s_barrier")
    stamp(a, 5)
    vTA = 13
    a(f"s_sub_u32 s52, s{sWV}, 4"); a("s_lshl_b32 s52, s52, 7")
    a(f"v_lshl_add_u32 v{vTA}, v{vI}, 2, s52"); a(f"v_add_u32 v{vTA}, {TAB + 16*4}, v{vTA}")
    Rr, Mm = 32, 34
    for t in range(2):
        a(f"ds_read_b32 v{Rr+t}, v{vTA} offset:{1152+t*64}"); a(f"ds_read_b32 v{Mm+t}, v{vTA} offset:{1728+t*64}")
    CS = 40
    a(f"v_lshlrev_b32 v14, 4, v{vG}"); a(f"v_add_u32 v14, {T_CS}, v14")
    for c in range(6): a(f"ds_read_b128 {vr(CS+4*c,4)}, v14 offset:{c*64}")
    B1 = 64
    a("s_waitcnt vmcnt(0)")
    for c in range(6):
        for h in range(2):
            a(f"v_lshlrev_b32 v{B1+4*c+2*h}, 16, v{vB1+2*c+h}"); a(f"v_and_b32 v{B1+4*c+2*h+1}, s{sMASK}, v{vB1+2*c+h}")
    a(f"s_mov_b32 s{sC1}, {hexf(G1)}"); a(f"s_mov_b32 s{sC1+1}, {hexf(G1)}")
    a(f"s_mov_b32 s{sC2}, {hexf(G2)}"); a(f"s_mov_b32 s{sC2+1}, {hexf(G2)}")
    a(f"v_mov_b32 v88, s{sC1}"); a(f"v_mov_b32 v89, s{sC1}")
    a("s_waitcnt lgkmcnt(0)")
    vO = 15
    a(f"v_lshlrev_b32 v{vO}, 4, v0")
    a(f"s_sub_u32 s52, s{sWV}, 4"); a("s_lshl_b32 s52, s52, 1"); a(f"s_lshl_b32 s53, s{sRB}, 3"); a("s_add_u32 s52, s52, s53")
    a(f"s_mul_i32 s52, s52, {NSTEP2}"); a(f"s_add_u32 s52, s52, s{sFS}"); a("s_add_u32 s52, s52, 16"); a("s_lshl_b32 s52, s52, 10")
    for q in range(3):
        if q == 2:
            a(f"s_cmp_lt_u32 s{sNF}, 3"); a(f"s_cbranch_scc1 L_mlp_fin")
        for t in range(2):
            o = 168 + 4*(t & 1)
            for cl in range(2):
                c = 2*q + cl
                acc = aH + (c*2+t)*4
                for h in range(2):
                    u, w_, z = 176, 178, 180
                    r, m = Rr+t, Mm+t
                    a(f"v_pk_fma_f32 {vr(u,2)}, {vr(CS+4*c+2*h,2)}, {vr(m&~1,2)}, {vr(B1+4*c+2*h,2)} op_sel:[0,{m&1},0] op_sel_hi:[1,{m&1},1] neg_lo:[0,1,0] neg_hi:[0,1,0]")
                    a(f"v_pk_fma_f32 {vr(u,2)}, {vr(acc+2*h,2)}, {vr(r&~1,2)}, {vr(u,2)} op_sel:[0,{r&1},0] op_sel_hi:[1,{r&1},1]")
                    a(f"v_pk_mul_f32 {vr(w_,2)}, {vr(u,2)}, {vr(u,2)}")
                    a(f"v_pk_fma_f32 {vr(w_,2)}, {vr(w_,2)}, {sr(sC2,2)}, {vr(88,2)}")
                    a(f"v_pk_mul_f32 {vr(w_,2)}, {vr(w_,2)}, {vr(u,2)}")
                    a(f"v_exp_f32 v{w_}, v{w_}"); a(f"v_exp_f32 v{w_+1}, v{w_+1}"); a.nop(1)
                    a(f"v_pk_add_f32 {vr(w_,2)}, {vr(w_,2)}, 1.0 op_sel_hi:[1,0]")
                    a(f"v_rcp_f32 v{w_}, v{w_}"); a(f"v_rcp_f32 v{w_+1}, v{w_+1}"); a.nop(1)
                    a(f"v_pk_mul_f32 {vr(w_,2)}, {vr(w_,2)}, {vr(u,2)}")
                    a(f"v_cvt_pk_bf16_f32 v{o+2*cl+h}, v{w_}, v{w_+1}")
            a(f"s_add_u32 s53, s52, {(t*NSTEP2+q)*1024}")
            a(f"buffer_store_dwordx4 {vr(o,4)}, v{vO}, {sr(sWS,4)}, s53 offen")
    a.lab("L_mlp_fin")
    stamp(a, 6)
    a.lab("L_p1_fin")
    stamp_out(a, 0, 44, sWV, 9)

def phase2(a, END):
    sA2, sWO, sW2, sXs, sOUT, sB2 = 8, 12, 16, 20, 24, 28
    sWV, sRG, sCG = 32, 33, 34
    stamp_rt(a, 0); stamp(a, 1)
    a("s_load_dwordx2 s[4:5], s[0:1], 0")
    a("s_load_dwordx2 s[6:7], s[0:1], 16")
    a("s_load_dwordx4 s[40:43], s[0:1], 48")
    a("s_load_dwordx2 s[44:45], s[0:1], 64")
    a("s_load_dwordx2 s[46:47], s[0:1], 80")
    a("v_mov_b32 v2, v0")
    a("v_lshrrev_b32 v1, 6, v0"); a("v_and_b32 v0, 63, v0")
    a(f"v_readfirstlane_b32 s{sWV}, v1")
    a("s_and_b32 s36, s2, 7"); a("s_lshr_b32 s37, s2, 3")
    a(f"s_lshl_b32 s{sRG}, s36, 2"); a("s_lshr_b32 s38, s37, 3"); a(f"s_add_u32 s{sRG}, s{sRG}, s38"); a(f"s_and_b32 s{sCG}, s37, 7")
    a("s_waitcnt lgkmcnt(0)")
    srd(a, sA2, 46, 47, A2_BYTES); srd(a, sWO, 6, 7, D*D*2); srd(a, sW2, 40, 41, F*D*2)
    srd(a, sXs, 4, 5, S*D*2); srd(a, sOUT, 44, 45, S*D*2); srd(a, sB2, 42, 43, D*2)
    vXO, vXD, vB2 = 3, 4, 8
    a("v_lshrrev_b32 v12, 3, v2"); a("v_and_b32 v13, 7, v2")
    a(f"s_lshl_b32 s36, s{sRG}, 6"); a("v_add_u32 v14, s36, v12"); a("v_lshlrev_b32 v14, 10, v14")
    a(f"s_lshl_b32 s37, s{sCG}, 7"); a("v_lshlrev_b32 v15, 4, v13"); a("v_add_u32 v15, s37, v15")
    a(f"v_add_u32 v{vXO}, v14, v15")
    a(f"buffer_load_dwordx4 {vr(vXD,4)}, v{vXO}, {sr(sXs,4)}, 0 offen")
    a(f"buffer_load_dwordx4 {vr(vB2,4)}, v15, {sr(sB2,4)}, 0 offen")
    vWo, vAo = 16, 17
    a("v_lshrrev_b32 v18, 4, v0"); a("v_lshlrev_b32 v18, 1, v18"); a("v_and_b32 v19, 7, v0"); a("v_xor_b32 v18, v18, v19")
    a("v_lshlrev_b32 v18, 4, v18"); a("v_lshrrev_b32 v19, 3, v0"); a("v_lshl_add_u32 v18, v19, 10, v18"); a(f"v_add_u32 v{vWo}, s37, v18")
    a(f"v_lshlrev_b32 v{vAo}, 4, v0")
    vI, vG = 18, 19
    RING = 5; WSL = 4096
    a(f"v_and_b32 v{vI}, 15, v0"); a(f"v_lshrrev_b32 v{vG}, 4, v0")
    a(f"v_lshrrev_b32 v20, 2, v{vI}"); a(f"v_lshl_add_u32 v20, v{vG}, 2, v20")
    a("v_lshrrev_b32 v21, 1, v20"); a("v_and_b32 v21, 3, v21"); a("v_lshlrev_b32 v21, 5, v21")
    a("v_lshlrev_b32 v20, 7, v20"); a(f"v_and_b32 v22, 3, v{vI}"); a("v_lshl_add_u32 v20, v22, 3, v20")
    a(f"s_mul_i32 s38, s{sWV}, {RING*WSL}"); a("v_add_u32 v20, s38, v20")
    vRA = 24
    for cb in range(4):
        a(f"v_xor_b32 v22, {cb*32}, v21"); a(f"v_add_u32 v{vRA+cb}, v20, v22")
    acc = 128
    for r in range(acc, acc+64): a(f"v_mov_b32 v{r}, 0")
    AB = [32, 48, 64, 80, 96, 112, 192, 208]
    WF = 224
    a(f"s_lshl_b32 s39, s{sRG}, 2"); a(f"s_mul_i32 s39, s39, {NSTEP2}"); a(f"s_add_u32 s39, s39, s{sWV}"); a("s_lshl_b32 s39, s39, 10")
    def wdma(i):
        base = sWO if i < 2 else sW2
        trel = 8*i if i < 2 else 8*i - 16
        a(f"s_add_u32 s48, s{sWV}, {trel}"); a("s_lshl_b32 s48, s48, 15")
        for q in range(4):
            a(f"s_add_u32 m0, s38, {(i % RING)*WSL + q*1024}")
            a(f"s_add_u32 s49, s48, {q*8192}")
            a(f"buffer_load_dwordx4 v{vWo}, {sr(base,4)}, s49 offen lds")
    def aload(i):
        for b in range(4):
            a(f"s_add_u32 s49, s39, {(b*NSTEP2 + 8*i)*1024}")
            a(f"buffer_load_dwordx4 {vr(AB[i]+4*b,4)}, v{vAo}, {sr(sA2,4)}, s49 offen")
    for i in range(RING):
        aload(i); wdma(i)
    for i in range(RING, 7): aload(i)
    def comp(i, nwait):
        a(f"s_waitcnt vmcnt({nwait})")
        for cb in range(4):
            off = (i % RING)*WSL
            a(f"ds_read_b64_tr_b16 {vr(WF+4*cb,2)}, v{vRA+cb} offset:{off}")
            a(f"ds_read_b64_tr_b16 {vr(WF+4*cb+2,2)}, v{vRA+cb} offset:{off+2048}")
        a("s_waitcnt lgkmcnt(0)")
    def mm(i):
        for cb in range(4):
            for b in range(4): a(MF32(acc+(cb*4+b)*4, WF+4*cb, AB[i]+4*b))
    stamp(a, 2)
    comp(0, 40); stamp(a, 3); wdma(5); mm(0)
    comp(1, 36); wdma(6); mm(1)
    comp(2, 32)
    a(f"s_cmp_ge_u32 s{sWV}, 3"); a("s_cbranch_scc1 L_p2_skip7")
    aload(7); wdma(7)
    a.lab("L_p2_skip7")
    mm(2)
    comp(3, 24); mm(3)
    comp(4, 16); mm(4)
    comp(5, 4); mm(5)
    comp(6, 0); mm(6)
    a(f"s_cmp_ge_u32 s{sWV}, 3"); a("s_cbranch_scc1 L_p2_done")
    comp(7, 0); mm(7)
    a.lab("L_p2_done")
    stamp(a, 4)
    a.nop(8)
    a("s_barrier")
    a(f"s_mul_i32 s38, s{sWV}, 17408"); a(f"v_mul_u32_u24 v20, 272, v{vI}"); a(f"v_lshl_add_u32 v20, v{vG}, 4, v20"); a("v_add_u32 v20, s38, v20")
    for cb in range(4):
        for b in range(4):
            a(f"ds_write_b128 v20, {vr(acc+(cb*4+b)*4,4)} offset:{b*16*272 + cb*64}")
    a("s_waitcnt lgkmcnt(0)"); a("s_barrier")
    stamp(a, 5)
    a("v_mul_u32_u24 v20, 272, v12"); a("v_lshl_add_u32 v20, v13, 5, v20")
    P = 32
    for w in range(8):
        if w == 4: a("v_add_u32 v20, %d, v20" % (4*17408))
        o = (w % 4)*17408
        a(f"ds_read_b128 {vr(P+8*w,4)}, v20 offset:{o}"); a(f"ds_read_b128 {vr(P+8*w+4,4)}, v20 offset:{o+16}")
        if w == 3 or w == 7: pass
    a("s_mov_b32 s36, 0xffff0000")
    R = 100
    for d in range(4):
        a(f"v_lshlrev_b32 v{R+2*d}, 16, v{vXD+d}"); a(f"v_and_b32 v{R+2*d+1}, s36, v{vXD+d}")
        a(f"v_lshlrev_b32 v110, 16, v{vB2+d}"); a(f"v_and_b32 v111, s36, v{vB2+d}")
        a(f"v_pk_add_f32 {vr(R+2*d,2)}, {vr(R+2*d,2)}, {vr(110,2)}")
    a("s_waitcnt lgkmcnt(0)")
    for w in range(8):
        for d in range(4):
            a(f"v_pk_add_f32 {vr(R+2*d,2)}, {vr(R+2*d,2)}, {vr(P+8*w+2*d,2)}")
    for d in range(4): a(f"v_cvt_pk_bf16_f32 v{112+d}, v{R+2*d}, v{R+2*d+1}")
    a(f"buffer_store_dwordx4 {vr(112,4)}, v{vXO}, {sr(sOUT,4)}, 0 offen")
    stamp(a, 6)
    stamp_out(a, 1, 46, sWV, 9)

def kernel_desc(name, nv=256):
    return f""".amdhsa_kernel {name}
  .amdhsa_next_free_vgpr {nv}
  .amdhsa_next_free_sgpr 102
  .amdhsa_accum_offset {nv}
  .amdhsa_group_segment_fixed_size 0
  .amdhsa_kernarg_size 88
  .amdhsa_user_sgpr_count 2
  .amdhsa_user_sgpr_kernarg_segment_ptr 1
  .amdhsa_system_sgpr_workgroup_id_x 1
.end_amdhsa_kernel
"""

HEADER = """; Kernarg layout (88 bytes): A_x@0 A_wqkv@8 A_wo@16 B_x@24 B_w1@32 B_b1@40 B_w2@48 B_b2@56 out@64 debug@72 ws@80
"""

def build(extra_empty=0):
    a = A()
    a(HEADER.rstrip())
    a("; @launch kernel=p1_kernel grid=(256,1,1) block=(512,1,1) lds=163840")
    a("; @launch kernel=p2_kernel grid=(256,1,1) block=(512,1,1) lds=163840")
    for i in range(extra_empty):
        a("; @launch kernel=p3_kernel grid=(256,1,1) block=(512,1,1) lds=0")
    a('.amdgcn_target "amdgcn-amd-amdhsa--gfx950"')
    a(".text")
    for nm, fn in (("p1_kernel", phase1), ("p2_kernel", phase2)):
        a(f".globl {nm}"); a(".p2align 8"); a(f".type {nm},@function"); a.lab(nm)
        end = f"L_end_{nm}"
        a("s_cmp_ge_u32 s2, 256"); a(f"s_cbranch_scc1 {end}")
        fn(a, end)
        a.lab(end); a("s_endpgm")
    if extra_empty:
        a(".globl p3_kernel"); a(".p2align 8"); a(".type p3_kernel,@function"); a.lab("p3_kernel"); a("s_endpgm")
    a('.section .rodata,"a"')
    t = a.text()
    ks = ["p1_kernel", "p2_kernel"] + (["p3_kernel"] if extra_empty else [])
    for k in ks: t += ".p2align 6\n" + kernel_desc(k)
    return t

if __name__ == "__main__":
    out = sys.argv[1] if len(sys.argv) > 1 else "v1.s"
    ee = int(sys.argv[2]) if len(sys.argv) > 2 else 0
    PROF = len(sys.argv) > 3 and sys.argv[3] == "p"
    open(out, "w").write(build(ee))
```

```python
import sys, math, struct

NAME = "parallel_sum__sliding_local_dilated__mixer_channel_mlp__prompt"

def f2u(x): return struct.unpack("<I", struct.pack("<f", x))[0]
def hexf(x): return "0x%08x" % f2u(x)

class A:
    def __init__(s): s.l = []; s.uid = 0
    def __call__(s, t): s.l.append(t)
    def lab(s, n): s.l.append(n + ":")
    def c(s, t): s.l.append("; " + t)
    def nop(s, n):
        while n > 0:
            k = min(n, 16); s.l.append(f"s_nop {k-1}"); n -= k
    def text(s): return "\n".join(s.l) + "\n"

PROF = False
def stamp(a, i):
    if not PROF: return
    a(f"s_memtime s[{64+2*i}:{65+2*i}]"); a("s_waitcnt lgkmcnt(0)")
def stamp_rt(a, i):
    if not PROF: return
    a(f"s_memrealtime s[{64+2*i}:{65+2*i}]"); a("s_waitcnt lgkmcnt(0)")
def stamp_out(a, kidx, wsreg_lo, wave_sgpr, n):
    if not PROF: return
    a("s_waitcnt vmcnt(0)")
    stamp(a, n-2); stamp_rt(a, n-1)
    a(f"s_mov_b32 s96, s{wsreg_lo}"); a(f"s_and_b32 s97, s{wsreg_lo+1}, 0xffff"); a("s_mov_b32 s98, 0x10000000"); a("s_mov_b32 s99, 0x20000")
    a(f"s_lshl_b32 s94, s2, 3"); a(f"s_add_u32 s94, s94, s{wave_sgpr}"); a("s_lshl_b32 s94, s94, 6"); a(f"s_add_u32 s94, s94, {0x4000000 + kidx*0x100000}")
    a("v_mov_b32 v250, 0")
    for i in range(n):
        a(f"v_mov_b32 v251, s{64+2*i}"); a(f"buffer_store_dword v251, v250, s[96:99], s94 offen offset:{4*i}")
    a("s_waitcnt vmcnt(0)")
    a.uid += 1; L = f"L_dbg{a.uid}"
    a("s_cmp_lg_u32 s2, 5"); a(f"s_cbranch_scc1 {L}"); a(f"s_cmp_lg_u32 s{wave_sgpr}, 0"); a(f"s_cbranch_scc1 {L}")
    a("s_load_dwordx2 s[92:93], s[0:1], 72"); a("s_waitcnt lgkmcnt(0)")
    if kidx: a(f"s_sub_u32 s92, s92, {512*kidx}"); a("s_subb_u32 s93, s93, 0")
    a("s_mov_b32 s96, s92"); a("s_and_b32 s97, s93, 0xffff"); a("s_mov_b32 s98, 1024"); a("s_mov_b32 s99, 0x20000")
    for base in (0, 512):
        a("v_mov_b32 v251, s64"); a(f"buffer_store_dword v251, v250, s[96:99], 0 offen offset:{base+32*kidx}")
        for i in range(2, 8):
            a(f"s_sub_u32 s94, s{64+2*i}, s66"); a("v_mov_b32 v251, s94"); a(f"buffer_store_dword v251, v250, s[96:99], 0 offen offset:{base+32*kidx+4*(i-1)}")
        a(f"v_mov_b32 v251, s{64+2*(n-1)}"); a(f"buffer_store_dword v251, v250, s[96:99], 0 offen offset:{base+32*kidx+28}")
    a("s_waitcnt vmcnt(0)")
    a.lab(L)

def vr(b, n=1): return f"v{b}" if n == 1 else f"v[{b}:{b+n-1}]"
def sr(b, n=1): return f"s{b}" if n == 1 else f"s[{b}:{b+n-1}]"

def srd(a, d, lo, hi, size):
    a(f"s_mov_b32 s{d}, s{lo}"); a(f"s_and_b32 s{d+1}, s{hi}, 0xffff")
    a(f"s_mov_b32 s{d+2}, {size}"); a(f"s_mov_b32 s{d+3}, 0x20000")

def interleave(a, mf, fill, per=2):
    fi = 0
    for m in mf:
        a(m)
        for _ in range(per):
            if fi < len(fill): a(fill[fi]); fi += 1
    while fi < len(fill): a(fill[fi]); fi += 1

S, D, F = 2048, 512, 1376
NSTEP2 = 59
A2_BYTES = 128 * NSTEP2 * 1024
SLOT = 21504; NSLOT = 7; WOFF = 9216
TAB = SLOT * NSLOT
T_R1, T_MR1, T_RR, T_MRR = TAB, TAB + 576, TAB + 1152, TAB + 1728
T_CS = TAB + 2304
LDS1 = 163840
BIG = -1e30
C_EXP = 0.25 * math.log2(math.e)
G1 = -2.0 * math.sqrt(2.0 / math.pi) * math.log2(math.e)
G2 = G1 * 0.044715

def MF32(d, a_, b_, c_=None):
    c_ = vr(d, 4) if c_ is None else c_
    return f"v_mfma_f32_16x16x32_bf16 {vr(d,4)}, {vr(a_,4)}, {vr(b_,4)}, {c_}"

def bf16r(a, dst, src):
    a(f"v_cvt_pk_bf16_f32 v{dst}, v{src}, v{src}")
    a(f"v_and_b32 v{dst}, 0xffff0000, v{dst}")

def xlane_reduce(a, op, x, t):
    for sw in ("v_permlane16_swap_b32", "v_permlane32_swap_b32"):
        a(f"v_mov_b32 v{t}, v{x}"); a.nop(2)
        a(f"{sw} v{x}, v{t}"); a.nop(2)
        a(f"{op} v{x}, v{x}, v{t}")

def phase1(a, END):
    sX, sW, sWS, sB1 = 8, 12, 16, 20
    sWV, sRB, sJ, sFS, sNF, sR0 = 24, 25, 26, 27, 28, 29
    sSTEP, sSLW, sSLR, sKX, sKW, sKWs, sT0, sT1, sM0X, sM0W, sH16 = 30, 31, 32, 33, 34, 35, 36, 37, 38, 39, 46
    sMASK, sC1, sC2 = 47, 48, 50
    stamp_rt(a, 0); stamp(a, 1)
    a("s_load_dwordx4 s[4:7], s[0:1], 0")
    a("s_load_dwordx4 s[40:43], s[0:1], 32")
    a("s_load_dwordx2 s[44:45], s[0:1], 80")
    a("v_lshrrev_b32 v1, 6, v0"); a("v_and_b32 v0, 63, v0")
    a(f"v_readfirstlane_b32 s{sWV}, v1")
    a("s_and_b32 s36, s2, 7"); a("s_lshr_b32 s37, s2, 3")
    a("s_lshr_b32 s25, s36, 1"); a("s_lshl_b32 s25, s25, 2"); a("s_lshr_b32 s26, s37, 3"); a("s_add_u32 s25, s25, s26")
    a("s_and_b32 s26, s36, 1"); a("s_lshl_b32 s26, s26, 3"); a("s_and_b32 s37, s37, 7"); a("s_add_u32 s26, s26, s37")
    a(f"s_mul_i32 s{sFS}, s{sJ}, 3"); a(f"s_lshl_b32 s36, s{sJ}, 1"); a("s_add_u32 s36, s36, 11")
    a(f"s_cmp_lt_u32 s{sJ}, 11"); a(f"s_cselect_b32 s{sFS}, s{sFS}, s36"); a(f"s_cselect_b32 s{sNF}, 3, 2")
    a(f"s_lshl_b32 s{sR0}, s{sRB}, 7")
    a(f"s_mov_b32 s{sMASK}, 0xffff0000")
    a("s_waitcnt lgkmcnt(0)")
    srd(a, sX, 4, 5, S * D * 2)
    srd(a, sWS, 44, 45, A2_BYTES)
    srd(a, sB1, 42, 43, F * 2)
    a(f"s_cmp_lt_u32 s{sWV}, 3")
    a(f"s_cselect_b32 s{sW}, s6, s40"); a(f"s_cselect_b32 s{sW+1}, s7, s41"); a(f"s_and_b32 s{sW+1}, s{sW+1}, 0xffff")
    a(f"s_cmp_lt_u32 s{sWV}, 3")
    a(f"s_mov_b32 s52, {D*F*2}"); a("s_mov_b32 s53, 2752")
    a(f"s_cselect_b32 s{sW+2}, {D*3*D*2}, s52"); a(f"s_mov_b32 s{sW+3}, 0x20000")
    a(f"s_cselect_b32 s{sT0}, 3072, s53")
    a(f"s_lshl_b32 s{sKWs}, s{sT0}, 5")
    a(f"s_lshl_b32 s{sH16}, s{sT0}, 4")
    vRow, vC, vXo, vWo, vHo, vT = 1, 2, 3, 4, 5, 6
    a(f"v_lshrrev_b32 v{vRow}, 2, v0"); a(f"v_and_b32 v{vC}, 3, v0")
    a(f"v_lshrrev_b32 v{vT}, 3, v{vRow}")
    a(f"v_mul_u32_u24 v7, 3, v{vT}"); a(f"v_xor_b32 v7, v7, v{vC}"); a("v_lshlrev_b32 v7, 4, v7")
    a(f"s_lshl_b32 s{sT1}, s{sWV}, 4"); a(f"s_add_u32 s{sT1}, s{sT1}, s{sR0}")
    a(f"v_add_u32 v{vXo}, s{sT1}, v{vRow}"); a(f"v_lshl_add_u32 v{vXo}, v{vXo}, 10, v7")
    a(f"s_sub_u32 s{sT1}, s{sR0}, 16")
    a(f"v_add_u32 v{vHo}, s{sT1}, v{vRow}"); a(f"v_lshl_add_u32 v{vHo}, v{vHo}, 10, v7")
    a(f"s_cmp_eq_u32 s{sRB}, 0"); a(f"s_cselect_b32 s{sT1}, 0x80000000, 0"); a(f"v_or_b32 v{vHo}, s{sT1}, v{vHo}")
    a(f"v_lshlrev_b32 v{vT}, 1, v{vT}"); a(f"v_xor_b32 v{vT}, v{vT}, v{vC}"); a(f"v_lshlrev_b32 v{vT}, 4, v{vT}")
    a(f"s_lshl_b32 s52, s{sWV}, 10"); a(f"s_lshl_b32 s53, s{sJ}, 6"); a("s_add_u32 s52, s52, s53")
    a(f"s_sub_u32 s53, s{sWV}, 4"); a("s_lshr_b32 s53, s53, 1"); a("s_add_u32 s53, s53, 1")
    a(f"s_cmp_eq_u32 s{sWV}, 3"); a("s_cselect_b32 s53, 0, s53")
    a(f"s_add_u32 s54, s53, s{sFS}"); a("s_lshl_b32 s54, s54, 6")
    a(f"s_cmp_lt_u32 s{sWV}, 3"); a("s_cselect_b32 s52, s52, s54")
    a(f"s_and_b32 s54, s{sWV}, 1"); a(f"s_cmp_ge_u32 s{sWV}, 4"); a("s_cselect_b32 s54, s54, 0"); a("s_lshl_b32 s54, s54, 4")
    a(f"v_add_u32 v{vWo}, s54, v{vRow}"); a(f"v_mul_u32_u24 v{vWo}, s{sT0}, v{vWo}")
    a(f"v_add3_u32 v{vWo}, v{vWo}, v{vT}, s52")
    a(f"s_cmp_ge_u32 s53, s{sNF}"); a("s_cselect_b32 s54, 0x80000000, 0")
    a(f"s_cmp_lt_u32 s{sWV}, 3"); a("s_cselect_b32 s54, 0, s54"); a(f"v_or_b32 v{vWo}, s54, v{vWo}")
    a(f"s_add_u32 s{sM0X}, s{sWV}, 1"); a(f"s_lshl_b32 s{sM0X}, s{sM0X}, 10")
    a(f"s_lshl_b32 s52, s{sWV}, 1"); a(f"s_add_u32 s53, s{sWV}, 4"); a(f"s_cmp_lt_u32 s{sWV}, 4"); a("s_cselect_b32 s52, s52, s53")
    a(f"s_lshl_b32 s{sM0W}, s52, 10"); a(f"s_add_u32 s{sM0W}, s{sM0W}, {WOFF}")
    vI, vG, vAX, vAW0, vAW1 = 8, 9, 10, 11, 12
    a(f"v_and_b32 v{vI}, 15, v0"); a(f"v_lshrrev_b32 v{vG}, 4, v0")
    a(f"v_lshrrev_b32 v{vT}, 3, v{vI}"); a(f"v_mul_u32_u24 v{vT}, 3, v{vT}"); a(f"v_xor_b32 v{vT}, v{vT}, v{vG}")
    a(f"v_lshlrev_b32 v{vT}, 4, v{vT}"); a(f"v_lshl_add_u32 v{vAX}, v{vI}, 6, v{vT}")
    a(f"s_lshr_b32 s52, s{sWV}, 1"); a("s_lshl_b32 s52, s52, 2")
    a(f"s_sub_u32 s53, s{sWV}, 4"); a("s_lshl_b32 s53, s53, 1"); a("s_add_u32 s53, s53, 1")
    a(f"s_cmp_lt_u32 s{sWV}, 4"); a("s_cselect_b32 s52, s52, s53"); a("s_lshl_b32 s52, s52, 10")
    a(f"v_add_u32 v{vAX}, s52, v{vAX}")
    a(f"v_lshrrev_b32 v{vT}, 2, v{vI}"); a(f"v_lshl_add_u32 v{vT}, v{vG}, 3, v{vT}"); a(f"v_lshlrev_b32 v{vT}, 6, v{vT}")
    a(f"v_and_b32 v7, 3, v{vI}"); a(f"v_lshl_add_u32 v{vT}, v7, 3, v{vT}"); a(f"v_add_u32 v{vT}, {WOFF}, v{vT}")
    a(f"v_and_b32 v7, 1, v{vG}"); a("v_lshlrev_b32 v7, 5, v7")
    a(f"v_add_u32 v{vAW0}, v{vT}, v7"); a("v_xor_b32 v7, 32, v7"); a(f"v_add_u32 v{vAW1}, v{vT}, v7")
    a(f"s_and_b32 s52, s{sWV}, 5"); a("s_cmp_eq_u32 s52, 1"); a("s_cselect_b64 vcc, -1, 0")
    a(f"v_cndmask_b32 v{vAW0}, v{vAW0}, v{vAW1}, vcc")
    vB1 = 16
    a(f"s_lshl_b32 s52, s{sFS}, 6"); a(f"v_lshl_add_u32 v{vT}, v{vG}, 3, s52")
    for c in range(6):
        a(f"buffer_load_dwordx2 {vr(vB1+2*c,2)}, v{vT}, {sr(sB1,4)}, 0 offen offset:{c*32}")
    NB1 = 6
    def dma(att):
        a(f"s_add_u32 m0, s{sSLW}, s{sM0X}"); a.nop(1)
        a(f"buffer_load_dwordx4 v{vXo}, {sr(sX,4)}, s{sKX} offen lds")
        a(f"s_add_u32 m0, s{sSLW}, s{sM0W}"); a.nop(1)
        a(f"buffer_load_dwordx4 v{vWo}, {sr(sW,4)}, s{sKW} offen lds")
        if att:
            a(f"s_add_u32 m0, m0, 1024"); a(f"s_add_u32 s{sT0}, s{sKW}, s{sH16}")
            a(f"buffer_load_dwordx4 v{vWo}, {sr(sW,4)}, s{sT0} offen lds")
        else:
            a.uid += 1; L = f"L_h{a.uid}"
            a(f"s_cmp_lg_u32 s{sWV}, 4"); a(f"s_cbranch_scc1 {L}")
            a(f"s_mov_b32 m0, s{sSLW}"); a.nop(1)
            a(f"buffer_load_dwordx4 v{vHo}, {sr(sX,4)}, s{sKX} offen lds")
            a.lab(L)
        a(f"s_add_u32 s{sKX}, s{sKX}, 64"); a(f"s_add_u32 s{sKW}, s{sKW}, s{sKWs}")
        a(f"s_add_u32 s{sSLW}, s{sSLW}, {SLOT}"); a(f"s_cmp_eq_u32 s{sSLW}, {SLOT*NSLOT}"); a(f"s_cselect_b32 s{sSLW}, 0, s{sSLW}")

    a(f"s_mov_b32 s{sSLW}, 0"); a(f"s_mov_b32 s{sSLR}, 0"); a(f"s_mov_b32 s{sKX}, 0"); a(f"s_mov_b32 s{sKW}, 0"); a(f"s_mov_b32 s{sSTEP}, 0")
    a(f"s_cmp_ge_u32 s{sWV}, 4"); a("s_cbranch_scc1 L_mlp")

    vONE = 28
    vCX, vCW0, vCW1 = 13, 14, 15
    def ones():
        for i in range(4): a(f"v_mov_b32 v{vONE+i}, 0x3f803f80")
    def adv_read():
        a(f"s_add_u32 s{sSLR}, s{sSLR}, {SLOT}"); a(f"s_cmp_eq_u32 s{sSLR}, {SLOT*NSLOT}"); a(f"s_cselect_b32 s{sSLR}, 0, s{sSLR}")

    XA = [32, 52]
    WA = [72, 84]
    aQ, aK, aV = 96, 112, 132
    cQ, cK, cV = 152, 156, 160
    st = 164
    def att_reads(buf):
        a(f"v_add_u32 v{vCX}, s{sSLR}, v{vAX}"); a(f"v_add_u32 v{vCW0}, s{sSLR}, v{vAW0}")
        for t in range(5): a(f"ds_read_b128 {vr(XA[buf]+4*t,4)}, v{vCX} offset:{t*1024}")
        for p in range(3):
            a(f"ds_read_b64_tr_b16 {vr(WA[buf]+4*p,2)}, v{vCW0} offset:{p*2048}")
            a(f"ds_read_b64_tr_b16 {vr(WA[buf]+4*p+2,2)}, v{vCW0} offset:{p*2048+256}")
        adv_read()
    def stats_ops(x, acc, tmp):
        o = []
        for d in range(4):
            t = tmp + 2*(d & 1)
            o.append(f"v_lshlrev_b32 v{t}, 16, v{x+d}")
            o.append(f"v_and_b32 v{t+1}, s{sMASK}, v{x+d}")
            o.append(f"v_pk_add_f32 {vr(acc,2)}, {vr(acc,2)}, {vr(t,2)}")
            o.append(f"v_pk_fma_f32 {vr(acc+2,2)}, {vr(t,2)}, {vr(t,2)}, {vr(acc+2,2)}")
        return o
    def top(n, att):
        a("s_waitcnt lgkmcnt(0)")
        a.uid += 1; L1, L2 = f"L_w{a.uid}a", f"L_w{a.uid}b"
        a(f"s_cmp_ge_u32 s{sSTEP}, 10"); a(f"s_cbranch_scc1 {L1}")
        a(f"s_waitcnt vmcnt({5*n})"); a("s_barrier")
        a(f"s_cmp_ge_u32 s{sSTEP}, 9"); a(f"s_cbranch_scc1 {L2}")
        dma(att)
        a(f"s_branch {L2}")
        a.lab(L1); a("s_waitcnt vmcnt(0)"); a("s_barrier"); a.lab(L2)
        a(f"s_add_u32 s{sSTEP}, s{sSTEP}, 1")
    def att_step(buf):
        top(3, True)
        att_reads(buf ^ 1)
        X, W = XA[buf], WA[buf]
        mf = []
        for t in range(5):
            mf.append(MF32(aK+4*t, W+4, X+4*t))
            mf.append(MF32(aV+4*t, X+4*t, W+8))
            if t >= 1: mf.append(MF32(aQ+4*(t-1), W, X+4*t))
        mf.append(MF32(cQ, W, vONE)); mf.append(MF32(cK, W+4, vONE)); mf.append(MF32(cV, vONE, W+8))
        interleave(a, mf, stats_ops(X, st, st+4), per=2)
    ones()
    for r in list(range(aQ, cV+4)) + list(range(st, st+4)): a(f"v_mov_b32 v{r}, 0")
    for i in range(NSLOT): dma(True)
    stamp(a, 2)
    a(f"s_waitcnt vmcnt({3*(NSLOT-1)})"); a("s_barrier")
    stamp(a, 3)
    att_reads(0)
    a.lab("L_att_loop")
    att_step(0); att_step(1)
    a(f"s_cmp_lt_u32 s{sSTEP}, 16"); a("s_cbranch_scc1 L_att_loop")
    a("s_waitcnt lgkmcnt(0)")
    stamp(a, 4)
    a.nop(8)
    def stats_final(acc, tmp, rowbase_sgpr_bytes_or_none, rowoff):
        sm, sq, t0, t1, t2, t3 = acc, acc+2, tmp, tmp+1, tmp+2, tmp+3
        a(f"v_add_f32 v{sm}, v{sm}, v{sm+1}"); a(f"v_add_f32 v{sq}, v{sq}, v{sq+1}")
        xlane_reduce(a, "v_add_f32", sm, t0); xlane_reduce(a, "v_add_f32", sq, t0)
        a(f"v_mul_f32 v{sm}, {hexf(1/512)}, v{sm}")
        a(f"v_mul_f32 v{sq}, {hexf(1/512)}, v{sq}")
        a(f"v_fma_f32 v{sq}, -v{sm}, v{sm}, v{sq}"); a(f"v_max_f32 v{sq}, 0, v{sq}")
        bf16r(a, t0, sm)
        bf16r(a, t1, sq)
        a(f"v_add_f32 v{t1}, {hexf(1e-5)}, v{t1}"); bf16r(a, t1, t1)
        a(f"v_sqrt_f32 v{t1}, v{t1}"); a.nop(1); bf16r(a, t1, t1)
        a(f"v_rcp_f32 v{t1}, v{t1}"); a.nop(1)
        a(f"v_mul_f32 v{t2}, v{sq}, v{t1}"); a(f"v_mul_f32 v{t2}, v{t2}, v{t1}"); bf16r(a, t2, t2)
        a(f"v_add_f32 v{t2}, {hexf(1e-5)}, v{t2}"); bf16r(a, t2, t2)
        a(f"v_sqrt_f32 v{t2}, v{t2}"); a.nop(1); bf16r(a, t2, t2)
        a(f"v_rcp_f32 v{t2}, v{t2}"); a.nop(1)
        a(f"v_mul_f32 v{t2}, v{t2}, v{t1}")
        a(f"v_mul_f32 v{t0}, v{t0}, v{t1}")
        a(f"v_mul_f32 v{t3}, v{sm}, v{t2}")
        a(f"v_lshlrev_b32 v{sq}, 2, v{vI}")
        if rowbase_sgpr_bytes_or_none is not None:
            a(f"v_add_u32 v{sq}, s{rowbase_sgpr_bytes_or_none}, v{sq}")
        ad = TAB + rowoff*4
        a(f"v_add_u32 v{sq}, {ad}, v{sq}")
        a("s_mov_b64 exec, 0xffff")
        a(f"ds_write_b32 v{sq}, v{t1}"); a(f"ds_write_b32 v{sq}, v{t0} offset:576")
        a(f"ds_write_b32 v{sq}, v{t2} offset:1152"); a(f"ds_write_b32 v{sq}, v{t3} offset:1728")
        a("s_mov_b64 exec, -1")
    a(f"s_cmp_lg_u32 s{sWV}, 0"); a("s_cbranch_scc1 L_att_nostat")
    stats_final(st, st+4, None, 0)
    a.lab("L_att_nostat")
    a("s_waitcnt lgkmcnt(0)"); a("s_barrier")
    stamp(a, 5)
    vTA, vTB = 13, 14
    a(f"s_lshr_b32 s52, s{sWV}, 1"); a("s_lshl_b32 s52, s52, 8")
    a(f"v_lshl_add_u32 v{vTA}, v{vI}, 2, s52"); a(f"v_add_u32 v{vTA}, {TAB}, v{vTA}")
    a(f"v_lshl_add_u32 v{vTB}, v{vG}, 4, s52"); a(f"v_add_u32 v{vTB}, {TAB}, v{vTB}")
    RA, MA = 32, 37
    RB_, MB_ = 44, 64
    for t in range(5):
        a(f"ds_read_b32 v{RA+t}, v{vTA} offset:{t*64}"); a(f"ds_read_b32 v{MA+t}, v{vTA} offset:{576+t*64}")
    a("s_waitcnt lgkmcnt(0)")
    for t in range(5):
        a(f"ds_read_b128 {vr(RB_+4*t,4)}, v{vTB} offset:{t*64}"); a(f"ds_read_b128 {vr(MB_+4*t,4)}, v{vTB} offset:{576+t*64}")
    bC, bP, bPF = 172, 176, 180
    Mc0, Mc1, Mp0, Mp1 = 184, 185, 186, 187
    tt = 188
    a(f"v_mov_b32 v{tt+3}, {hexf(BIG)}")
    for r in range(4):
        a(f"v_lshl_add_u32 v{tt}, v{vG}, 2, {r}"); a(f"v_sub_u32 v{tt}, v{vI}, v{tt}")
        a(f"v_and_b32 v{tt+1}, 1, v{tt}")
        a(f"v_cmp_eq_u32 vcc, 0, v{tt+1}"); a(f"v_cmp_le_i32 s[52:53], 0, v{tt}"); a.nop(2)
        a("s_and_b64 s[54:55], vcc, s[52:53]"); a("s_andn2_b64 s[56:57], vcc, s[52:53]")
        a(f"v_cndmask_b32 v{bC+r}, v{tt+3}, 0, s[54:55]")
        a(f"v_cndmask_b32 v{bP+r}, v{tt+3}, 0, s[56:57]")
        hm = "0xffff0000" if (r & 1) else "0xffff"
        a(f"v_mov_b32 v{tt+2}, {hm}")
        mc, mp = (Mc0, Mp0) if r < 2 else (Mc1, Mp1)
        if (r & 1) == 0:
            a(f"v_cndmask_b32 v{mc}, 0, v{tt+2}, s[54:55]"); a(f"v_cndmask_b32 v{mp}, 0, v{tt+2}, s[56:57]")
        else:
            a(f"v_cndmask_b32 v{mc}, v{mc}, v{tt+2}, s[54:55]"); a(f"v_cndmask_b32 v{mp}, v{mp}, v{tt+2}, s[56:57]")
    a(f"s_lshr_b32 s52, s{sWV}, 1"); a(f"s_or_b32 s52, s52, s{sRB}"); a("s_cmp_eq_u32 s52, 0"); a("s_cselect_b64 vcc, -1, 0")
    for r in range(4): a(f"v_cndmask_b32 v{bPF+r}, v{bP+r}, v{tt+3}, vcc")
    a("s_waitcnt lgkmcnt(0)")
    Qb, Kb, Vb = 200, 208, 218
    def conv(acc, dst, r, m, cs, layout_b):
        t = 192
        for h in range(2):
            if not layout_b:
                a(f"v_pk_mul_f32 {vr(t,2)}, {vr(cs+2*h,2)}, {vr(m & ~1,2)} op_sel:[0,{m&1}] op_sel_hi:[1,{m&1}]")
                a(f"v_pk_fma_f32 {vr(t,2)}, {vr(acc+2*h,2)}, {vr(r & ~1,2)}, {vr(t,2)} op_sel:[0,{r&1},0] op_sel_hi:[1,{r&1},1] neg_lo:[0,0,1] neg_hi:[0,0,1]")
            else:
                a(f"v_pk_mul_f32 {vr(t,2)}, {vr(m+2*h,2)}, {vr(cs,2)} op_sel:[0,0] op_sel_hi:[1,0]")
                a(f"v_pk_fma_f32 {vr(t,2)}, {vr(acc+2*h,2)}, {vr(r+2*h,2)}, {vr(t,2)} neg_lo:[0,0,1] neg_hi:[0,0,1]")
            a(f"v_cvt_pk_bf16_f32 v{dst+h}, v{t}, v{t+1}")
    for t in range(5):
        conv(aK+4*t, Kb+2*t, RA+t, MA+t, cK, False)
        conv(aV+4*t, Vb+2*t, RB_+4*t, MB_+4*t, cV, True)
        if t >= 1: conv(aQ+4*(t-1), Qb+2*(t-1), RA+t, MA+t, cQ, False)
    vO = 15
    a(f"s_lshr_b32 s52, s{sWV}, 1"); a("s_lshl_b32 s52, s52, 2"); a(f"s_lshl_b32 s53, s{sRB}, 3"); a("s_add_u32 s52, s52, s53")
    a(f"s_mul_i32 s52, s52, {NSTEP2}"); a(f"s_add_u32 s52, s52, s{sJ}"); a("s_lshl_b32 s52, s52, 10")
    a(f"s_and_b32 s53, s{sWV}, 1"); a("s_lshl_b32 s53, s53, 3"); a("s_add_u32 s52, s52, s53")
    a(f"v_lshlrev_b32 v{vO}, 4, v0")
    a(f"s_mov_b32 s54, {hexf(C_EXP)}")
    Sp, Sc, Pp, Os, Sm = 96, 100, 104, 108, 112
    for u in range(4):
        t = u + 1
        bp = bPF if u == 0 else bP
        a.nop(2)
        a(f"v_mfma_f32_16x16x16_bf16 {vr(Sp,4)}, {vr(Kb+2*(t-1),2)}, {vr(Qb+2*u,2)}, {vr(bp,4)}")
        a(f"v_mfma_f32_16x16x16_bf16 {vr(Sc,4)}, {vr(Kb+2*t,2)}, {vr(Qb+2*u,2)}, {vr(bC,4)}")
        a.nop(8)
        a0, a1, m_, tm = 116, 117, 118, 119
        a(f"v_max3_f32 v{a0}, v{Sp}, v{Sp+1}, v{Sc}"); a(f"v_max3_f32 v{a1}, v{Sp+2}, v{Sp+3}, v{Sc+2}")
        a(f"v_max_f32 v{a0}, v{a0}, v{Sc+1}"); a(f"v_max_f32 v{a1}, v{a1}, v{Sc+3}")
        a(f"v_max_f32 v{m_}, v{a0}, v{a1}")
        xlane_reduce(a, "v_max_f32", m_, tm)
        a(f"v_mul_f32 v{m_}, s54, v{m_}")
        a(f"v_fma_f32 v{a0}, v{a0}, s54, -v{m_}"); a(f"v_fma_f32 v{a1}, v{a1}, s54, -v{m_}")
        a(f"v_exp_f32 v{a0}, v{a0}"); a(f"v_exp_f32 v{a1}, v{a1}"); a.nop(1)
        a(f"v_cvt_pk_bf16_f32 v{a0}, v{a0}, v{a0}"); a(f"v_cvt_pk_bf16_f32 v{a1}, v{a1}, v{a1}")
        a(f"v_and_b32 v{Pp}, v{a0}, v{Mp0}"); a(f"v_and_b32 v{Pp+1}, v{a1}, v{Mp1}")
        a(f"v_and_b32 v{Pp+2}, v{a0}, v{Mc0}"); a(f"v_and_b32 v{Pp+3}, v{a1}, v{Mc1}")
        a.nop(2)
        a(MF32(Sm, vONE, Pp, "0")); a(MF32(Os, Vb+2*(t-1), Pp, "0"))
        a.nop(8)
        a(f"v_rcp_f32 v{Sm}, v{Sm}"); a.nop(1)
        a(f"v_pk_mul_f32 {vr(Os,2)}, {vr(Os,2)}, {vr(Sm,2)} op_sel_hi:[1,0]")
        a(f"v_pk_mul_f32 {vr(Os+2,2)}, {vr(Os+2,2)}, {vr(Sm,2)} op_sel_hi:[1,0]")
        a(f"v_cvt_pk_bf16_f32 v{120+2*(u&1)}, v{Os}, v{Os+1}"); a(f"v_cvt_pk_bf16_f32 v{121+2*(u&1)}, v{Os+2}, v{Os+3}")
        a(f"buffer_store_dwordx2 {vr(120+2*(u&1),2)}, v{vO}, {sr(sWS,4)}, s52 offen")
        a(f"s_add_u32 s52, s52, {NSTEP2*1024}")
    stamp(a, 6)
    a(f"s_branch L_p1_fin")

    a.lab("L_mlp")
    XM = [32, 40]
    FM = [48, 72]
    aH = 96
    cF = 144
    s0_, s1_ = 152, 156
    tmp = 160
    def mlp_reads(buf):
        a(f"v_add_u32 v{vCX}, s{sSLR}, v{vAX}"); a(f"v_add_u32 v{vCW0}, s{sSLR}, v{vAW0}"); a(f"v_add_u32 v{vCW1}, s{sSLR}, v{vAW1}")
        for t in range(2): a(f"ds_read_b128 {vr(XM[buf]+4*t,4)}, v{vCX} offset:{t*1024}")
        for c in range(6):
            ad = vCW0 if (c & 1) == 0 else vCW1
            off = (3 + (c >> 1)) * 2048
            a(f"ds_read_b64_tr_b16 {vr(FM[buf]+4*c,2)}, v{ad} offset:{off}")
            a(f"ds_read_b64_tr_b16 {vr(FM[buf]+4*c+2,2)}, v{ad} offset:{off+256}")
        adv_read()
    def mlp_step(buf):
        top(2, False)
        mlp_reads(buf ^ 1)
        X, Fr = XM[buf], FM[buf]
        mf = []
        for c in range(6):
            for t in range(2): mf.append(MF32(aH+(c*2+t)*4, Fr+4*c, X+4*t))
        interleave(a, mf, stats_ops(X, s0_, tmp) + stats_ops(X+4, s1_, tmp+4), per=2)
        a.uid += 1; u = a.uid
        for m in range(4):
            if m < 3:
                a(f"s_cmp_lg_u32 s{sWV}, {4+m}"); a(f"s_cbranch_scc1 L_cs{u}_{m+1}")
            a(MF32(cF, Fr+4*m, vONE))
            if m < 2: a(MF32(cF+4, Fr+4*(m+4), vONE))
            if m < 3: a(f"s_branch L_cs{u}_e")
            if m < 3: a.lab(f"L_cs{u}_{m+1}")
        a.lab(f"L_cs{u}_e")
    ones()
    for r in list(range(aH, tmp)): a(f"v_mov_b32 v{r}, 0")
    for i in range(NSLOT): dma(False)
    stamp(a, 2)
    a(f"s_waitcnt vmcnt({2*(NSLOT-1)})"); a("s_barrier")
    stamp(a, 3)
    mlp_reads(0)
    a.lab("L_mlp_loop")
    mlp_step(0); mlp_step(1)
    a(f"s_cmp_lt_u32 s{sSTEP}, 16"); a("s_cbranch_scc1 L_mlp_loop")
    a("s_waitcnt lgkmcnt(0)")
    stamp(a, 4)
    a.nop(8)
    a(f"s_sub_u32 s52, s{sWV}, 4"); a("s_lshl_b32 s52, s52, 7")
    stats_final(s0_, tmp, 52, 16)
    stats_final(s1_, tmp, 52, 32)
    a(f"v_lshlrev_b32 v{tmp}, 4, v{vG}"); a(f"s_sub_u32 s52, s{sWV}, 4"); a("s_lshl_b32 s52, s52, 6")
    a(f"v_add_u32 v{tmp}, s52, v{tmp}"); a(f"v_add_u32 v{tmp}, {T_CS}, v{tmp}")
    a("s_mov_b32 exec_lo, 0x00010001"); a("s_mov_b32 exec_hi, 0x00010001")
    a(f"ds_write_b128 v{tmp}, {vr(cF,4)}")
    a(f"s_cmp_ge_u32 s{sWV}, 6"); a("s_cbranch_scc1 L_cs_w2")
    a(f"ds_write_b128 v{tmp}, {vr(cF+4,4)} offset:256")
    a.lab("L_cs_w2")
    a("s_mov_b64 exec, -1")
    a("s_waitcnt lgkmcnt(0)"); a("s_barrier")
    stamp(a, 5)
    vTA = 13
    a(f"s_sub_u32 s52, s{sWV}, 4"); a("s_lshl_b32 s52, s52, 7")
    a(f"v_lshl_add_u32 v{vTA}, v{vI}, 2, s52"); a(f"v_add_u32 v{vTA}, {TAB + 16*4}, v{vTA}")
    Rr, Mm = 32, 34
    for t in range(2):
        a(f"ds_read_b32 v{Rr+t}, v{vTA} offset:{1152+t*64}"); a(f"ds_read_b32 v{Mm+t}, v{vTA} offset:{1728+t*64}")
    CS = 40
    a(f"v_lshlrev_b32 v14, 4, v{vG}"); a(f"v_add_u32 v14, {T_CS}, v14")
    for c in range(6): a(f"ds_read_b128 {vr(CS+4*c,4)}, v14 offset:{c*64}")
    B1 = 64
    a("s_waitcnt vmcnt(0)")
    for c in range(6):
        for h in range(2):
            a(f"v_lshlrev_b32 v{B1+4*c+2*h}, 16, v{vB1+2*c+h}"); a(f"v_and_b32 v{B1+4*c+2*h+1}, s{sMASK}, v{vB1+2*c+h}")
    a(f"s_mov_b32 s{sC1}, {hexf(G1)}"); a(f"s_mov_b32 s{sC1+1}, {hexf(G1)}")
    a(f"s_mov_b32 s{sC2}, {hexf(G2)}"); a(f"s_mov_b32 s{sC2+1}, {hexf(G2)}")
    a(f"v_mov_b32 v88, s{sC1}"); a(f"v_mov_b32 v89, s{sC1}")
    a("s_waitcnt lgkmcnt(0)")
    vO = 15
    a(f"v_lshlrev_b32 v{vO}, 4, v0")
    a(f"s_sub_u32 s52, s{sWV}, 4"); a("s_lshl_b32 s52, s52, 1"); a(f"s_lshl_b32 s53, s{sRB}, 3"); a("s_add_u32 s52, s52, s53")
    a(f"s_mul_i32 s52, s52, {NSTEP2}"); a(f"s_add_u32 s52, s52, s{sFS}"); a("s_add_u32 s52, s52, 16"); a("s_lshl_b32 s52, s52, 10")
    for q in range(3):
        if q == 2:
            a(f"s_cmp_lt_u32 s{sNF}, 3"); a(f"s_cbranch_scc1 L_mlp_fin")
        for t in range(2):
            o = 168 + 4*(t & 1)
            for cl in range(2):
                c = 2*q + cl
                acc = aH + (c*2+t)*4
                for h in range(2):
                    u, w_, z = 176, 178, 180
                    r, m = Rr+t, Mm+t
                    a(f"v_pk_fma_f32 {vr(u,2)}, {vr(CS+4*c+2*h,2)}, {vr(m&~1,2)}, {vr(B1+4*c+2*h,2)} op_sel:[0,{m&1},0] op_sel_hi:[1,{m&1},1] neg_lo:[0,1,0] neg_hi:[0,1,0]")
                    a(f"v_pk_fma_f32 {vr(u,2)}, {vr(acc+2*h,2)}, {vr(r&~1,2)}, {vr(u,2)} op_sel:[0,{r&1},0] op_sel_hi:[1,{r&1},1]")
                    a(f"v_pk_mul_f32 {vr(w_,2)}, {vr(u,2)}, {vr(u,2)}")
                    a(f"v_pk_fma_f32 {vr(w_,2)}, {vr(w_,2)}, {sr(sC2,2)}, {vr(88,2)}")
                    a(f"v_pk_mul_f32 {vr(w_,2)}, {vr(w_,2)}, {vr(u,2)}")
                    a(f"v_exp_f32 v{w_}, v{w_}"); a(f"v_exp_f32 v{w_+1}, v{w_+1}"); a.nop(1)
                    a(f"v_pk_add_f32 {vr(w_,2)}, {vr(w_,2)}, 1.0 op_sel_hi:[1,0]")
                    a(f"v_rcp_f32 v{w_}, v{w_}"); a(f"v_rcp_f32 v{w_+1}, v{w_+1}"); a.nop(1)
                    a(f"v_pk_mul_f32 {vr(w_,2)}, {vr(w_,2)}, {vr(u,2)}")
                    a(f"v_cvt_pk_bf16_f32 v{o+2*cl+h}, v{w_}, v{w_+1}")
            a(f"s_add_u32 s53, s52, {(t*NSTEP2+q)*1024}")
            a(f"buffer_store_dwordx4 {vr(o,4)}, v{vO}, {sr(sWS,4)}, s53 offen")
    a.lab("L_mlp_fin")
    stamp(a, 6)
    a.lab("L_p1_fin")
    stamp_out(a, 0, 44, sWV, 9)

def phase2(a, END):
    sA2, sWO, sW2, sXs, sOUT, sB2 = 8, 12, 16, 20, 24, 28
    sWV, sRG, sCG = 32, 33, 34
    stamp_rt(a, 0); stamp(a, 1)
    a("s_load_dwordx2 s[4:5], s[0:1], 0")
    a("s_load_dwordx2 s[6:7], s[0:1], 16")
    a("s_load_dwordx4 s[40:43], s[0:1], 48")
    a("s_load_dwordx2 s[44:45], s[0:1], 64")
    a("s_load_dwordx2 s[46:47], s[0:1], 80")
    a("v_mov_b32 v2, v0")
    a("v_lshrrev_b32 v1, 6, v0"); a("v_and_b32 v0, 63, v0")
    a(f"v_readfirstlane_b32 s{sWV}, v1")
    a("s_and_b32 s36, s2, 7"); a("s_lshr_b32 s37, s2, 3")
    a(f"s_lshl_b32 s{sRG}, s36, 2"); a("s_lshr_b32 s38, s37, 3"); a(f"s_add_u32 s{sRG}, s{sRG}, s38"); a(f"s_and_b32 s{sCG}, s37, 7")
    a("s_waitcnt lgkmcnt(0)")
    srd(a, sA2, 46, 47, A2_BYTES); srd(a, sWO, 6, 7, D*D*2); srd(a, sW2, 40, 41, F*D*2)
    srd(a, sXs, 4, 5, S*D*2); srd(a, sOUT, 44, 45, S*D*2); srd(a, sB2, 42, 43, D*2)
    vXO, vXD, vB2 = 3, 4, 8
    a("v_lshrrev_b32 v12, 3, v2"); a("v_and_b32 v13, 7, v2")
    a(f"s_lshl_b32 s36, s{sRG}, 6"); a("v_add_u32 v14, s36, v12"); a("v_lshlrev_b32 v14, 10, v14")
    a(f"s_lshl_b32 s37, s{sCG}, 7"); a("v_lshlrev_b32 v15, 4, v13"); a("v_add_u32 v15, s37, v15")
    a(f"v_add_u32 v{vXO}, v14, v15")
    a(f"buffer_load_dwordx4 {vr(vXD,4)}, v{vXO}, {sr(sXs,4)}, 0 offen")
    a(f"buffer_load_dwordx4 {vr(vB2,4)}, v15, {sr(sB2,4)}, 0 offen")
    vWo, vAo = 16, 17
    a("v_lshrrev_b32 v18, 4, v0"); a("v_lshlrev_b32 v18, 1, v18"); a("v_and_b32 v19, 7, v0"); a("v_xor_b32 v18, v18, v19")
    a("v_lshlrev_b32 v18, 4, v18"); a("v_lshrrev_b32 v19, 3, v0"); a("v_lshl_add_u32 v18, v19, 10, v18"); a(f"v_add_u32 v{vWo}, s37, v18")
    a(f"v_lshlrev_b32 v{vAo}, 4, v0")
    vI, vG = 18, 19
    RING = 5; WSL = 4096
    a(f"v_and_b32 v{vI}, 15, v0"); a(f"v_lshrrev_b32 v{vG}, 4, v0")
    a(f"v_lshrrev_b32 v20, 2, v{vI}"); a(f"v_lshl_add_u32 v20, v{vG}, 2, v20")
    a("v_lshrrev_b32 v21, 1, v20"); a("v_and_b32 v21, 3, v21"); a("v_lshlrev_b32 v21, 5, v21")
    a("v_lshlrev_b32 v20, 7, v20"); a(f"v_and_b32 v22, 3, v{vI}"); a("v_lshl_add_u32 v20, v22, 3, v20")
    a(f"s_mul_i32 s38, s{sWV}, {RING*WSL}"); a("v_add_u32 v20, s38, v20")
    vRA = 24
    for cb in range(4):
        a(f"v_xor_b32 v22, {cb*32}, v21"); a(f"v_add_u32 v{vRA+cb}, v20, v22")
    acc = 128
    for r in range(acc, acc+64): a(f"v_mov_b32 v{r}, 0")
    AB = [32, 48, 64, 80, 96, 112, 192, 208]
    WF = 224
    a(f"s_lshl_b32 s39, s{sRG}, 2"); a(f"s_mul_i32 s39, s39, {NSTEP2}"); a(f"s_add_u32 s39, s39, s{sWV}"); a("s_lshl_b32 s39, s39, 10")
    def wdma(i):
        base = sWO if i < 2 else sW2
        trel = 8*i if i < 2 else 8*i - 16
        a(f"s_add_u32 s48, s{sWV}, {trel}"); a("s_lshl_b32 s48, s48, 15")
        for q in range(4):
            a(f"s_add_u32 m0, s38, {(i % RING)*WSL + q*1024}")
            a(f"s_add_u32 s49, s48, {q*8192}")
            a(f"buffer_load_dwordx4 v{vWo}, {sr(base,4)}, s49 offen lds")
    def aload(i):
        for b in range(4):
            a(f"s_add_u32 s49, s39, {(b*NSTEP2 + 8*i)*1024}")
            a(f"buffer_load_dwordx4 {vr(AB[i]+4*b,4)}, v{vAo}, {sr(sA2,4)}, s49 offen")
    for i in range(RING):
        aload(i); wdma(i)
    for i in range(RING, 7): aload(i)
    def comp(i, nwait):
        a(f"s_waitcnt vmcnt({nwait})")
        for cb in range(4):
            off = (i % RING)*WSL
            a(f"ds_read_b64_tr_b16 {vr(WF+4*cb,2)}, v{vRA+cb} offset:{off}")
            a(f"ds_read_b64_tr_b16 {vr(WF+4*cb+2,2)}, v{vRA+cb} offset:{off+2048}")
        a("s_waitcnt lgkmcnt(0)")
    def mm(i):
        for cb in range(4):
            for b in range(4): a(MF32(acc+(cb*4+b)*4, WF+4*cb, AB[i]+4*b))
    stamp(a, 2)
    comp(0, 40); stamp(a, 3); wdma(5); mm(0)
    comp(1, 36); wdma(6); mm(1)
    comp(2, 32)
    a(f"s_cmp_ge_u32 s{sWV}, 3"); a("s_cbranch_scc1 L_p2_skip7")
    aload(7); wdma(7)
    a.lab("L_p2_skip7")
    mm(2)
    comp(3, 24); mm(3)
    comp(4, 16); mm(4)
    comp(5, 4); mm(5)
    comp(6, 0); mm(6)
    a(f"s_cmp_ge_u32 s{sWV}, 3"); a("s_cbranch_scc1 L_p2_done")
    comp(7, 0); mm(7)
    a.lab("L_p2_done")
    stamp(a, 4)
    a.nop(8)
    a("s_barrier")
    a(f"s_mul_i32 s38, s{sWV}, 17408"); a(f"v_mul_u32_u24 v20, 272, v{vI}"); a(f"v_lshl_add_u32 v20, v{vG}, 4, v20"); a("v_add_u32 v20, s38, v20")
    for cb in range(4):
        for b in range(4):
            a(f"ds_write_b128 v20, {vr(acc+(cb*4+b)*4,4)} offset:{b*16*272 + cb*64}")
    a("s_waitcnt lgkmcnt(0)"); a("s_barrier")
    stamp(a, 5)
    a("v_mul_u32_u24 v20, 272, v12"); a("v_lshl_add_u32 v20, v13, 5, v20")
    P = 32
    for w in range(8):
        if w == 4: a("v_add_u32 v20, %d, v20" % (4*17408))
        o = (w % 4)*17408
        a(f"ds_read_b128 {vr(P+8*w,4)}, v20 offset:{o}"); a(f"ds_read_b128 {vr(P+8*w+4,4)}, v20 offset:{o+16}")
        if w == 3 or w == 7: pass
    a("s_mov_b32 s36, 0xffff0000")
    R = 100
    for d in range(4):
        a(f"v_lshlrev_b32 v{R+2*d}, 16, v{vXD+d}"); a(f"v_and_b32 v{R+2*d+1}, s36, v{vXD+d}")
        a(f"v_lshlrev_b32 v110, 16, v{vB2+d}"); a(f"v_and_b32 v111, s36, v{vB2+d}")
        a(f"v_pk_add_f32 {vr(R+2*d,2)}, {vr(R+2*d,2)}, {vr(110,2)}")
    a("s_waitcnt lgkmcnt(0)")
    for w in range(8):
        for d in range(4):
            a(f"v_pk_add_f32 {vr(R+2*d,2)}, {vr(R+2*d,2)}, {vr(P+8*w+2*d,2)}")
    for d in range(4): a(f"v_cvt_pk_bf16_f32 v{112+d}, v{R+2*d}, v{R+2*d+1}")
    a(f"buffer_store_dwordx4 {vr(112,4)}, v{vXO}, {sr(sOUT,4)}, 0 offen")
    stamp(a, 6)
    stamp_out(a, 1, 46, sWV, 9)

def kernel_desc(name, nv=256):
    return f""".amdhsa_kernel {name}
  .amdhsa_next_free_vgpr {nv}
  .amdhsa_next_free_sgpr 102
  .amdhsa_accum_offset {nv}
  .amdhsa_group_segment_fixed_size 0
  .amdhsa_kernarg_size 88
  .amdhsa_user_sgpr_count 2
  .amdhsa_user_sgpr_kernarg_segment_ptr 1
  .amdhsa_system_sgpr_workgroup_id_x 1
.end_amdhsa_kernel
"""

HEADER = """; Kernarg layout (88 bytes): A_x@0 A_wqkv@8 A_wo@16 B_x@24 B_w1@32 B_b1@40 B_w2@48 B_b2@56 out@64 debug@72 ws@80
"""

def build(extra_empty=0):
    a = A()
    a(HEADER.rstrip())
    a("; @launch kernel=p1_kernel grid=(256,1,1) block=(512,1,1) lds=163840")
    a("; @launch kernel=p2_kernel grid=(256,1,1) block=(512,1,1) lds=163840")
    for i in range(extra_empty):
        a("; @launch kernel=p3_kernel grid=(256,1,1) block=(512,1,1) lds=0")
    a('.amdgcn_target "amdgcn-amd-amdhsa--gfx950"')
    a(".text")
    for nm, fn in (("p1_kernel", phase1), ("p2_kernel", phase2)):
        a(f".globl {nm}"); a(".p2align 8"); a(f".type {nm},@function"); a.lab(nm)
        end = f"L_end_{nm}"
        a("s_cmp_ge_u32 s2, 256"); a(f"s_cbranch_scc1 {end}")
        fn(a, end)
        a.lab(end); a("s_endpgm")
    if extra_empty:
        a(".globl p3_kernel"); a(".p2align 8"); a(".type p3_kernel,@function"); a.lab("p3_kernel"); a("s_endpgm")
    a('.section .rodata,"a"')
    t = a.text()
    ks = ["p1_kernel", "p2_kernel"] + (["p3_kernel"] if extra_empty else [])
    for k in ks: t += ".p2align 6\n" + kernel_desc(k)
    return t

if __name__ == "__main__":
    out = sys.argv[1] if len(sys.argv) > 1 else "v1.s"
    ee = int(sys.argv[2]) if len(sys.argv) > 2 else 0
    PROF = len(sys.argv) > 3 and sys.argv[3] == "p"
    open(out, "w").write(build(ee))
```

```python
import sys, math, struct
NAME = "parallel_sum__sliding_local_dilated__mixer_channel_mlp__prompt"
KN = NAME + "_kernel"
def f2u(x): return struct.unpack("<I", struct.pack("<f", x))[0]
def hexf(x): return "0x%08x" % f2u(x)

class A:
    def __init__(s): s.l = []; s.uid = 0
    def __call__(s, t): s.l.append(t)
    def lab(s, n): s.l.append(n + ":")
    def nop(s, n):
        while n > 0:
            k = min(n, 16); s.l.append(f"s_nop {k-1}"); n -= k
    def u(s): s.uid += 1; return s.uid
    def text(s): return "\n".join(s.l) + "\n"

PROF = False
NST = 14
def stamp(a, i):
    if PROF: a(f"s_memtime s[{64+2*i}:{65+2*i}]"); a("s_waitcnt lgkmcnt(0)")
def stamp_rt(a, i):
    if PROF: a(f"s_memrealtime s[{64+2*i}:{65+2*i}]"); a("s_waitcnt lgkmcnt(0)")

def vr(b, n=1): return f"v{b}" if n == 1 else f"v[{b}:{b+n-1}]"
def sr(b, n=1): return f"s{b}" if n == 1 else f"s[{b}:{b+n-1}]"
def srd(a, d, lo, size):
    a(f"s_mov_b32 s{d}, s{lo}"); a(f"s_and_b32 s{d+1}, s{lo+1}, 0xffff")
    a(f"s_mov_b32 s{d+2}, {size}"); a(f"s_mov_b32 s{d+3}, 0x20000")

S, D, F = 2048, 512, 1376
NSTEP2 = 59
A2_BYTES = 128 * NSTEP2 * 1024
STATS_OFF = 0x800000
WS_BYTES = STATS_OFF + S * 16
SLOT = 21504; NSLOT = 6; WOFF = 9216
TAB = 131072
T_CS = TAB + 2304
DUMMY = TAB + 3072 + 1024
LDS = 163840
BIG = -1e30
C_EXP = 0.25 * math.log2(math.e)
G1 = -2.0 * math.sqrt(2.0 / math.pi) * math.log2(math.e)
G2 = G1 * 0.044715
SPIN_MAX = 1 << 16

pX, pWQKV, pWO, pW1, pB1, pW2, pB2, pOUT, pDBG, pWS = 4, 6, 8, 12, 14, 16, 18, 20, 22, 24
sWV, sRB, sJ, sFS, sNF, sR0, sRG, sCG, sH = 26, 27, 28, 29, 30, 31, 32, 33, 34
sMASK = 35
sA, sB, sC, sDD = 36, 40, 44, 48
sT = 52

def MF32(d, a_, b_, c_=None):
    c_ = vr(d, 4) if c_ is None else c_
    return f"v_mfma_f32_16x16x32_bf16 {vr(d,4)}, {vr(a_,4)}, {vr(b_,4)}, {c_}"
def bf16r(a, dst, src):
    a(f"v_cvt_pk_bf16_f32 v{dst}, v{src}, v{src}"); a(f"v_and_b32 v{dst}, s{sMASK}, v{dst}")
def xlane(a, op, xs, ts):
    for sw in ("v_permlane16_swap_b32", "v_permlane32_swap_b32"):
        for x, t in zip(xs, ts): a(f"v_mov_b32 v{t}, v{x}")
        a.nop(max(0, 2 - (len(xs) - 1)))
        for x, t in zip(xs, ts): a(f"{sw} v{x}, v{t}")
        a.nop(max(0, 2 - (len(xs) - 1)))
        for x, t in zip(xs, ts): a(f"{op} v{x}, v{x}, v{t}")
def interleave(a, mf, fill, per=1):
    fi = 0
    for m in mf:
        a(m)
        for _ in range(per):
            if fi < len(fill): a(fill[fi]); fi += 1
    while fi < len(fill): a(fill[fi]); fi += 1

def poll(a, vOff, vMask, vD, nl, srdreg, name):
    full = (1 << nl) - 1
    a(f"s_mov_b64 exec, {full}")
    a(f"s_mov_b32 s{sT}, {SPIN_MAX}")
    a.lab(f"L_poll_{name}")
    a(f"buffer_load_dword v{vD}, v{vOff}, {sr(srdreg,4)}, 0 offen sc1")
    a("s_waitcnt vmcnt(0)")
    a(f"v_and_b32 v{vD}, v{vD}, v{vMask}")
    a(f"v_cmp_eq_u32 vcc, v{vD}, v{vMask}")
    a.nop(2)
    a(f"s_cmp_eq_u32 vcc_lo, {full}")
    a(f"s_cbranch_scc1 L_polld_{name}")
    a("s_sleep 1")
    a(f"s_sub_u32 s{sT}, s{sT}, 1"); a(f"s_cmp_lg_u32 s{sT}, 0")
    a(f"s_cbranch_scc1 L_poll_{name}")
    a.lab(f"L_polld_{name}")
    a("s_mov_b64 exec, -1")

def flag_store(a, val, srdreg, vT):
    a(f"s_lshl_b32 s{sT}, s{sRB}, 4"); a(f"s_add_u32 s{sT}, s{sT}, s{sJ}")
    a(f"v_mov_b32 v{vT}, s{sT}"); a(f"v_mov_b32 v{vT+1}, {val}")
    a("s_mov_b64 exec, 1")
    a(f"buffer_store_byte v{vT+1}, v{vT}, {sr(srdreg,4)}, 0 offen sc1")
    a("s_mov_b64 exec, -1")

def prologue(a, END):
    a("s_cmp_ge_u32 s2, 256"); a(f"s_cbranch_scc1 {END}")
    stamp_rt(a, 0); stamp(a, 1)
    a("s_load_dwordx16 s[4:19], s[0:1], 0")
    a("s_load_dwordx4 s[20:23], s[0:1], 64")
    a("s_load_dwordx2 s[24:25], s[0:1], 80")
    a("s_getpc_b64 s[60:61]")
    a.lab("L_pc")
    a("v_lshrrev_b32 v1, 6, v0"); a("v_and_b32 v0, 63, v0")
    a(f"v_readfirstlane_b32 s{sWV}, v1")
    a("s_and_b32 s52, s2, 7"); a("s_lshr_b32 s53, s2, 3")
    a(f"s_lshr_b32 s{sRB}, s52, 1"); a(f"s_lshl_b32 s{sRB}, s{sRB}, 2"); a("s_lshr_b32 s54, s53, 3"); a(f"s_add_u32 s{sRB}, s{sRB}, s54")
    a(f"s_and_b32 s{sJ}, s52, 1"); a(f"s_lshl_b32 s{sJ}, s{sJ}, 3"); a("s_and_b32 s54, s53, 7"); a(f"s_add_u32 s{sJ}, s{sJ}, s54")
    a(f"s_lshl_b32 s{sRG}, s52, 2"); a("s_lshr_b32 s54, s53, 3"); a(f"s_add_u32 s{sRG}, s{sRG}, s54"); a(f"s_and_b32 s{sCG}, s53, 7")
    a(f"s_mul_i32 s{sFS}, s{sJ}, 3"); a(f"s_lshl_b32 s54, s{sJ}, 1"); a("s_add_u32 s54, s54, 11")
    a(f"s_cmp_lt_u32 s{sJ}, 11"); a(f"s_cselect_b32 s{sFS}, s{sFS}, s54"); a(f"s_cselect_b32 s{sNF}, 3, 2")
    a(f"s_lshl_b32 s{sR0}, s{sRB}, 7")
    a(f"s_mov_b32 s{sMASK}, 0xffff0000")
    a(f"s_and_b32 s{sH}, s{sWV}, 3")
    a(f"s_cmp_lg_u32 s{sWV}, 3"); a("s_cbranch_scc1 L_nopf")
    a("s_lshl_b32 s53, s53, 10"); a("v_lshlrev_b32 v2, 4, v0"); a("v_add_u32 v2, s53, v2")
    a(f"v_min_u32 v2, CODE_LIMIT, v2")
    a("global_load_dwordx4 v[4:7], v2, s[60:61]")
    a.lab("L_nopf")
    a(f"s_cmp_ge_u32 s{sWV}, 4"); a("s_cbranch_scc1 L_helper")

XA = [32, 52]
WA = [72, 100]
aQ, aK, aV = 128, 144, 164
aF = 184
cS = 232
vONE = 244
vI, vG, vAX, vAW0, vAW1, vCX, vC0, vC1 = 8, 9, 10, 11, 12, 13, 14, 15
vB1 = 16

def compute(a):
    sSLR, sRND = 56, 57
    sWS_, sB1_ = sA, sB
    a("s_waitcnt lgkmcnt(0)")
    srd(a, sWS_, pWS, A2_BYTES)
    srd(a, sB1_, pB1, F * 2)
    a(f"v_and_b32 v{vI}, 15, v0"); a(f"v_lshrrev_b32 v{vG}, 4, v0")
    a(f"s_and_b32 s52, s{sWV}, 1"); a(f"s_add_u32 s52, s52, s{sFS}"); a("s_lshl_b32 s52, s52, 6")
    a(f"s_add_u32 s53, s{sFS}, 2"); a("s_lshl_b32 s53, s53, 6")
    a(f"v_lshlrev_b32 v2, 3, v{vG}")
    a(f"buffer_load_dwordx2 {vr(vB1,2)}, v2, {sr(sB1_,4)}, s52 offen")
    a(f"buffer_load_dwordx2 {vr(vB1+2,2)}, v2, {sr(sB1_,4)}, s52 offen offset:32")
    a(f"buffer_load_dwordx2 {vr(vB1+4,2)}, v2, {sr(sB1_,4)}, s53 offen")
    a(f"buffer_load_dwordx2 {vr(vB1+6,2)}, v2, {sr(sB1_,4)}, s53 offen offset:32")
    a(f"v_lshrrev_b32 v2, 3, v{vI}"); a("v_mul_u32_u24 v2, 3, v2"); a(f"v_xor_b32 v2, v2, v{vG}")
    a("v_lshlrev_b32 v2, 4, v2"); a(f"v_lshl_add_u32 v{vAX}, v{vI}, 6, v2")
    a(f"s_lshr_b32 s52, s{sWV}, 1"); a("s_lshl_b32 s52, s52, 12")
    a(f"v_add_u32 v{vAX}, s52, v{vAX}")
    a(f"v_lshrrev_b32 v2, 2, v{vI}"); a(f"v_lshl_add_u32 v2, v{vG}, 3, v2"); a("v_lshlrev_b32 v2, 6, v2")
    a(f"v_and_b32 v3, 3, v{vI}"); a("v_lshl_add_u32 v2, v3, 3, v2"); a(f"v_add_u32 v2, {WOFF}, v2")
    a(f"v_and_b32 v3, 1, v{vG}"); a("v_lshlrev_b32 v3, 5, v3")
    a(f"v_add_u32 v{vAW0}, v2, v3"); a("v_xor_b32 v3, 32, v3"); a(f"v_add_u32 v{vAW1}, v2, v3")
    for i in range(4): a(f"v_mov_b32 v{vONE+i}, 0x3f803f80")
    for r in range(aQ, cS + 12): a(f"v_mov_b32 v{r}, 0")
    a(f"s_mov_b32 s{sSLR}, 0"); a(f"s_mov_b32 s{sRND}, 0")
    for w in range(1, 4):
        a(f"s_cmp_eq_u32 s{sWV}, {w}"); a(f"s_cbranch_scc1 L_cv{w}")
    for w in range(4):
        hh, rh = w & 1, w >> 1
        a.lab(f"L_cv{w}")
        def reads(buf):
            o = [f"v_add_u32 v{vCX}, s{sSLR}, v{vAX}", f"v_add_u32 v{vC0}, s{sSLR}, v{vAW0}", f"v_add_u32 v{vC1}, s{sSLR}, v{vAW1}"]
            for t in range(5): o.append(f"ds_read_b128 {vr(XA[buf]+4*t,4)}, v{vCX} offset:{t*1024}")
            ah = vC1 if hh else vC0
            lst = [(0, ah), (1, ah), (2, ah), (3 + hh, vC0), (3 + hh, vC1), (5, vC0), (5, vC1)]
            for k, (p, ad) in enumerate(lst):
                o.append(f"ds_read_b64_tr_b16 {vr(WA[buf]+4*k,2)}, v{ad} offset:{p*2048}")
                o.append(f"ds_read_b64_tr_b16 {vr(WA[buf]+4*k+2,2)}, v{ad} offset:{p*2048+256}")
            o += [f"s_add_u32 s{sSLR}, s{sSLR}, {SLOT}", f"s_cmp_eq_u32 s{sSLR}, {SLOT*NSLOT}", f"s_cselect_b32 s{sSLR}, 0, s{sSLR}"]
            return o
        def mfmas(buf):
            X, W = XA[buf], WA[buf]
            mf = []
            for t in range(5):
                mf.append(MF32(aK+4*t, W+4, X+4*t)); mf.append(MF32(aV+4*t, X+4*t, W+8))
                if t >= 1:
                    mf.append(MF32(aQ+4*(t-1), W, X+4*t))
                    mf.append(MF32(aF+8*(t-1), W+12, X+4*t)); mf.append(MF32(aF+8*(t-1)+4, W+16, X+4*t))
            for e in range(2):
                t = 1 + 2*hh + e
                mf.append(MF32(aF+8*(4+e), W+20, X+4*t)); mf.append(MF32(aF+8*(4+e)+4, W+24, X+4*t))
            if rh == 0:
                mf += [MF32(cS, W, vONE), MF32(cS+4, W+4, vONE), MF32(cS+8, W+12, vONE)]
            else:
                mf += [MF32(cS, vONE, W+8), MF32(cS+4, W+16, vONE), MF32(cS+8, W+20+4*hh, vONE)]
            return mf
        a("s_barrier")
        if w == 0: stamp(a, 2)
        for o in reads(0): a(o)
        a("s_waitcnt lgkmcnt(0)")
        a.lab(f"L_cloop{w}")
        interleave(a, mfmas(0), reads(1))
        a("s_waitcnt lgkmcnt(0)"); a("s_barrier")
        interleave(a, mfmas(1), reads(0))
        a(f"s_add_u32 s{sRND}, s{sRND}, 1"); a(f"s_cmp_lt_u32 s{sRND}, 8")
        a("s_waitcnt lgkmcnt(0)")
        a(f"s_cbranch_scc1 L_cloop{w}")
        stamp(a, 3)
        a("s_waitcnt vmcnt(0)")
        a.nop(8)
        a(f"v_lshlrev_b32 v2, 4, v{vG}"); a(f"v_add_u32 v2, {T_CS}, v2")
        a("s_mov_b32 exec_lo, 0x00010001"); a("s_mov_b32 exec_hi, 0x00010001")
        if rh == 0:
            a(f"ds_write_b128 v2, {vr(cS,4)} offset:{hh*64}"); a(f"ds_write_b128 v2, {vr(cS+4,4)} offset:{(2+hh)*64}")
            a(f"ds_write_b128 v2, {vr(cS+8,4)} offset:{(6+2*hh)*64}")
            a("s_mov_b64 exec, -1")
        else:
            a(f"ds_write_b128 v2, {vr(cS+4,4)} offset:{(7+2*hh)*64}"); a(f"ds_write_b128 v2, {vr(cS+8,4)} offset:{(10+hh)*64}")
            a("s_mov_b64 exec, 0xffff")
            a(f"v_lshlrev_b32 v2, 2, v{vI}"); a(f"v_add_u32 v2, {T_CS}, v2")
            a(f"ds_write_b32 v2, v{cS} offset:{(4+hh)*64}")
            a("s_mov_b64 exec, -1")
        if w < 3: a("s_branch L_cepi")
    a.lab("L_cepi")
    a("s_waitcnt lgkmcnt(0)"); a("s_barrier")
    stamp(a, 4)
    vTA, vTB = 13, 14
    a(f"s_lshr_b32 s52, s{sWV}, 1"); a("s_lshl_b32 s52, s52, 8")
    a(f"v_lshl_add_u32 v{vTA}, v{vI}, 2, s52"); a(f"v_add_u32 v{vTA}, {TAB}, v{vTA}")
    a(f"v_lshl_add_u32 v{vTB}, v{vG}, 4, s52"); a(f"v_add_u32 v{vTB}, {TAB}, v{vTB}")
    RA, MA = 32, 38
    RR_, MR_ = 44, 48
    RB_, MB_ = 52, 72
    CQ, CK, CV, CA, C2 = 92, 96, 100, 104, 112
    for t in range(5):
        a(f"ds_read_b32 v{RA+t}, v{vTA} offset:{t*64}"); a(f"ds_read_b32 v{MA+t}, v{vTA} offset:{576+t*64}")
    for t in range(1, 5):
        a(f"ds_read_b32 v{RR_+t-1}, v{vTA} offset:{1152+t*64}")
    a("s_waitcnt lgkmcnt(0)")
    for t in range(1, 5):
        a(f"ds_read_b32 v{MR_+t-1}, v{vTA} offset:{1728+t*64}")
    for t in range(5):
        a(f"ds_read_b128 {vr(RB_+4*t,4)}, v{vTB} offset:{t*64}"); a(f"ds_read_b128 {vr(MB_+4*t,4)}, v{vTB} offset:{576+t*64}")
    a("s_waitcnt lgkmcnt(0)")
    a(f"s_and_b32 s53, s{sWV}, 1"); a("s_lshl_b32 s54, s53, 6")
    a(f"v_lshl_add_u32 v2, v{vG}, 4, s54"); a(f"v_add_u32 v2, {T_CS}, v2")
    a(f"ds_read_b128 {vr(CQ,4)}, v2"); a(f"ds_read_b128 {vr(CK,4)}, v2 offset:128")
    a(f"v_lshl_add_u32 v3, v{vI}, 2, s54"); a(f"v_add_u32 v3, {T_CS}, v3"); a(f"ds_read_b32 v{CV}, v3 offset:256")
    a("s_lshl_b32 s54, s53, 7"); a(f"v_lshl_add_u32 v2, v{vG}, 4, s54"); a(f"v_add_u32 v2, {T_CS}, v2")
    a(f"ds_read_b128 {vr(CA,4)}, v2 offset:384"); a(f"ds_read_b128 {vr(CA+4,4)}, v2 offset:448")
    a(f"v_lshlrev_b32 v2, 4, v{vG}"); a(f"v_add_u32 v2, {T_CS}, v2")
    a(f"ds_read_b128 {vr(C2,4)}, v2 offset:640"); a(f"ds_read_b128 {vr(C2+4,4)}, v2 offset:704")
    bC, bP, bPF = 0+24, 28, 120
    Mc0, Mc1, Mp0, Mp1 = 124, 125, 126, 127
    tt = 4
    a(f"v_mov_b32 v{tt+3}, {hexf(BIG)}")
    for r in range(4):
        a(f"v_lshl_add_u32 v{tt}, v{vG}, 2, {r}"); a(f"v_sub_u32 v{tt}, v{vI}, v{tt}")
        a(f"v_and_b32 v{tt+1}, 1, v{tt}")
        a(f"v_cmp_eq_u32 vcc, 0, v{tt+1}"); a(f"v_cmp_le_i32 s[52:53], 0, v{tt}")
        hm = "0xffff0000" if (r & 1) else "0xffff"
        a(f"v_mov_b32 v{tt+2}, {hm}"); a.nop(1)
        a("s_and_b64 s[54:55], vcc, s[52:53]"); a("s_andn2_b64 s[58:59], vcc, s[52:53]")
        a(f"v_cndmask_b32 v{bC+r}, v{tt+3}, 0, s[54:55]"); a(f"v_cndmask_b32 v{bP+r}, v{tt+3}, 0, s[58:59]")
        mc, mp = (Mc0, Mp0) if r < 2 else (Mc1, Mp1)
        z = "0" if (r & 1) == 0 else None
        a(f"v_cndmask_b32 v{mc}, {z or 'v%d' % mc}, v{tt+2}, s[54:55]"); a(f"v_cndmask_b32 v{mp}, {z or 'v%d' % mp}, v{tt+2}, s[58:59]")
    a(f"s_lshr_b32 s52, s{sWV}, 1"); a(f"s_or_b32 s52, s52, s{sRB}"); a("s_cmp_eq_u32 s52, 0"); a("s_cselect_b64 vcc, -1, 0")
    for r in range(4): a(f"v_cndmask_b32 v{bPF+r}, v{bP+r}, v{tt+3}, vcc")
    a("s_waitcnt lgkmcnt(0)")
    Kb, Vb, Qb = aK, aV, aQ
    def conv(acc, dst, r, m, cs, layout_b):
        t = 4
        for h in range(2):
            tp = t + 2*h
            if not layout_b:
                a(f"v_pk_mul_f32 {vr(tp,2)}, {vr(cs+2*h,2)}, {vr(m & ~1,2)} op_sel:[0,{m&1}] op_sel_hi:[1,{m&1}]")
                a(f"v_pk_fma_f32 {vr(tp,2)}, {vr(acc+2*h,2)}, {vr(r & ~1,2)}, {vr(tp,2)} op_sel:[0,{r&1},0] op_sel_hi:[1,{r&1},1] neg_lo:[0,0,1] neg_hi:[0,0,1]")
            else:
                a(f"v_pk_mul_f32 {vr(tp,2)}, {vr(m+2*h,2)}, {vr(cs,2)} op_sel:[0,0] op_sel_hi:[1,0]")
                a(f"v_pk_fma_f32 {vr(tp,2)}, {vr(acc+2*h,2)}, {vr(r+2*h,2)}, {vr(tp,2)} neg_lo:[0,0,1] neg_hi:[0,0,1]")
        for h in range(2): a(f"v_cvt_pk_bf16_f32 v{dst+h}, v{t+2*h}, v{t+2*h+1}")
    for t in range(5):
        conv(aK+4*t, Kb+2*t, RA+t, MA+t, CK, False)
        conv(aV+4*t, Vb+2*t, RB_+4*t, MB_+4*t, CV, True)
        if t >= 1: conv(aQ+4*(t-1), Qb+2*(t-1), RA+t, MA+t, CQ, False)
    vO = 15
    a(f"v_lshlrev_b32 v{vO}, 4, v0")
    a(f"s_lshr_b32 s52, s{sWV}, 1"); a("s_lshl_b32 s52, s52, 2"); a(f"s_lshl_b32 s53, s{sRB}, 3"); a("s_add_u32 s52, s52, s53")
    a(f"s_mul_i32 s52, s52, {NSTEP2}"); a("s_lshl_b32 s58, s52, 10")
    a(f"s_add_u32 s52, s52, s{sJ}"); a("s_lshl_b32 s52, s52, 10")
    a(f"s_and_b32 s53, s{sWV}, 1"); a("s_lshl_b32 s53, s53, 3"); a("s_add_u32 s52, s52, s53")
    a(f"s_mov_b32 s54, {hexf(C_EXP)}")
    Sp, Sc, Pp, Os, Sm = 52, 56, 60, 64, 68
    a0, a1, m_, tm, ob = 72, 73, 74, 75, 76
    for u in range(4):
        t = u + 1
        bp = bPF if u == 0 else bP
        a.nop(1)
        a(f"v_mfma_f32_16x16x16_bf16 {vr(Sp,4)}, {vr(Kb+2*(t-1),2)}, {vr(Qb+2*u,2)}, {vr(bp,4)}")
        a(f"v_mfma_f32_16x16x16_bf16 {vr(Sc,4)}, {vr(Kb+2*t,2)}, {vr(Qb+2*u,2)}, {vr(bC,4)}")
        a.nop(8)
        a(f"v_max3_f32 v{a0}, v{Sp}, v{Sp+1}, v{Sc}"); a(f"v_max3_f32 v{a1}, v{Sp+2}, v{Sp+3}, v{Sc+2}")
        a(f"v_max_f32 v{a0}, v{a0}, v{Sc+1}"); a(f"v_max_f32 v{a1}, v{a1}, v{Sc+3}")
        a(f"v_max_f32 v{m_}, v{a0}, v{a1}")
        xlane(a, "v_max_f32", [m_], [tm])
        a(f"v_mul_f32 v{m_}, s54, v{m_}")
        a(f"v_fma_f32 v{a0}, v{a0}, s54, -v{m_}"); a(f"v_fma_f32 v{a1}, v{a1}, s54, -v{m_}")
        a(f"v_exp_f32 v{a0}, v{a0}"); a(f"v_exp_f32 v{a1}, v{a1}"); a.nop(1)
        a(f"v_cvt_pk_bf16_f32 v{a0}, v{a0}, v{a0}"); a(f"v_cvt_pk_bf16_f32 v{a1}, v{a1}, v{a1}")
        a(f"v_and_b32 v{Pp}, v{a0}, v{Mp0}"); a(f"v_and_b32 v{Pp+1}, v{a1}, v{Mp1}")
        a(f"v_and_b32 v{Pp+2}, v{a0}, v{Mc0}"); a(f"v_and_b32 v{Pp+3}, v{a1}, v{Mc1}")
        a.nop(2)
        a(MF32(Sm, vONE, Pp, "0")); a(MF32(Os, Vb+2*(t-1), Pp, "0"))
        a.nop(8)
        a(f"v_rcp_f32 v{Sm}, v{Sm}"); a.nop(1)
        a(f"v_mul_f32 v{Os}, v{Os}, v{Sm}"); a(f"v_mul_f32 v{Os+1}, v{Os+1}, v{Sm}")
        a(f"v_mul_f32 v{Os+2}, v{Os+2}, v{Sm}"); a(f"v_mul_f32 v{Os+3}, v{Os+3}, v{Sm}")
        o_ = ob + 2*(u & 1)
        a(f"v_cvt_pk_bf16_f32 v{o_}, v{Os}, v{Os+1}"); a(f"v_cvt_pk_bf16_f32 v{o_+1}, v{Os+2}, v{Os+3}")
        a(f"buffer_store_dwordx2 {vr(o_,2)}, v{vO}, {sr(sWS_,4)}, s52 offen sc1")
        a(f"s_add_u32 s52, s52, {NSTEP2*1024}")
    stamp(a, 5)
    B1 = 80
    for k in range(8):
        a(f"v_lshlrev_b32 v{B1+2*k}, 16, v{vB1+k}"); a(f"v_and_b32 v{B1+2*k+1}, s{sMASK}, v{vB1+k}")
    sC2, kC1 = 60, 96
    a(f"s_mov_b32 s{sC2}, {hexf(G2)}"); a(f"s_mov_b32 s{sC2+1}, {hexf(G2)}")
    a(f"v_mov_b32 v{kC1}, {hexf(G1)}"); a(f"v_mov_b32 v{kC1+1}, {hexf(G1)}")
    R45, M45 = 100, 102
    a(f"s_and_b32 s53, s{sWV}, 1"); a("s_cmp_eq_u32 s53, 1"); a("s_cselect_b64 vcc, -1, 0")
    for e in range(2):
        a(f"v_cndmask_b32 v{R45+e}, v{RR_+e}, v{RR_+2+e}, vcc"); a(f"v_cndmask_b32 v{M45+e}, v{MR_+e}, v{MR_+2+e}, vcc")
    a(f"s_add_u32 s52, s{sFS}, s53"); a("s_add_u32 s52, s52, 16"); a("s_lshl_b32 s52, s52, 10"); a("s_add_u32 s52, s52, s58")
    a(f"s_mul_i32 s55, s53, {2*NSTEP2}"); a(f"s_add_u32 s55, s55, s{sFS}"); a("s_add_u32 s55, s55, 18"); a("s_lshl_b32 s55, s55, 10"); a("s_add_u32 s55, s55, s58")
    for g in range(6):
        if g == 4:
            a(f"s_cmp_lt_u32 s{sNF}, 3"); a("s_cbranch_scc1 L_gelu_done")
        o = 4 + 0 if False else (104 + 0)
        o = 56 + 4*(g & 1)
        r, m = (RR_+g, MR_+g) if g < 4 else (R45+g-4, M45+g-4)
        cs = CA if g < 4 else C2
        b1 = B1 if g < 4 else B1 + 8
        acc = aF + 8*g
        T = 64
        for p in range(4):
            u = T + 2*p
            a(f"v_pk_fma_f32 {vr(u,2)}, {vr(cs+2*p,2)}, {vr(m&~1,2)}, {vr(b1+2*p,2)} op_sel:[0,{m&1},0] op_sel_hi:[1,{m&1},1] neg_lo:[0,1,0] neg_hi:[0,1,0]")
        for p in range(4):
            u = T + 2*p
            a(f"v_pk_fma_f32 {vr(u,2)}, {vr(acc+2*p,2)}, {vr(r&~1,2)}, {vr(u,2)} op_sel:[0,{r&1},0] op_sel_hi:[1,{r&1},1]")
        for p in range(4):
            u, w_ = T + 2*p, T + 8 + 2*p
            a(f"v_pk_mul_f32 {vr(w_,2)}, {vr(u,2)}, {vr(u,2)}")
        for p in range(4):
            w_ = T + 8 + 2*p
            a(f"v_pk_fma_f32 {vr(w_,2)}, {vr(w_,2)}, {sr(sC2,2)}, {vr(kC1,2)}")
        for p in range(4):
            u, w_ = T + 2*p, T + 8 + 2*p
            a(f"v_pk_mul_f32 {vr(w_,2)}, {vr(w_,2)}, {vr(u,2)}")
        for p in range(8): a(f"v_exp_f32 v{T+8+p}, v{T+8+p}")
        for p in range(4):
            w_ = T + 8 + 2*p
            a(f"v_pk_add_f32 {vr(w_,2)}, {vr(w_,2)}, 1.0 op_sel_hi:[1,0]")
        for p in range(8): a(f"v_rcp_f32 v{T+8+p}, v{T+8+p}")
        for p in range(4):
            u, w_ = T + 2*p, T + 8 + 2*p
            a(f"v_pk_mul_f32 {vr(w_,2)}, {vr(w_,2)}, {vr(u,2)}")
        for p in range(4): a(f"v_cvt_pk_bf16_f32 v{o+p}, v{T+8+2*p}, v{T+8+2*p+1}")
        base, off = (52, g*NSTEP2*1024) if g < 4 else (55, (g-4)*NSTEP2*1024)
        a(f"s_add_u32 s53, s{base}, {off}")
        a(f"buffer_store_dwordx4 {vr(o,4)}, v{vO}, {sr(sWS_,4)}, s53 offen sc1")
    a.lab("L_gelu_done")
    stamp(a, 6)
    a("s_waitcnt vmcnt(0)"); a("s_barrier")
    stamp(a, 7)
    tail_loads(a)
    acc = 128
    for r in range(acc, acc+64): a(f"v_mov_b32 v{r}, 0")
    vRA, vAA = 24, 28
    a(f"v_lshrrev_b32 v20, 2, v{vI}"); a(f"v_lshl_add_u32 v20, v{vG}, 2, v20")
    a("v_lshrrev_b32 v21, 1, v20"); a("v_and_b32 v21, 3, v21"); a("v_lshlrev_b32 v21, 5, v21")
    a("v_lshlrev_b32 v20, 7, v20"); a(f"v_and_b32 v22, 3, v{vI}"); a("v_lshl_add_u32 v20, v22, 3, v20")
    a(f"s_lshl_b32 s52, s{sWV}, 12"); a("v_add_u32 v20, s52, v20")
    for cb in range(4):
        a(f"v_xor_b32 v22, {cb*32}, v21"); a(f"v_add_u32 v{vRA+cb}, v20, v22")
    a(f"v_lshlrev_b32 v{vAA}, 4, v0"); a(f"s_add_u32 s52, s52, 16384"); a(f"v_add_u32 v{vAA}, s52, v{vAA}")
    AF, WF = 32, 48
    cur = 64
    a("s_barrier")
    stamp(a, 8)
    a("s_mov_b32 s56, 0"); a("s_mov_b32 s57, 0")
    a.lab("L_p2loop")
    a("s_barrier")
    a(f"s_cmp_eq_u32 s57, 14"); a("s_cselect_b32 s52, 3, 4"); a(f"s_cmp_ge_u32 s{sWV}, s52"); a("s_cbranch_scc1 L_p2skip")
    for cb in range(4): a(f"v_add_u32 v{cur+cb}, s56, v{vRA+cb}")
    a(f"v_add_u32 v{cur+4}, s56, v{vAA}")
    for cb in range(4):
        a(f"ds_read_b64_tr_b16 {vr(WF+4*cb,2)}, v{cur+cb}"); a(f"ds_read_b64_tr_b16 {vr(WF+4*cb+2,2)}, v{cur+cb} offset:2048")
    for b in range(4): a(f"ds_read_b128 {vr(AF+4*b,4)}, v{cur+4} offset:{b*1024}")
    for b in range(4):
        a(f"s_waitcnt lgkmcnt({3-b})")
        for cb in range(4): a(MF32(acc+(cb*4+b)*4, WF+4*cb, AF+4*b))
    a.lab("L_p2skip")
    a("s_add_u32 s56, s56, 32768"); a("s_and_b32 s56, s56, 0x1ffff")
    a("s_add_u32 s57, s57, 1"); a("s_cmp_lt_u32 s57, 15"); a("s_cbranch_scc1 L_p2loop")
    stamp(a, 9)
    a.nop(8)
    a("s_barrier")
    a(f"s_mul_i32 s52, s{sWV}, 17408"); a(f"v_mul_u32_u24 v20, 272, v{vI}"); a(f"v_lshl_add_u32 v20, v{vG}, 4, v20"); a("v_add_u32 v20, s52, v20")
    for cb in range(4):
        for b in range(4):
            a(f"ds_write_b128 v20, {vr(acc+(cb*4+b)*4,4)} offset:{b*16*272 + cb*64}")
    a("s_waitcnt lgkmcnt(0)")
    a("s_branch L_final")

vXO, vXD, vB2, vRow, vCol = 3, 4, 16, 12, 13
def tail_loads(a):
    sXs, sB2_ = sC, sDD
    srd(a, sXs, pX, S*D*2); srd(a, sB2_, pB2, D*2)
    a(f"s_lshl_b32 s52, s{sWV}, 3"); a(f"v_lshrrev_b32 v{vRow}, 3, v0"); a(f"v_add_u32 v{vRow}, s52, v{vRow}"); a(f"v_and_b32 v{vCol}, 7, v0")
    a(f"s_lshl_b32 s52, s{sRG}, 6"); a(f"v_add_u32 v14, s52, v{vRow}"); a("v_lshlrev_b32 v14, 10, v14")
    a(f"s_lshl_b32 s53, s{sCG}, 7"); a(f"v_lshlrev_b32 v15, 4, v{vCol}"); a("v_add_u32 v15, s53, v15")
    a(f"v_add_u32 v{vXO}, v14, v15")
    a(f"buffer_load_dwordx4 {vr(vXD,4)}, v{vXO}, {sr(sXs,4)}, 0 offen")
    a(f"buffer_load_dwordx4 {vr(vB2,4)}, v15, {sr(sB2_,4)}, 0 offen")

def final(a, END):
    a.lab("L_final")
    a("s_barrier")
    stamp(a, 10)
    srd(a, sA, pOUT, S*D*2)
    a(f"v_mul_u32_u24 v20, 272, v{vRow}"); a(f"v_lshl_add_u32 v20, v{vCol}, 5, v20")
    P = 32
    for w in range(4):
        o = w*17408
        a(f"ds_read_b128 {vr(P+8*w,4)}, v20 offset:{o}"); a(f"ds_read_b128 {vr(P+8*w+4,4)}, v20 offset:{o+16}")
    R = 64
    a("s_waitcnt vmcnt(0)")
    for d in range(4):
        a(f"v_lshlrev_b32 v{R+2*d}, 16, v{vXD+d}"); a(f"v_and_b32 v{R+2*d+1}, s{sMASK}, v{vXD+d}")
        a(f"v_lshlrev_b32 v72, 16, v{vB2+d}"); a(f"v_and_b32 v73, s{sMASK}, v{vB2+d}")
        a(f"v_pk_add_f32 {vr(R+2*d,2)}, {vr(R+2*d,2)}, {vr(72,2)}")
    a("s_waitcnt lgkmcnt(0)")
    for w in range(4):
        for d in range(4):
            a(f"v_pk_add_f32 {vr(R+2*d,2)}, {vr(R+2*d,2)}, {vr(P+8*w+2*d,2)}")
    for d in range(4): a(f"v_cvt_pk_bf16_f32 v{76+d}, v{R+2*d}, v{R+2*d+1}")
    a(f"buffer_store_dwordx4 {vr(76,4)}, v{vXO}, {sr(sA,4)}, 0 offen")
    if PROF:
        a("s_waitcnt vmcnt(0)")
        stamp(a, NST-2); stamp_rt(a, NST-1)
        a(f"s_mov_b32 s96, s{pWS}"); a(f"s_and_b32 s97, s{pWS+1}, 0xffff"); a("s_mov_b32 s98, 0x10000000"); a("s_mov_b32 s99, 0x20000")
        a(f"s_lshl_b32 s94, s2, 3"); a(f"s_add_u32 s94, s94, s{sWV}"); a("s_lshl_b32 s94, s94, 6"); a(f"s_add_u32 s94, s94, {0x4000000}")
        a("v_mov_b32 v250, 0")
        for i in range(NST):
            a(f"v_mov_b32 v251, s{64+2*i}"); a(f"buffer_store_dword v251, v250, s[96:99], s94 offen offset:{4*i}")
        a("s_waitcnt vmcnt(0)")

def helper(a):
    a.lab("L_helper")
    sX, sW, sST, sDB = sA, sB, sC, sDD
    sSLW, sKX, sKW, sKWs, sH16, sM0X, sM0W, sHM, sHMUL, sHK = 56, 57, 58, 59, 62, 63, 92, 93, 94, 95
    vRw, vC, vXo, vW0, vHo, vT, vL16 = 1, 2, 3, 8, 5, 6, 7
    a(f"v_lshrrev_b32 v{vRw}, 2, v0"); a(f"v_and_b32 v{vC}, 3, v0")
    a(f"v_lshrrev_b32 v{vT}, 3, v{vRw}")
    a(f"v_mul_u32_u24 v11, 3, v{vT}"); a(f"v_xor_b32 v11, v11, v{vC}"); a("v_lshlrev_b32 v11, 4, v11")
    a(f"s_lshl_b32 s52, s{sH}, 5"); a(f"s_add_u32 s52, s52, s{sR0}")
    a(f"v_add_u32 v{vXo}, s52, v{vRw}"); a(f"v_lshl_add_u32 v{vXo}, v{vXo}, 10, v11")
    a(f"s_sub_u32 s52, s{sR0}, 16")
    a(f"v_add_u32 v{vHo}, s52, v{vRw}"); a(f"v_lshl_add_u32 v{vHo}, v{vHo}, 10, v11")
    a(f"s_cmp_eq_u32 s{sRB}, 0"); a("s_cselect_b32 s52, 0x80000000, 0")
    a(f"s_cmp_ge_u32 s{sH}, 2"); a("s_cselect_b32 s52, 0x80000000, s52"); a(f"v_or_b32 v{vHo}, s52, v{vHo}")
    a(f"s_cmp_lt_u32 s{sH}, 2"); a(f"s_cselect_b32 s{sHMUL}, 1, 0"); a(f"s_mul_i32 s{sHM}, s{sH}, {SLOT}")
    a(f"s_cselect_b32 s{sHM}, s{sHM}, {DUMMY}"); a(f"s_lshl_b32 s{sHK}, s{sH}, 6")
    a(f"v_lshlrev_b32 v{vT}, 1, v{vT}"); a(f"v_xor_b32 v{vT}, v{vT}, v{vC}"); a(f"v_lshlrev_b32 v{vT}, 4, v{vT}")
    a(f"s_cmp_lt_u32 s{sH}, 2"); a("s_mov_b32 s53, 2752"); a(f"s_cselect_b32 s52, 3072, s53")
    a(f"s_lshl_b32 s{sKWs}, s52, 5")
    for e in range(3):
        a(f"s_mul_i32 s53, s{sH}, 3"); a(f"s_add_u32 s53, s53, {e}")
        a("s_lshr_b32 s54, s53, 1"); a("s_and_b32 s53, s53, 1"); a("s_lshl_b32 s53, s53, 4")
        a("s_lshl_b32 s55, s54, 10"); a(f"s_lshl_b32 s60, s{sJ}, 6"); a("s_add_u32 s55, s55, s60")
        a("s_sub_u32 s60, s54, 3"); a(f"s_add_u32 s61, s60, s{sFS}"); a("s_lshl_b32 s61, s61, 6")
        a(f"s_cmp_ge_u32 s60, s{sNF}"); a("s_cselect_b32 s61, 0x80000000, s61")
        a("s_cmp_lt_u32 s54, 3"); a("s_cselect_b32 s55, s55, s61")
        a(f"v_add_u32 v{vW0+e}, s53, v{vRw}"); a(f"v_mul_u32_u24 v{vW0+e}, s52, v{vW0+e}")
        a(f"v_add3_u32 v{vW0+e}, v{vW0+e}, v{vT}, s55")
    a(f"s_lshl_b32 s{sM0X}, s{sH}, 11"); a(f"s_add_u32 s{sM0X}, s{sM0X}, 1024")
    a(f"s_mul_i32 s{sM0W}, s{sH}, 3072"); a(f"s_add_u32 s{sM0W}, s{sM0W}, {WOFF}")
    a(f"v_lshlrev_b32 v{vL16}, 4, v0")
    a(f"s_mov_b32 s{sSLW}, 0"); a(f"s_mov_b32 s{sKX}, 0"); a(f"s_mov_b32 s{sKW}, 0")
    a("s_waitcnt lgkmcnt(0)")
    srd(a, sX, pX, S*D*2)
    a(f"s_cmp_lt_u32 s{sH}, 2")
    a(f"s_cselect_b32 s{sW}, s{pWQKV}, s{pW1}"); a(f"s_cselect_b32 s{sW+1}, s{pWQKV+1}, s{pW1+1}")
    a(f"s_mov_b32 s52, {D*F*2}"); a(f"s_cselect_b32 s{sW+2}, {D*3*D*2}, s52")
    a(f"s_and_b32 s{sW+1}, s{sW+1}, 0xffff"); a(f"s_mov_b32 s{sW+3}, 0x20000")
    vP = 16
    a(f"s_lshl_b32 s52, s{sJ}, 3"); a(f"s_add_u32 s52, s52, s{sR0}"); a(f"s_lshl_b32 s53, s{sH}, 1"); a("s_add_u32 s52, s52, s53")
    a("s_lshl_b32 s60, s52, 10")
    a(f"buffer_load_dwordx4 {vr(vP,4)}, v{vL16}, {sr(sX,4)}, s60 offen")
    a(f"buffer_load_dwordx4 {vr(vP+4,4)}, v{vL16}, {sr(sX,4)}, s60 offen offset:1024")
    a("s_lshl_b32 s61, s52, 4")
    def dma_round():
        a(f"s_mul_i32 s52, s{sSLW}, s{sHMUL}"); a(f"s_add_u32 m0, s52, s{sHM}"); a(f"s_add_u32 s53, s{sKX}, s{sHK}")
        a(f"buffer_load_dwordx4 v{vHo}, {sr(sX,4)}, s53 offen lds")
        for sub in range(2):
            a(f"s_add_u32 m0, s{sSLW}, s{sM0X}"); a(f"s_add_u32 s53, s{sKX}, 16384")
            a(f"buffer_load_dwordx4 v{vXo}, {sr(sX,4)}, s{sKX} offen lds")
            a("s_add_u32 m0, m0, 1024"); a.nop(1)
            a(f"buffer_load_dwordx4 v{vXo}, {sr(sX,4)}, s53 offen lds")
            a(f"s_add_u32 m0, s{sSLW}, s{sM0W}"); a.nop(1)
            for e in range(3):
                a(f"buffer_load_dwordx4 v{vW0+e}, {sr(sW,4)}, s{sKW} offen lds")
                if e < 2: a("s_add_u32 m0, m0, 1024"); a.nop(1)
            a(f"s_add_u32 s{sKX}, s{sKX}, 64"); a(f"s_add_u32 s{sKW}, s{sKW}, s{sKWs}"); a(f"s_add_u32 s{sSLW}, s{sSLW}, {SLOT}")
        a(f"s_cmp_eq_u32 s{sSLW}, {SLOT*NSLOT}"); a(f"s_cselect_b32 s{sSLW}, 0, s{sSLW}")
    dma_round(); dma_round()
    srd(a, sST, pWS, WS_BYTES); srd(a, sDB, pDBG, 256)
    a("s_waitcnt vmcnt(11)"); a("s_barrier")
    stamp(a, 2)
    dma_round()
    sA_, qA, sB_, qB = 24, 25, 26, 27
    for r in range(24, 28): a(f"v_mov_b32 v{r}, 0")
    a("v_mov_b32 v28, 0x3f803f80")
    for d in range(4):
        a(f"v_dot2c_f32_bf16 v{sA_}, v{vP+d}, v28"); a(f"v_dot2c_f32_bf16 v{qA}, v{vP+d}, v{vP+d}")
        a(f"v_dot2c_f32_bf16 v{sB_}, v{vP+4+d}, v28"); a(f"v_dot2c_f32_bf16 v{qB}, v{vP+4+d}, v{vP+4+d}")
    a.nop(2)
    for rot in (8, 4, 2, 1):
        for x in (sA_, qA, sB_, qB): a(f"v_add_f32_dpp v{x}, v{x}, v{x} row_ror:{rot} row_mask:0xf bank_mask:0xf")
    xlane(a, "v_add_f32", [sA_, qA, sB_, qB], [28, 29, 30, 31])
    a("v_and_b32 v28, 1, v0"); a("v_cmp_eq_u32 vcc, 1, v28"); a.nop(2)
    sm, sq, t0, t1, t2, t3 = 24, 25, 33, 32, 34, 35
    a(f"v_cndmask_b32 v{sm}, v{sA_}, v{sB_}, vcc"); a(f"v_cndmask_b32 v{sq}, v{qA}, v{qB}, vcc")
    a(f"v_mul_f32 v{sm}, {hexf(1/512)}, v{sm}"); a(f"v_mul_f32 v{sq}, {hexf(1/512)}, v{sq}")
    a(f"v_fma_f32 v{sq}, -v{sm}, v{sm}, v{sq}"); a(f"v_max_f32 v{sq}, 0, v{sq}")
    bf16r(a, t0, sm); bf16r(a, t1, sq)
    a(f"v_add_f32 v{t1}, {hexf(1e-5)}, v{t1}"); bf16r(a, t1, t1)
    a(f"v_sqrt_f32 v{t1}, v{t1}"); a.nop(1); bf16r(a, t1, t1)
    a(f"v_rcp_f32 v{t1}, v{t1}"); a.nop(1)
    a(f"v_mul_f32 v{t2}, v{sq}, v{t1}"); a(f"v_mul_f32 v{t2}, v{t2}, v{t1}"); bf16r(a, t2, t2)
    a(f"v_add_f32 v{t2}, {hexf(1e-5)}, v{t2}"); bf16r(a, t2, t2)
    a(f"v_sqrt_f32 v{t2}, v{t2}"); a.nop(1); bf16r(a, t2, t2)
    a(f"v_rcp_f32 v{t2}, v{t2}"); a.nop(1)
    a(f"v_mul_f32 v{t2}, v{t2}, v{t1}"); a(f"v_mul_f32 v{t0}, v{t0}, v{t1}"); a(f"v_mul_f32 v{t3}, v{sm}, v{t2}")
    a(f"s_add_u32 s61, s61, {STATS_OFF}")
    a("s_mov_b64 exec, 3")
    a(f"buffer_store_dwordx4 {vr(32,4)}, v{vL16}, {sr(sST,4)}, s61 offen sc1")
    a("s_mov_b64 exec, -1")
    a("s_waitcnt vmcnt(12)"); a("s_barrier"); dma_round()
    a("s_waitcnt vmcnt(11)"); a("s_barrier")
    a(f"s_cmp_lg_u32 s{sH}, 0"); a("s_cbranch_scc1 L_nf0")
    flag_store(a, 1, sDB, 36)
    a.lab("L_nf0")
    dma_round()
    a("s_waitcnt vmcnt(11)"); a("s_barrier"); dma_round()
    a("s_waitcnt vmcnt(11)"); a("s_barrier"); dma_round()
    a("s_waitcnt vmcnt(11)"); a("s_barrier"); dma_round()
    a("s_waitcnt vmcnt(11)"); a("s_barrier")
    a(f"s_cmp_lg_u32 s{sH}, 0"); a("s_cbranch_scc1 L_nogather")
    a(f"s_lshl_b32 s52, s{sRB}, 4"); a("s_sub_u32 s52, s52, 4"); a("v_lshl_add_u32 v36, v0, 2, s52")
    a("v_mov_b32 v37, 0x01010101"); a(f"s_cmp_eq_u32 s{sRB}, 0"); a("s_cselect_b32 s52, 0, 0x01010000")
    a("v_writelane_b32 v37, s52, 0")
    poll(a, 36, 37, 38, 5, sDB, "p0")
    a(f"s_sub_u32 s52, s{sR0}, 16"); a("s_lshl_b32 s52, s52, 4"); a(f"s_add_u32 s52, s52, {STATS_OFF}")
    a(f"v_add_u32 v36, s52, v{vL16}")
    a(f"s_cmp_eq_u32 s{sRB}, 0"); a("s_cselect_b32 s53, 16, 0"); a("v_cmp_gt_u32 vcc, s53, v0"); a("v_mov_b32 v37, 0x80000000"); a.nop(1)
    a("v_cndmask_b32 v37, v36, v37, vcc")
    a(f"buffer_load_dwordx4 {vr(40,4)}, v37, {sr(sST,4)}, 0 offen sc1")
    a(f"buffer_load_dwordx4 {vr(44,4)}, v36, {sr(sST,4)}, 0 offen offset:1024 sc1")
    a("s_mov_b64 exec, 0xffff")
    a(f"buffer_load_dwordx4 {vr(48,4)}, v36, {sr(sST,4)}, 0 offen offset:2048 sc1")
    a("s_mov_b64 exec, -1")
    a("v_lshlrev_b32 v36, 2, v0"); a(f"v_add_u32 v36, {TAB}, v36")
    a("s_waitcnt vmcnt(0)")
    for q in range(3):
        if q == 2: a("s_mov_b64 exec, 0xffff")
        for k in range(4): a(f"ds_write_b32 v36, v{40+4*q+k} offset:{q*256 + k*576}")
    a("s_mov_b64 exec, -1")
    a.lab("L_nogather")
    a("s_waitcnt vmcnt(0) lgkmcnt(0)"); a("s_barrier")
    a("s_barrier")
    stamp(a, 3)
    tail_loads(a)
    sWO_, sW2_, sA2_ = sA, sB, sC
    srd(a, sWO_, pWO, D*D*2); srd(a, sW2_, pW2, F*D*2)
    vWo, vAo = 20, 21
    a("v_lshrrev_b32 v22, 4, v0"); a("v_lshlrev_b32 v22, 1, v22"); a("v_and_b32 v23, 7, v0"); a("v_xor_b32 v22, v22, v23")
    a("v_lshlrev_b32 v22, 4, v22"); a("v_lshrrev_b32 v23, 3, v0"); a("v_lshl_add_u32 v22, v23, 10, v22")
    a(f"s_lshl_b32 s52, s{sCG}, 7"); a(f"v_add_u32 v{vWo}, s52, v22")
    a(f"v_lshlrev_b32 v{vAo}, 4, v0")
    sSL, sWk, sAk = 56, 57, 58
    a(f"s_lshl_b32 s{sWk}, s{sH}, 15"); a(f"s_lshl_b32 s{sSL}, s{sH}, 12")
    def wdma(srdreg):
        for q in range(4):
            a(f"s_add_u32 m0, s{sSL}, {q*1024}"); a(f"s_add_u32 s53, s{sWk}, {q*8192}")
            a(f"buffer_load_dwordx4 v{vWo}, {sr(srdreg,4)}, s53 offen lds")
    def adma():
        for b in range(4):
            a(f"s_add_u32 m0, s{sSL}, {16384 + b*1024}"); a(f"s_add_u32 s53, s{sAk}, {b*NSTEP2*1024}")
            a(f"buffer_load_dwordx4 v{vAo}, {sr(sA2_,4)}, s53 offen sc1 lds")
    def adv(w, aa):
        if w: a(f"s_add_u32 s{sWk}, s{sWk}, {4*32768}")
        if aa: a(f"s_add_u32 s{sAk}, s{sAk}, 4096")
        a(f"s_add_u32 s{sSL}, s{sSL}, 32768"); a(f"s_and_b32 s{sSL}, s{sSL}, 0x1ffff")
    for r in range(4): wdma(sWO_); adv(True, False)
    a("s_barrier")
    a("s_barrier")
    stamp(a, 7)
    srd(a, sA2_, pWS, A2_BYTES); srd(a, sDB, pDBG, 256)
    a(f"s_cmp_lg_u32 s{sH}, 0"); a("s_cbranch_scc1 L_nf1")
    flag_store(a, 3, sDB, 36)
    a(f"s_lshr_b32 s52, s{sRG}, 1"); a("s_lshl_b32 s52, s52, 4"); a("v_lshl_add_u32 v36, v0, 2, s52"); a("v_mov_b32 v37, 0x02020202")
    poll(a, 36, 37, 38, 4, sDB, "p1")
    a.lab("L_nf1")
    a("s_barrier")
    stamp(a, 8)
    a(f"s_lshl_b32 s{sAk}, s{sRG}, 2"); a(f"s_mul_i32 s{sAk}, s{sAk}, {NSTEP2}"); a(f"s_add_u32 s{sAk}, s{sAk}, s{sH}"); a(f"s_lshl_b32 s{sAk}, s{sAk}, 10")
    for r in range(4): adma(); adv(False, True)
    a(f"s_lshl_b32 s{sWk}, s{sH}, 15")
    a("s_waitcnt vmcnt(12)"); a("s_barrier")
    a("s_waitcnt vmcnt(8)"); a("s_barrier"); wdma(sW2_); adma(); adv(True, True)
    a("s_waitcnt vmcnt(12)"); a("s_barrier"); wdma(sW2_); adma(); adv(True, True)
    a("s_mov_b32 s59, 3")
    a.lab("L_hp2")
    a("s_waitcnt vmcnt(16)"); a("s_barrier")
    a("s_cmp_eq_u32 s59, 11"); a("s_cselect_b32 s60, 3, 99"); a(f"s_cmp_eq_u32 s{sH}, s60"); a(f"s_cselect_b32 s{sAk}, 0x80000000, s{sAk}")
    wdma(sW2_); adma(); adv(True, True)
    a("s_add_u32 s59, s59, 1"); a("s_cmp_lt_u32 s59, 12"); a("s_cbranch_scc1 L_hp2")
    a("s_waitcnt vmcnt(16)"); a("s_barrier")
    a("s_waitcnt vmcnt(8)"); a("s_barrier")
    a("s_waitcnt vmcnt(0)"); a("s_barrier")
    stamp(a, 9)
    a("s_barrier")

def build():
    a = A()
    a(f"; @launch grid=(256,1,1) block=(512,1,1) lds={LDS}")
    a('.amdgcn_target "amdgcn-amd-amdhsa--gfx950"')
    a(".text"); a(f".globl {KN}"); a(".p2align 8"); a(f".type {KN},@function"); a.lab(KN)
    END = "L_end"
    prologue(a, END)
    compute(a)
    helper(a)
    final(a, END)
    a.lab(END); a("s_endpgm")
    a.lab("L_code_end")
    a(".set CODE_LIMIT, L_code_end - L_pc - 16")
    a('.section .rodata,"a"'); a(".p2align 6")
    t = a.text()
    t += f""".amdhsa_kernel {KN}
  .amdhsa_next_free_vgpr 256
  .amdhsa_next_free_sgpr 102
  .amdhsa_accum_offset 256
  .amdhsa_group_segment_fixed_size 0
  .amdhsa_kernarg_size 88
  .amdhsa_user_sgpr_count 2
  .amdhsa_user_sgpr_kernarg_segment_ptr 1
  .amdhsa_system_sgpr_workgroup_id_x 1
.end_amdhsa_kernel
"""
    return t

if __name__ == "__main__":
    out = sys.argv[1] if len(sys.argv) > 1 else "v2.s"
    PROF = len(sys.argv) > 2 and sys.argv[2] == "p"
    open(out, "w").write(build())
```

```python
import sys, math, struct
NAME = "parallel_sum__sliding_local_dilated__mixer_channel_mlp__prompt"
KN = NAME + "_kernel"
def f2u(x): return struct.unpack("<I", struct.pack("<f", x))[0]
def hexf(x): return "0x%08x" % f2u(x)

class A:
    def __init__(s): s.l = []; s.uid = 0
    def __call__(s, t): s.l.append(t)
    def lab(s, n): s.l.append(n + ":")
    def nop(s, n):
        while n > 0:
            k = min(n, 16); s.l.append(f"s_nop {k-1}"); n -= k
    def u(s): s.uid += 1; return s.uid
    def text(s): return "\n".join(s.l) + "\n"

PROF = False
def stamp(a, i):
    if PROF: a("s_memtime s[90:91]"); a("s_waitcnt lgkmcnt(0)"); a(f"v_writelane_b32 v255, s90, {i}")
def stamp_dyn(a, sreg, base):
    if PROF:
        a("s_memtime s[90:91]"); a(f"s_add_u32 s89, s{sreg}, {base}"); a("s_mov_b32 m0, s89"); a("s_waitcnt lgkmcnt(0)"); a("v_writelane_b32 v255, s90, m0")
def stamp_rt(a, i):
    if PROF: a("s_memrealtime s[90:91]"); a("s_waitcnt lgkmcnt(0)"); a(f"v_writelane_b32 v255, s90, {i}")

def vr(b, n=1): return f"v{b}" if n == 1 else f"v[{b}:{b+n-1}]"
def sr(b, n=1): return f"s{b}" if n == 1 else f"s[{b}:{b+n-1}]"
def srd(a, d, lo, size):
    a(f"s_mov_b32 s{d}, s{lo}"); a(f"s_and_b32 s{d+1}, s{lo+1}, 0xffff")
    a(f"s_mov_b32 s{d+2}, {size}"); a(f"s_mov_b32 s{d+3}, 0x20000")

S, D, F = 2048, 512, 1376
NSTEP2 = 59
A2_BYTES = 128 * NSTEP2 * 1024
STATS_OFF = 0x800000
FLG_OFF = 0x810000
WS_BYTES = FLG_OFF + 256 * 128
NSLOT = 151552
PSX = 151552 + 64
RS = 43008; NR = 3; WOFF = 18432
TAB = 131072
T_CS = TAB + 2304
DUMMY = TAB + 3072
XB = TAB + 4096
LDS = 163840
BIG = -1e30
C_EXP = 0.25 * math.log2(math.e)
G1 = -2.0 * math.sqrt(2.0 / math.pi) * math.log2(math.e)
G2 = G1 * 0.044715
SPIN_MAX = 1 << 16

pX, pWQKV, pWO, pW1, pB1, pW2, pB2, pOUT, pDBG, pWS = 4, 6, 8, 12, 14, 16, 18, 20, 22, 24
sWV, sRB, sJ, sFS, sNF, sR0, sRG, sCG, sH = 26, 27, 28, 29, 30, 31, 32, 33, 34
sMASK = 35
sTY, sGR = 62, 63
sA, sB, sC, sDD = 36, 40, 44, 48
sT = 52

def MF32(d, a_, b_, c_=None):
    c_ = vr(d, 4) if c_ is None else c_
    return f"v_mfma_f32_16x16x32_bf16 {vr(d,4)}, {vr(a_,4)}, {vr(b_,4)}, {c_}"
def bf16r(a, dst, src):
    a(f"v_cvt_pk_bf16_f32 v{dst}, v{src}, v{src}"); a(f"v_and_b32 v{dst}, s{sMASK}, v{dst}")
def xlane(a, op, xs, ts):
    for sw in ("v_permlane16_swap_b32", "v_permlane32_swap_b32"):
        for x, t in zip(xs, ts): a(f"v_mov_b32 v{t}, v{x}")
        a.nop(max(0, 2 - (len(xs) - 1)))
        for x, t in zip(xs, ts): a(f"{sw} v{x}, v{t}")
        a.nop(max(0, 2 - (len(xs) - 1)))
        for x, t in zip(xs, ts): a(f"{op} v{x}, v{x}, v{t}")
def interleave(a, mf, fill, per=1):
    fi = 0
    for m in mf:
        a(m)
        for _ in range(per):
            if fi < len(fill): a(fill[fi]); fi += 1
    while fi < len(fill): a(fill[fi]); fi += 1

def poll(a, vOff, sExp, vD, sExec, srdreg, name):
    a(f"s_mov_b32 exec_lo, s{sExec}"); a("s_mov_b32 exec_hi, 0")
    a(f"s_mov_b32 s{sT}, {SPIN_MAX}")
    a.lab(f"L_poll_{name}")
    a(f"buffer_load_dword v{vD}, v{vOff}, {sr(srdreg,4)}, 0 offen sc1")
    a("s_waitcnt vmcnt(0)")
    a(f"v_cmp_eq_u32 vcc, s{sExp}, v{vD}")
    a.nop(2)
    a(f"s_cmp_eq_u32 vcc_lo, s{sExec}")
    a(f"s_cbranch_scc1 L_polld_{name}")
    a("s_sleep 2")
    a(f"s_sub_u32 s{sT}, s{sT}, 1"); a(f"s_cmp_lg_u32 s{sT}, 0")
    a(f"s_cbranch_scc1 L_poll_{name}")
    a.lab(f"L_polld_{name}")
    a("s_mov_b64 exec, -1")

def flag_store(a, which, srdreg, vT, vN):
    a(f"s_lshl_b32 s{sT}, s{sRB}, 4"); a(f"s_add_u32 s{sT}, s{sT}, s{sJ}"); a(f"s_lshl_b32 s{sT}, s{sT}, 7"); a(f"s_add_u32 s{sT}, s{sT}, {FLG_OFF + 4*which}")
    a(f"v_mov_b32 v{vT}, s{sT}")
    a("s_mov_b64 exec, 1")
    a(f"buffer_store_dword v{vN}, v{vT}, {sr(srdreg,4)}, 0 offen sc1")
    a("s_mov_b64 exec, -1")

def prologue(a, END):
    a("s_cmp_ge_u32 s2, 256"); a(f"s_cbranch_scc1 {END}")
    stamp_rt(a, 0); stamp(a, 1)
    a("s_load_dwordx16 s[4:19], s[0:1], 0")
    a("s_load_dwordx4 s[20:23], s[0:1], 64")
    a("s_load_dwordx2 s[24:25], s[0:1], 80")
    a("s_getpc_b64 s[98:99]")
    a.lab("L_pc")
    a("v_lshrrev_b32 v1, 6, v0"); a("v_and_b32 v0, 63, v0")
    a(f"v_readfirstlane_b32 s{sWV}, v1")
    a("s_and_b32 s52, s2, 7"); a("s_lshr_b32 s53, s2, 3")
    a(f"s_lshr_b32 s{sRB}, s52, 1"); a(f"s_lshl_b32 s{sRB}, s{sRB}, 2"); a("s_lshr_b32 s54, s53, 3"); a(f"s_add_u32 s{sRB}, s{sRB}, s54")
    a(f"s_bfe_u32 s{sTY}, s53, 0x10002")
    a(f"s_and_b32 s{sGR}, s52, 1"); a(f"s_lshl_b32 s{sGR}, s{sGR}, 2"); a("s_and_b32 s55, s53, 3"); a(f"s_add_u32 s{sGR}, s{sGR}, s55")
    a(f"s_lshl_b32 s{sJ}, s{sTY}, 3"); a(f"s_add_u32 s{sJ}, s{sJ}, s{sGR}")
    a(f"s_lshl_b32 s{sRG}, s52, 2"); a(f"s_add_u32 s{sRG}, s{sRG}, s54"); a(f"s_and_b32 s{sCG}, s53, 7")
    a(f"s_mul_i32 s{sFS}, s{sGR}, 6"); a(f"s_mul_i32 s54, s{sGR}, 5"); a("s_add_u32 s54, s54, 3")
    a(f"s_cmp_lt_u32 s{sGR}, 3"); a(f"s_cselect_b32 s{sFS}, s{sFS}, s54"); a(f"s_cselect_b32 s{sNF}, 6, 5")
    a(f"s_lshl_b32 s{sR0}, s{sRB}, 7")
    a(f"s_mov_b32 s{sMASK}, 0xffff0000")
    a(f"s_and_b32 s{sH}, s{sWV}, 3")
    a(f"s_cmp_ge_u32 s{sWV}, 4"); a("s_cbranch_scc1 L_helper")

def p0_stats(a):
    sX, sST, vL16, vP = sDD, sC, 7, 16
    a(f"v_lshlrev_b32 v{vL16}, 4, v0")
    a(f"s_lshl_b32 s52, s{sJ}, 3"); a(f"s_add_u32 s52, s52, s{sR0}"); a(f"s_lshl_b32 s53, s{sWV}, 1"); a("s_add_u32 s52, s52, s53")
    a("s_lshl_b32 s60, s52, 10"); a("s_lshl_b32 s61, s52, 4")
    a("s_waitcnt lgkmcnt(0)")
    srd(a, sX, pX, S*D*2)
    a(f"buffer_load_dwordx4 {vr(vP,4)}, v{vL16}, {sr(sX,4)}, s60 offen")
    a(f"buffer_load_dwordx4 {vr(vP+4,4)}, v{vL16}, {sr(sX,4)}, s60 offen offset:1024")
    a("s_lshr_b32 s53, s2, 3"); a(f"s_lshl_b32 s54, s{sWV}, 5"); a("s_add_u32 s53, s53, s54")
    a("s_lshl_b32 s53, s53, 10"); a("v_add_u32 v2, s53, v7")
    a("s_mov_b32 s54, L_code_end-L_pc-16"); a("v_min_u32 v2, s54, v2")
    a("global_load_dwordx4 v[248:251], v2, s[98:99]")
    return vP

def p0_finish(a, vP, nwait):
    sST, vL16 = sC, 7
    a(f"s_waitcnt vmcnt({nwait})")
    sA_, qA, sB_, qB = 24, 25, 26, 27
    for r in range(24, 28): a(f"v_mov_b32 v{r}, 0")
    a("v_mov_b32 v28, 0x3f803f80")
    for d in range(4):
        a(f"v_dot2c_f32_bf16 v{sA_}, v{vP+d}, v28"); a(f"v_dot2c_f32_bf16 v{qA}, v{vP+d}, v{vP+d}")
        a(f"v_dot2c_f32_bf16 v{sB_}, v{vP+4+d}, v28"); a(f"v_dot2c_f32_bf16 v{qB}, v{vP+4+d}, v{vP+4+d}")
    a.nop(2)
    for rot in (8, 4, 2, 1):
        for x in (sA_, qA, sB_, qB): a(f"v_add_f32_dpp v{x}, v{x}, v{x} row_ror:{rot} row_mask:0xf bank_mask:0xf")
    xlane(a, "v_add_f32", [sA_, qA, sB_, qB], [28, 29, 30, 31])
    a("v_and_b32 v28, 1, v0"); a("v_cmp_eq_u32 vcc, 1, v28"); a.nop(2)
    sm, sq, t0, t1, t2, t3 = 24, 25, 33, 32, 34, 35
    a(f"v_cndmask_b32 v{sm}, v{sA_}, v{sB_}, vcc"); a(f"v_cndmask_b32 v{sq}, v{qA}, v{qB}, vcc")
    a(f"v_mul_f32 v{sm}, {hexf(1/512)}, v{sm}"); a(f"v_mul_f32 v{sq}, {hexf(1/512)}, v{sq}")
    a(f"v_fma_f32 v{sq}, -v{sm}, v{sm}, v{sq}"); a(f"v_max_f32 v{sq}, 0, v{sq}")
    bf16r(a, t0, sm); bf16r(a, t1, sq)
    a(f"v_add_f32 v{t1}, {hexf(1e-5)}, v{t1}"); bf16r(a, t1, t1)
    a(f"v_sqrt_f32 v{t1}, v{t1}"); a.nop(1); bf16r(a, t1, t1)
    a(f"v_rcp_f32 v{t1}, v{t1}"); a.nop(1)
    a(f"v_mul_f32 v{t2}, v{sq}, v{t1}"); a(f"v_mul_f32 v{t2}, v{t2}, v{t1}"); bf16r(a, t2, t2)
    a(f"v_add_f32 v{t2}, {hexf(1e-5)}, v{t2}"); bf16r(a, t2, t2)
    a(f"v_sqrt_f32 v{t2}, v{t2}"); a.nop(1); bf16r(a, t2, t2)
    a(f"v_rcp_f32 v{t2}, v{t2}"); a.nop(1)
    a(f"v_mul_f32 v{t2}, v{t2}, v{t1}"); a(f"v_mul_f32 v{t0}, v{t0}, v{t1}"); a(f"v_mul_f32 v{t3}, v{sm}, v{t2}")
    a(f"s_lshl_b32 s52, s{sWV}, 5"); a(f"s_add_u32 s52, s52, {PSX}"); a(f"v_add_u32 v28, s52, v{vL16}")
    a("s_mov_b64 exec, 3")
    a(f"ds_write_b128 v28, {vr(32,4)}")
    a("s_mov_b64 exec, -1")
    a("s_waitcnt lgkmcnt(0)")

vI, vG, vAX0, vAX1, vCX = 8, 9, 10, 11, 12
vONE = 244; cS = 232
sBASE, sRND = 56, 57

def lane_common(a):
    a(f"v_and_b32 v{vI}, 15, v0"); a(f"v_lshrrev_b32 v{vG}, 4, v0")
    a(f"v_lshrrev_b32 v2, 1, v{vI}"); a(f"v_xor_b32 v2, v2, v{vG}"); a("v_lshlrev_b32 v2, 4, v2")
    a(f"v_lshl_add_u32 v{vAX0}, v{vI}, 7, v2")
    a(f"v_lshrrev_b32 v2, 2, v{vI}"); a(f"v_lshl_add_u32 v2, v{vG}, 3, v2"); a("v_lshlrev_b32 v2, 7, v2")
    a(f"v_and_b32 v3, 3, v{vI}"); a("v_lshl_add_u32 v2, v3, 3, v2"); a(f"v_add_u32 v2, {WOFF}, v2")
    a(f"v_bfe_u32 v3, v{vI}, 3, 1"); a(f"v_and_b32 v1, 1, v{vG}"); a("v_lshl_add_u32 v3, v1, 1, v3"); a("v_lshlrev_b32 v3, 5, v3")
    for i in range(4): a(f"v_mov_b32 v{vONE+i}, 0x3f803f80")

def adv_base():
    return [f"s_add_u32 s{sBASE}, s{sBASE}, {RS}", f"s_cmp_eq_u32 s{sBASE}, {RS*NR}", f"s_cselect_b32 s{sBASE}, 0, s{sBASE}"]

def main_loop(a, tag, mfmas, reads, w0):
    a("s_barrier")
    if w0: stamp(a, 2)
    for o in reads(0, 0): a(o)
    a("s_waitcnt lgkmcnt(0)")
    a.lab(f"L_cloop{tag}")
    interleave(a, mfmas(0), reads(1, 1))
    a("s_waitcnt lgkmcnt(0)"); stamp_dyn(a, sRND, 16); a("s_barrier")
    stamp_dyn(a, sRND, 24)
    interleave(a, mfmas(1), adv_base() + reads(0, 0))
    a(f"s_add_u32 s{sRND}, s{sRND}, 1"); a(f"s_cmp_lt_u32 s{sRND}, 8")
    a("s_waitcnt lgkmcnt(0)")
    a(f"s_cbranch_scc1 L_cloop{tag}")
    stamp(a, 3)
    a("s_waitcnt vmcnt(0)")
    a.nop(8)

def conv(a, acc, dst, r, m, cs, layout_b, t=4):
    for h in range(2):
        tp = t + 2*h
        if not layout_b:
            a(f"v_pk_mul_f32 {vr(tp,2)}, {vr(cs+2*h,2)}, {vr(m & ~1,2)} op_sel:[0,{m&1}] op_sel_hi:[1,{m&1}]")
            a(f"v_pk_fma_f32 {vr(tp,2)}, {vr(acc+2*h,2)}, {vr(r & ~1,2)}, {vr(tp,2)} op_sel:[0,{r&1},0] op_sel_hi:[1,{r&1},1] neg_lo:[0,0,1] neg_hi:[0,0,1]")
        else:
            a(f"v_pk_mul_f32 {vr(tp,2)}, {vr(m+2*h,2)}, {vr(cs,2)} op_sel:[0,0] op_sel_hi:[1,0]")
            a(f"v_pk_fma_f32 {vr(tp,2)}, {vr(acc+2*h,2)}, {vr(r+2*h,2)}, {vr(tp,2)} neg_lo:[0,0,1] neg_hi:[0,0,1]")
    for h in range(2): a(f"v_cvt_pk_bf16_f32 v{dst+h}, v{t+2*h}, v{t+2*h+1}")

def compute_A(a):
    XA, WA = [32, 68], [104, 116]
    aQ, aK, aV = 128, 160, 196
    vAW, vCW = 13, 14
    sWS_ = sA
    a.lab("L_typeA")
    lane_common(a)
    a(f"v_xor_b32 v{vAX1}, 64, v{vAX0}")
    a(f"s_lshl_b32 s52, s{sWV}, 5"); a("v_xor_b32 v3, s52, v3"); a(f"v_add_u32 v{vAW}, v2, v3")
    for r in range(aQ, cS + 12): a(f"v_mov_b32 v{r}, 0")
    a(f"s_mov_b32 s{sBASE}, 0"); a(f"s_mov_b32 s{sRND}, 0")
    srd(a, sWS_, pWS, A2_BYTES)
    p0_finish(a, 16, 1)
    def reads(buf, sub):
        o = [f"v_add_u32 v{vCX}, s{sBASE}, v{vAX1 if sub else vAX0}"]
        if sub == 0: o.append(f"v_add_u32 v{vCW}, s{sBASE}, v{vAW}")
        for p in range(3):
            o.append(f"ds_read_b64_tr_b16 {vr(WA[buf]+4*p,2)}, v{vCW} offset:{p*8192+sub*4096}")
            o.append(f"ds_read_b64_tr_b16 {vr(WA[buf]+4*p+2,2)}, v{vCW} offset:{p*8192+sub*4096+512}")
        for t in range(9): o.append(f"ds_read_b128 {vr(XA[buf]+4*t,4)}, v{vCX} offset:{t*2048}")
        return o
    def mfmas(buf):
        X, W = XA[buf], WA[buf]
        mf = []
        for t in range(9):
            mf.append(MF32(aK+4*t, W+4, X+4*t)); mf.append(MF32(aV+4*t, X+4*t, W+8))
            if t >= 1: mf.append(MF32(aQ+4*(t-1), W, X+4*t))
        mf += [MF32(cS, W, vONE), MF32(cS+4, W+4, vONE), MF32(cS+8, vONE, W+8)]
        return mf
    main_loop(a, "A", mfmas, reads, True)
    stamp(a, 4)
    vTA, vTB = 13, 14
    a(f"v_lshlrev_b32 v{vTA}, 2, v{vI}"); a(f"v_add_u32 v{vTA}, {TAB}, v{vTA}")
    a(f"v_lshlrev_b32 v{vTB}, 4, v{vG}"); a(f"v_add_u32 v{vTB}, {TAB}, v{vTB}")
    RA, MA = 32, 42
    RB_, MB_ = [52, 56], [60, 64]
    for t in range(9): a(f"ds_read_b32 v{RA+t}, v{vTA} offset:{t*64}")
    a(f"ds_read_b128 {vr(RB_[0],4)}, v{vTB}"); a(f"ds_read_b128 {vr(MB_[0],4)}, v{vTB} offset:576")
    a("s_waitcnt lgkmcnt(4)")
    for t in range(9): a(f"ds_read_b32 v{MA+t}, v{vTA} offset:{576+t*64}")
    bC, bP, bPF = 68, 72, 76
    Mc0, Mc1, Mp0, Mp1 = 80, 81, 82, 83
    tt = 84
    a(f"v_mov_b32 v{tt+3}, {hexf(BIG)}")
    for r in range(4):
        a(f"v_lshl_add_u32 v{tt}, v{vG}, 2, {r}"); a(f"v_sub_u32 v{tt}, v{vI}, v{tt}")
        a(f"v_and_b32 v{tt+1}, 1, v{tt}")
        a(f"v_cmp_eq_u32 vcc, 0, v{tt+1}"); a(f"v_cmp_le_i32 s[52:53], 0, v{tt}")
        hm = "0xffff0000" if (r & 1) else "0xffff"
        a(f"v_mov_b32 v{tt+2}, {hm}"); a.nop(1)
        a("s_and_b64 s[54:55], vcc, s[52:53]"); a("s_andn2_b64 s[58:59], vcc, s[52:53]")
        a(f"v_cndmask_b32 v{bC+r}, v{tt+3}, 0, s[54:55]"); a(f"v_cndmask_b32 v{bP+r}, v{tt+3}, 0, s[58:59]")
        mc, mp = (Mc0, Mp0) if r < 2 else (Mc1, Mp1)
        z = "0" if (r & 1) == 0 else None
        a(f"v_cndmask_b32 v{mc}, {z or 'v%d' % mc}, v{tt+2}, s[54:55]"); a(f"v_cndmask_b32 v{mp}, {z or 'v%d' % mp}, v{tt+2}, s[58:59]")
    a(f"s_cmp_eq_u32 s{sRB}, 0"); a("s_cselect_b64 vcc, -1, 0")
    for r in range(4): a(f"v_cndmask_b32 v{bPF+r}, v{bP+r}, v{tt+3}, vcc")
    a("s_waitcnt lgkmcnt(0)")
    Kb, Vb, Qb = aK, aV, aQ
    for t in range(9):
        if t < 8:
            a(f"ds_read_b128 {vr(RB_[(t+1)&1],4)}, v{vTB} offset:{(t+1)*64}"); a(f"ds_read_b128 {vr(MB_[(t+1)&1],4)}, v{vTB} offset:{576+(t+1)*64}")
        conv(a, aK+4*t, Kb+2*t, RA+t, MA+t, cS+4, False)
        if t >= 1: conv(a, aQ+4*(t-1), Qb+2*(t-1), RA+t, MA+t, cS, False)
        if t > 0: a("s_waitcnt lgkmcnt(2)" if t < 8 else "s_waitcnt lgkmcnt(0)")
        conv(a, aV+4*t, Vb+2*t, RB_[t&1], MB_[t&1], cS+8, True)
    a(f"s_mov_b32 s54, {hexf(C_EXP)}")
    Sr, Tr, Pr, Or = 88, 144, 178, 214
    for b in range(2):
        U = range(4)
        for u in U:
            gu = 4*b + u; t = gu + 1
            bp = bPF if gu == 0 else bP
            a(f"v_mfma_f32_16x16x16_bf16 {vr(Sr+8*u,4)}, {vr(Kb+2*(t-1),2)}, {vr(Qb+2*gu,2)}, {vr(bp,4)}")
            a(f"v_mfma_f32_16x16x16_bf16 {vr(Sr+8*u+4,4)}, {vr(Kb+2*t,2)}, {vr(Qb+2*gu,2)}, {vr(bC,4)}")
        a.nop(4)
        for u in U:
            Sp, Sc, a0, a1 = Sr+8*u, Sr+8*u+4, Tr+4*u, Tr+4*u+1
            a(f"v_max3_f32 v{a0}, v{Sp}, v{Sp+1}, v{Sc}"); a(f"v_max3_f32 v{a1}, v{Sp+2}, v{Sp+3}, v{Sc+2}")
            a(f"v_max_f32 v{a0}, v{a0}, v{Sc+1}"); a(f"v_max_f32 v{a1}, v{a1}, v{Sc+3}")
            a(f"v_max_f32 v{Tr+4*u+2}, v{a0}, v{a1}")
        xlane(a, "v_max_f32", [Tr+4*u+2 for u in U], [Tr+4*u+3 for u in U])
        for u in U: a(f"v_mul_f32 v{Tr+4*u+2}, s54, v{Tr+4*u+2}")
        for u in U:
            for k in range(2): a(f"v_fma_f32 v{Tr+4*u+k}, v{Tr+4*u+k}, s54, -v{Tr+4*u+2}")
        for u in U:
            for k in range(2): a(f"v_exp_f32 v{Tr+4*u+k}, v{Tr+4*u+k}")
        for u in U:
            for k in range(2): a(f"v_cvt_pk_bf16_f32 v{Tr+4*u+k}, v{Tr+4*u+k}, v{Tr+4*u+k}")
        for u in U:
            P = Pr+4*u; a0, a1 = Tr+4*u, Tr+4*u+1
            a(f"v_and_b32 v{P}, v{a0}, v{Mp0}"); a(f"v_and_b32 v{P+1}, v{a1}, v{Mp1}")
            a(f"v_and_b32 v{P+2}, v{a0}, v{Mc0}"); a(f"v_and_b32 v{P+3}, v{a1}, v{Mc1}")
        a.nop(2)
        for u in U:
            t = 4*b + u + 1
            a(MF32(Sr+8*u, vONE, Pr+4*u, "0")); a(MF32(Sr+8*u+4, Vb+2*(t-1), Pr+4*u, "0"))
        a.nop(4)
        for u in U: a(f"v_rcp_f32 v{Sr+8*u}, v{Sr+8*u}")
        for u in U:
            for k in range(4): a(f"v_mul_f32 v{Sr+8*u+4+k}, v{Sr+8*u+4+k}, v{Sr+8*u}")
        for u in U:
            for k in range(2): a(f"v_cvt_pk_bf16_f32 v{Or+2*(4*b+u)+k}, v{Sr+8*u+4+2*k}, v{Sr+8*u+4+2*k+1}")
    stamp(a, 5)
    a(f"s_lshr_b32 s52, s{sWV}, 1"); a("s_lshl_b32 s52, s52, 13"); a(f"s_add_u32 s52, s52, {XB}")
    a(f"s_and_b32 s53, s{sWV}, 1"); a("s_lshl_b32 s54, s53, 3"); a("s_add_u32 s54, s54, s52")
    a("v_lshlrev_b32 v15, 4, v0"); a("v_add_u32 v2, s54, v15")
    for u in range(8): a(f"ds_write_b64 v2, {vr(Or+2*u,2)} offset:{u*1024}")
    a("s_lshl_b32 s54, s53, 12"); a("s_add_u32 s54, s54, s52"); a("v_add_u32 v3, s54, v15")
    a("s_waitcnt lgkmcnt(0)"); a("s_barrier")
    for u in range(4): a(f"ds_read_b128 {vr(88+4*u,4)}, v3 offset:{u*1024}")
    a(f"s_lshl_b32 s52, s{sRB}, 3"); a("s_lshl_b32 s54, s53, 2"); a("s_add_u32 s52, s52, s54"); a(f"s_mul_i32 s52, s52, {NSTEP2}")
    a(f"s_lshl_b32 s54, s{sGR}, 1"); a("s_add_u32 s52, s52, s54"); a(f"s_lshr_b32 s54, s{sWV}, 1"); a("s_add_u32 s52, s52, s54"); a("s_lshl_b32 s52, s52, 10")
    for u in range(4):
        a(f"s_waitcnt lgkmcnt({3-u})")
        a(f"buffer_store_dwordx4 {vr(88+4*u,4)}, v15, {sr(sWS_,4)}, s52 offen sc1")
        if u < 3: a(f"s_add_u32 s52, s52, {NSTEP2*1024}")
    stamp(a, 6)
    a("s_branch L_p1done")

def compute_M(a):
    XM, WM = [32, 48], [64, 88]
    aF = 128
    vAW, vCW = 13, 112
    vAWb = 116
    vB1 = 16
    sWS_, sB1_ = sA, sB
    a.lab("L_typeM")
    lane_common(a)
    a(f"s_lshr_b32 s52, s{sWV}, 1"); a("s_lshl_b32 s52, s52, 13"); a("s_add_u32 s52, s52, 2048")
    a(f"v_add_u32 v{vAX0}, s52, v{vAX0}"); a(f"v_xor_b32 v{vAX1}, 64, v{vAX0}")
    for cb in range(4):
        a(f"v_xor_b32 v1, {cb*32}, v3"); a(f"v_add_u32 v{vAWb+cb}, v2, v1")
    for r in range(aF, cS + 12): a(f"v_mov_b32 v{r}, 0")
    a(f"s_mov_b32 s{sBASE}, 0"); a(f"s_mov_b32 s{sRND}, 0")
    srd(a, sWS_, pWS, A2_BYTES); srd(a, sB1_, pB1, F * 2)
    p0_finish(a, 16, 1)
    a(f"s_and_b32 s52, s{sWV}, 1"); a("s_mul_i32 s52, s52, 3"); a(f"s_add_u32 s52, s52, s{sFS}"); a("s_lshl_b32 s52, s52, 6")
    a(f"v_lshlrev_b32 v2, 3, v{vG}")
    for k in range(6): a(f"buffer_load_dwordx2 {vr(vB1+2*k,2)}, v2, {sr(sB1_,4)}, s52 offen offset:{k*32}")
    for w in range(1, 4):
        a(f"s_cmp_eq_u32 s{sWV}, {w}"); a(f"s_cbranch_scc1 L_mv{w}")
    for w in range(4):
        ch, rh = w & 1, w >> 1
        a.lab(f"L_mv{w}")
        def reads(buf, sub):
            o = [f"v_add_u32 v{vCX}, s{sBASE}, v{vAX1 if sub else vAX0}"]
            cbs = sorted(set((6*ch + k) & 3 for k in range(6)))
            if sub == 0:
                for cb in cbs: o.append(f"v_add_u32 v{vCW+cb}, s{sBASE}, v{vAWb+cb}")
            for k in range(6):
                cg = 6*ch + k; q, cb = cg >> 2, cg & 3
                o.append(f"ds_read_b64_tr_b16 {vr(WM[buf]+4*k,2)}, v{vCW+cb} offset:{q*8192+sub*4096}")
                o.append(f"ds_read_b64_tr_b16 {vr(WM[buf]+4*k+2,2)}, v{vCW+cb} offset:{q*8192+sub*4096+512}")
            for t in range(4): o.append(f"ds_read_b128 {vr(XM[buf]+4*t,4)}, v{vCX} offset:{t*2048}")
            return o
        def mfmas(buf):
            X, W = XM[buf], WM[buf]
            mf = []
            for k in range(6):
                for t in range(4): mf.append(MF32(aF + ((k >> 1)*4 + t)*8 + 4*(k & 1), W+4*k, X+4*t))
            for e in range(3): mf.append(MF32(cS+4*e, W+4*(3*rh+e), vONE))
            return mf
        main_loop(a, f"M{w}", mfmas, reads, w == 0)
        a(f"v_lshlrev_b32 v2, 4, v{vG}"); a(f"v_add_u32 v2, {T_CS}, v2")
        a("s_mov_b32 exec_lo, 0x00010001"); a("s_mov_b32 exec_hi, 0x00010001")
        for e in range(3): a(f"ds_write_b128 v2, {vr(cS+4*e,4)} offset:{(6*ch+3*rh+e)*64}")
        a("s_mov_b64 exec, -1")
        if w < 3: a("s_branch L_mepi")
    a.lab("L_mepi")
    a("s_waitcnt lgkmcnt(0)"); a("s_barrier")
    stamp(a, 4)
    CS, B1, RR_, MR_ = 32, 56, 80, 84
    a(f"s_lshr_b32 s52, s{sWV}, 1"); a("s_lshl_b32 s52, s52, 8")
    a(f"v_lshl_add_u32 v2, v{vI}, 2, s52"); a(f"v_add_u32 v2, {TAB + 64}, v2")
    for t in range(4):
        a(f"ds_read_b32 v{RR_+t}, v2 offset:{1152+t*64}"); a(f"ds_read_b32 v{MR_+t}, v2 offset:{1728+t*64}")
    a(f"s_and_b32 s53, s{sWV}, 1"); a("s_mul_i32 s54, s53, 384"); a(f"v_lshl_add_u32 v3, v{vG}, 4, s54"); a(f"v_add_u32 v3, {T_CS}, v3")
    for k in range(6): a(f"ds_read_b128 {vr(CS+4*k,4)}, v3 offset:{k*64}")
    for k in range(12):
        a(f"v_lshlrev_b32 v{B1+2*k}, 16, v{vB1+k}"); a(f"v_and_b32 v{B1+2*k+1}, s{sMASK}, v{vB1+k}")
    sC2, kC1 = 60, 112
    a(f"s_mov_b32 s{sC2}, {hexf(G2)}"); a(f"s_mov_b32 s{sC2+1}, {hexf(G2)}")
    a(f"v_mov_b32 v{kC1}, {hexf(G1)}"); a(f"v_mov_b32 v{kC1+1}, {hexf(G1)}")
    a("v_lshlrev_b32 v15, 4, v0")
    a(f"s_lshr_b32 s52, s{sWV}, 1"); a("s_lshl_b32 s52, s52, 2"); a(f"s_lshl_b32 s54, s{sRB}, 3"); a("s_add_u32 s52, s52, s54"); a(f"s_mul_i32 s52, s52, {NSTEP2}")
    a("s_mul_i32 s54, s53, 3"); a("s_add_u32 s52, s52, s54"); a(f"s_add_u32 s52, s52, s{sFS}"); a("s_add_u32 s52, s52, 16"); a("s_lshl_b32 s52, s52, 10")
    a(f"s_sub_u32 s55, s{sNF}, s54")
    a("s_waitcnt lgkmcnt(0)")
    for sp in range(3):
        if sp == 2:
            a("s_cmp_lt_u32 s55, 3"); a("s_cbranch_scc1 L_gelu_done")
        for t in range(4):
            g = sp*4 + t
            o = 104 + 4*(g & 1)
            r, m = RR_+t, MR_+t
            cs, b1, acc = CS + 8*sp, B1 + 8*sp, aF + 8*g
            T = 88
            for p in range(4):
                u = T + 2*p
                a(f"v_pk_fma_f32 {vr(u,2)}, {vr(cs+2*p,2)}, {vr(m&~1,2)}, {vr(b1+2*p,2)} op_sel:[0,{m&1},0] op_sel_hi:[1,{m&1},1] neg_lo:[0,1,0] neg_hi:[0,1,0]")
            for p in range(4):
                u = T + 2*p
                a(f"v_pk_fma_f32 {vr(u,2)}, {vr(acc+2*p,2)}, {vr(r&~1,2)}, {vr(u,2)} op_sel:[0,{r&1},0] op_sel_hi:[1,{r&1},1]")
            for p in range(4): a(f"v_pk_mul_f32 {vr(T+8+2*p,2)}, {vr(T+2*p,2)}, {vr(T+2*p,2)}")
            for p in range(4): a(f"v_pk_fma_f32 {vr(T+8+2*p,2)}, {vr(T+8+2*p,2)}, {sr(sC2,2)}, {vr(kC1,2)}")
            for p in range(4): a(f"v_pk_mul_f32 {vr(T+8+2*p,2)}, {vr(T+8+2*p,2)}, {vr(T+2*p,2)}")
            for p in range(8): a(f"v_exp_f32 v{T+8+p}, v{T+8+p}")
            for p in range(4): a(f"v_pk_add_f32 {vr(T+8+2*p,2)}, {vr(T+8+2*p,2)}, 1.0 op_sel_hi:[1,0]")
            for p in range(8): a(f"v_rcp_f32 v{T+8+p}, v{T+8+p}")
            for p in range(4): a(f"v_pk_mul_f32 {vr(T+8+2*p,2)}, {vr(T+8+2*p,2)}, {vr(T+2*p,2)}")
            for p in range(4): a(f"v_cvt_pk_bf16_f32 v{o+p}, v{T+8+2*p}, v{T+8+2*p+1}")
            a(f"s_add_u32 s53, s52, {(t*NSTEP2+sp)*1024}")
            a(f"buffer_store_dwordx4 {vr(o,4)}, v15, {sr(sWS_,4)}, s53 offen sc1")
    a.lab("L_gelu_done")
    stamp(a, 6)

def compute(a):
    p0_stats(a)
    a(f"s_cmp_eq_u32 s{sTY}, 1"); a("s_cbranch_scc1 L_typeM")
    compute_A(a)
    compute_M(a)
    a.lab("L_p1done")
    a("s_waitcnt vmcnt(0)"); stamp(a, 33); a("s_barrier")
    stamp(a, 7)
    NWR = 7
    AFB = [12, 28, 44, 60]; WR = 76; acc = 188
    vAo, vRA = 1, 2
    sA2_ = sC
    srd(a, sA2_, pWS, A2_BYTES)
    for r in range(acc, acc+64): a(f"v_mov_b32 v{r}, 0")
    a(f"v_lshrrev_b32 v6, 2, v{vI}"); a(f"v_lshl_add_u32 v6, v{vG}, 2, v6")
    a("v_lshrrev_b32 v7, 1, v6"); a("v_and_b32 v7, 3, v7"); a("v_lshlrev_b32 v7, 5, v7")
    a("v_lshlrev_b32 v6, 7, v6"); a(f"v_and_b32 v10, 3, v{vI}"); a("v_lshl_add_u32 v6, v10, 3, v6")
    a(f"s_lshl_b32 s52, s{sWV}, 12"); a("v_add_u32 v6, s52, v6")
    for cb in range(4):
        a(f"v_xor_b32 v10, {cb*32}, v7"); a(f"v_add_u32 v{vRA+cb}, v6, v10")
    a(f"v_lshlrev_b32 v{vAo}, 4, v0")
    sAk = 56
    a(f"s_lshl_b32 s{sAk}, s{sRG}, 2"); a(f"s_mul_i32 s{sAk}, s{sAk}, {NSTEP2}"); a(f"s_add_u32 s{sAk}, s{sAk}, s{sWV}"); a(f"s_lshl_b32 s{sAk}, s{sAk}, 10")
    a(f"s_add_u32 s57, s{sAk}, {14*4096}"); a(f"s_cmp_eq_u32 s{sWV}, 3"); a("s_cselect_b32 s57, 0x80000000, s57")
    a("s_barrier")
    def wread(dst, r, addr_base_add):
        o = []
        for cb in range(4):
            o.append(f"ds_read_b64_tr_b16 {vr(dst+4*cb,2)}, v{vRA+cb} offset:{(r % 4)*16384}")
            o.append(f"ds_read_b64_tr_b16 {vr(dst+4*cb+2,2)}, v{vRA+cb} offset:{(r % 4)*16384+2048}")
        return o
    for r in range(NWR):
        if r == 4:
            for cb in range(4): a(f"v_add_u32 v{vRA+cb}, 65536, v{vRA+cb}")
        for o in wread(WR+16*r, r, 0): a(o)
    for cb in range(4): a(f"v_subrev_u32 v{vRA+cb}, 65536, v{vRA+cb}")
    a("s_waitcnt lgkmcnt(0)")
    a("s_barrier")
    a("s_barrier")
    stamp(a, 8)
    free = list(AFB); buf = {}; issued = []
    def issue(rho):
        b0 = free.pop(0); buf[rho] = b0; issued.append(rho)
        for b in range(4):
            if rho == 14:
                a(f"s_add_u32 s53, s57, {b*NSTEP2*1024}")
            else:
                a(f"s_add_u32 s53, s{sAk}, {rho*4096 + b*NSTEP2*1024}")
            a(f"buffer_load_dwordx4 {vr(b0+4*b,4)}, v{vAo}, {sr(sA2_,4)}, s53 offen sc1")
    nxt = 0
    while free and nxt < 15: issue(nxt); nxt += 1
    WFs = None
    tail_issued = False
    for r in range(15):
        if r == NWR: a("s_barrier")
        if r >= NWR:
            if r == NWR + 4:
                for cb in range(4): a(f"v_add_u32 v{vRA+cb}, 65536, v{vRA+cb}")
            wf = WFs
            for o in wread(wf, r - NWR, 0): a(o)
        else:
            wf = WR + 16*r
        newer = len(issued) - 1 - issued.index(r)
        extra = 2 if tail_issued else 0
        a(f"s_waitcnt vmcnt({min(63, 4*newer + extra)})")
        if r >= NWR: a("s_waitcnt lgkmcnt(0)")
        stamp(a, 40+r)
        if r == 14: a(f"s_cmp_eq_u32 s{sWV}, 3"); a("s_cbranch_scc1 L_p2done")
        for b in range(4):
            for cb in range(4): a(MF32(acc+(cb*4+b)*4, wf+4*cb, buf[r]+4*b))
        free.append(buf[r])
        if r < NWR: free.append(WR + 16*r)
        if r == NWR - 1: WFs = free.pop(0)
        while free and nxt < 15: issue(nxt); nxt += 1
        if nxt == 15 and not tail_issued and free:
            tail_issued = True
            tb = free.pop(0)
            tail_loads(a, tb)
    a.lab("L_p2done")
    stamp(a, 9)
    a.nop(8)
    a("s_barrier")
    a(f"s_mul_i32 s52, s{sWV}, 17408"); a(f"v_mul_u32_u24 v6, 272, v{vI}"); a(f"v_lshl_add_u32 v6, v{vG}, 4, v6"); a("v_add_u32 v6, s52, v6")
    for cb in range(4):
        for b in range(4):
            a(f"ds_write_b128 v6, {vr(acc+(cb*4+b)*4,4)} offset:{b*16*272 + cb*64}")
    move_tail(a, tb)
    a("s_waitcnt lgkmcnt(0)")
    a("s_branch L_final")

TB = 12
vXO, vRow, vCol, vXD, vB2 = TB, TB+1, TB+2, TB+8, TB+12
def tail_loads(a, tb):
    sXs, sB2_ = sB, sDD
    srd(a, sXs, pX, S*D*2); srd(a, sB2_, pB2, D*2)
    a(f"s_lshl_b32 s52, s{sWV}, 3"); a(f"v_lshrrev_b32 v{tb+1}, 3, v0"); a(f"v_add_u32 v{tb+1}, s52, v{tb+1}"); a(f"v_and_b32 v{tb+2}, 7, v0")
    a(f"s_lshl_b32 s52, s{sRG}, 6"); a(f"v_add_u32 v{tb+3}, s52, v{tb+1}"); a(f"v_lshlrev_b32 v{tb+3}, 10, v{tb+3}")
    a(f"s_lshl_b32 s53, s{sCG}, 7"); a(f"v_lshlrev_b32 v{tb+4}, 4, v{tb+2}"); a(f"v_add_u32 v{tb+4}, s53, v{tb+4}")
    a(f"v_add_u32 v{tb}, v{tb+3}, v{tb+4}")
    a(f"buffer_load_dwordx4 {vr(tb+8,4)}, v{tb}, {sr(sXs,4)}, 0 offen")
    a(f"buffer_load_dwordx4 {vr(tb+12,4)}, v{tb+4}, {sr(sB2_,4)}, 0 offen")
def move_tail(a, tb):
    if tb == TB: return
    a("s_waitcnt vmcnt(0)")
    for k in list(range(3)) + list(range(8, 16)): a(f"v_mov_b32 v{TB+k}, v{tb+k}")

def final(a, END):
    a.lab("L_final")
    a("s_barrier")
    stamp(a, 10)
    srd(a, sA, pOUT, S*D*2)
    a(f"v_mul_u32_u24 v30, 272, v{vRow}"); a(f"v_lshl_add_u32 v30, v{vCol}, 5, v30")
    P = 32
    for w in range(4):
        o = w*17408
        a(f"ds_read_b128 {vr(P+8*w,4)}, v30 offset:{o}"); a(f"ds_read_b128 {vr(P+8*w+4,4)}, v30 offset:{o+16}")
    R = 64
    a("s_waitcnt vmcnt(0)")
    for d in range(4):
        a(f"v_lshlrev_b32 v{R+2*d}, 16, v{vXD+d}"); a(f"v_and_b32 v{R+2*d+1}, s{sMASK}, v{vXD+d}")
        a(f"v_lshlrev_b32 v72, 16, v{vB2+d}"); a(f"v_and_b32 v73, s{sMASK}, v{vB2+d}")
        a(f"v_pk_add_f32 {vr(R+2*d,2)}, {vr(R+2*d,2)}, {vr(72,2)}")
    a("s_waitcnt lgkmcnt(0)")
    for w in range(4):
        for d in range(4):
            a(f"v_pk_add_f32 {vr(R+2*d,2)}, {vr(R+2*d,2)}, {vr(P+8*w+2*d,2)}")
    for d in range(4): a(f"v_cvt_pk_bf16_f32 v{76+d}, v{R+2*d}, v{R+2*d+1}")
    a(f"buffer_store_dwordx4 {vr(76,4)}, v{vXO}, {sr(sA,4)}, 0 offen")
    if PROF:
        a("s_waitcnt vmcnt(0)")
        stamp(a, 12); stamp_rt(a, 13)
        a(f"s_mov_b32 s96, s{pWS}"); a(f"s_and_b32 s97, s{pWS+1}, 0xffff"); a("s_mov_b32 s98, 0x10000000"); a("s_mov_b32 s99, 0x20000")
        a(f"s_lshl_b32 s94, s2, 3"); a(f"s_add_u32 s94, s94, s{sWV}"); a("s_lshl_b32 s94, s94, 8"); a(f"s_add_u32 s94, s94, {0x4000000}")
        a("v_lshlrev_b32 v250, 2, v0")
        a("buffer_store_dword v255, v250, s[96:99], s94 offen")
        a("s_waitcnt vmcnt(0)")

def helper(a):
    a.lab("L_helper")
    sX, sW, sST, sDB = sA, sB, sC, sDD
    sSLW, sKX, sKW, sKWs, sCST, sM0X, sM0W, sHM, sHMUL = 56, 57, 58, 59, 92, 93, 94, 95, 96
    vX0, vX1, vW0, vW1, vHo, vL16 = 3, 4, 8, 9, 5, 7
    a("v_lshrrev_b32 v1, 3, v0"); a("v_and_b32 v2, 7, v0"); a("v_lshrrev_b32 v6, 4, v0")
    a("v_xor_b32 v10, v2, v6"); a("v_lshlrev_b32 v10, 4, v10")
    a(f"s_lshl_b32 s52, s{sH}, 5"); a(f"s_add_u32 s52, s52, s{sR0}")
    a(f"v_add_u32 v{vX0}, s52, v1"); a(f"v_lshl_add_u32 v{vX0}, v{vX0}, 10, v10")
    a(f"v_xor_b32 v{vX1}, 64, v{vX0}"); a(f"v_add_u32 v{vX1}, 8192, v{vX1}")
    a(f"s_lshl_b32 s52, s{sH}, 3"); a(f"s_add_u32 s52, s52, s{sR0}"); a("s_sub_u32 s52, s52, 16")
    a(f"v_add_u32 v{vHo}, s52, v1"); a(f"v_lshl_add_u32 v{vHo}, v{vHo}, 10, v10")
    a(f"s_and_b32 s52, s{sH}, 1"); a("s_lshl_b32 s52, s52, 6"); a(f"v_xor_b32 v{vHo}, s52, v{vHo}")
    a(f"s_lshr_b32 s52, s{sH}, 1"); a(f"s_or_b32 s52, s52, s{sTY}")
    a("s_cmp_eq_u32 s52, 0"); a(f"s_cselect_b32 s{sHMUL}, 1, 0"); a(f"s_lshl_b32 s{sHM}, s{sH}, 10");
    a("s_cmp_eq_u32 s52, 0"); a(f"s_cselect_b32 s{sHM}, s{sHM}, {DUMMY}")
    a(f"s_cselect_b32 s53, 0, 0x80000000"); a(f"s_cmp_eq_u32 s{sRB}, 0"); a("s_cselect_b32 s53, 0x80000000, s53")
    a(f"v_or_b32 v{vHo}, s53, v{vHo}")
    a(f"s_cmp_eq_u32 s{sTY}, 0"); a("s_mov_b32 s53, 2752"); a("s_cselect_b32 s52, 3072, s53")
    a("s_mov_b32 s54, 128"); a(f"s_cselect_b32 s{sCST}, 1024, s54")
    a(f"s_lshl_b32 s{sKWs}, s52, 6")
    a("v_and_b32 v6, 1, v6"); a("v_lshlrev_b32 v6, 1, v6"); a("v_xor_b32 v6, v6, v2"); a("v_lshlrev_b32 v6, 4, v6")
    a(f"s_lshl_b32 s53, s{sH}, 4")
    a(f"v_add_u32 v{vW0}, s53, v1"); a(f"v_mul_u32_u24 v{vW0}, s52, v{vW0}")
    a("s_lshl_b32 s54, s52, 3"); a(f"v_add_u32 v{vW1}, s54, v{vW0}")
    a(f"v_add_u32 v{vW0}, v{vW0}, v6"); a("v_xor_b32 v6, 64, v6"); a(f"v_add_u32 v{vW1}, v{vW1}, v6")
    a(f"s_lshl_b32 s53, s{sGR}, 7"); a(f"s_lshl_b32 s54, s{sFS}, 6"); a(f"s_cmp_eq_u32 s{sTY}, 0"); a(f"s_cselect_b32 s{sKW}, s53, s54")
    a(f"s_lshl_b32 s{sM0X}, s{sH}, 12"); a(f"s_add_u32 s{sM0X}, s{sM0X}, 2048")
    a(f"s_lshl_b32 s{sM0W}, s{sH}, 11"); a(f"s_add_u32 s{sM0W}, s{sM0W}, {WOFF}")
    a(f"v_lshlrev_b32 v{vL16}, 4, v0")
    a(f"s_mov_b32 s{sSLW}, 0"); a(f"s_mov_b32 s{sKX}, 0")
    a("s_waitcnt lgkmcnt(0)")
    srd(a, sX, pX, S*D*2)
    a(f"s_cmp_eq_u32 s{sTY}, 0")
    a(f"s_cselect_b32 s{sW}, s{pWQKV}, s{pW1}"); a(f"s_cselect_b32 s{sW+1}, s{pWQKV+1}, s{pW1+1}")
    a(f"s_mov_b32 s52, {D*F*2}"); a(f"s_cselect_b32 s{sW+2}, {D*3*D*2}, s52")
    a(f"s_and_b32 s{sW+1}, s{sW+1}, 0xffff"); a(f"s_mov_b32 s{sW+3}, 0x20000")
    def dma_round():
        def ld(v, srdr, so): a(f"buffer_load_dwordx4 v{v}, {sr(srdr,4)}, s{so} offen lds")
        a(f"s_add_u32 m0, s{sSLW}, s{sM0W}"); a(f"s_add_u32 s53, s{sKW}, s{sCST}"); ld(vW0, sW, sKW)
        a("s_add_u32 m0, m0, 8192"); a(f"s_add_u32 s54, s53, s{sCST}"); ld(vW0, sW, 53)
        a("s_add_u32 m0, m0, 8192"); a.nop(1); ld(vW0, sW, 54)
        a(f"s_add_u32 m0, s{sSLW}, s{sM0X}"); a(f"s_add_u32 s55, s{sKX}, 16384"); ld(vX0, sX, sKX)
        a("s_add_u32 m0, m0, 1024"); a.nop(1); ld(vX1, sX, sKX)
        a(f"s_add_u32 m0, s{sSLW}, s{sM0W}"); a("s_add_u32 m0, m0, 1024"); a.nop(1); ld(vW1, sW, sKW)
        a("s_add_u32 m0, m0, 8192"); a.nop(1); ld(vW1, sW, 53)
        a("s_add_u32 m0, m0, 8192"); a.nop(1); ld(vW1, sW, 54)
        a(f"s_add_u32 m0, s{sSLW}, s{sM0X}"); a("s_add_u32 m0, m0, 2048"); a.nop(1); ld(vX0, sX, 55)
        a("s_add_u32 m0, m0, 1024"); a.nop(1); ld(vX1, sX, 55)
        a(f"s_mul_i32 s52, s{sSLW}, s{sHMUL}"); a(f"s_add_u32 m0, s52, s{sHM}"); a.nop(1); ld(vHo, sX, sKX)
        a(f"s_add_u32 s{sKX}, s{sKX}, 128"); a(f"s_add_u32 s{sKW}, s{sKW}, s{sKWs}")
        a(f"s_add_u32 s{sSLW}, s{sSLW}, {RS}"); a(f"s_cmp_eq_u32 s{sSLW}, {RS*NR}"); a(f"s_cselect_b32 s{sSLW}, 0, s{sSLW}")
    sNON, sEX = 97, 60
    srd(a, sST, pWS, WS_BYTES)
    stamp(a, 14)
    dma_round()
    stamp(a, 15); dma_round(); stamp(a, 11)
    a(f"s_or_b32 s52, s2, s{sH}"); a("s_cmp_lg_u32 s52, 0"); a("s_cbranch_scc1 L_nonon")
    a("s_memrealtime s[60:61]"); a("s_waitcnt lgkmcnt(0)"); a("s_or_b32 s60, s60, 1")
    a("v_mov_b32 v36, s60"); a("v_mov_b32 v37, 0"); a("s_mov_b64 exec, 1")
    a(f"global_store_dword v37, v36, s[{pDBG}:{pDBG+1}] sc1")
    a("s_mov_b64 exec, -1")
    a.lab("L_nonon")
    a("s_waitcnt vmcnt(11)"); a("s_barrier")
    stamp(a, 2)
    dma_round()
    a(f"s_cmp_lg_u32 s{sH}, 0"); a("s_cbranch_scc1 L_nost")
    a(f"v_add_u32 v36, {PSX}, v{vL16}"); a("ds_read_b128 v[40:43], v36")
    a(f"s_lshl_b32 s52, s{sJ}, 3"); a(f"s_add_u32 s52, s52, s{sR0}"); a("s_lshl_b32 s52, s52, 4"); a(f"s_add_u32 s52, s52, {STATS_OFF}")
    a("s_waitcnt lgkmcnt(0)"); a("s_mov_b64 exec, 0xff")
    a(f"buffer_store_dwordx4 v[40:43], v{vL16}, {sr(sST,4)}, s52 offen sc1")
    a("s_mov_b64 exec, -1")
    a.lab("L_nost")
    for r in range(0, 5):
        a("s_waitcnt vmcnt(11)"); stamp(a, 16+r); a("s_barrier"); stamp(a, 24+r)
        if r == 2:
            a(f"s_cmp_lg_u32 s{sH}, 0"); a("s_cbranch_scc1 L_nf0")
            a(f"v_readfirstlane_b32 s{sNON}, v38"); a.nop(2); a(f"s_cmp_lg_u32 s{sNON}, 0"); a("s_cbranch_scc1 L_non_ok")
            a(f"s_mov_b32 s{sT}, {SPIN_MAX}")
            a("v_mov_b32 v37, 0")
            a.lab("L_non_poll")
            a(f"global_load_dword v38, v37, s[{pDBG}:{pDBG+1}] sc1"); a("s_waitcnt vmcnt(0)"); a(f"v_readfirstlane_b32 s{sNON}, v38"); a.nop(2)
            a(f"s_cmp_lg_u32 s{sNON}, 0"); a("s_cbranch_scc1 L_non_ok")
            a("s_sleep 2"); a(f"s_sub_u32 s{sT}, s{sT}, 1"); a(f"s_cmp_lg_u32 s{sT}, 0"); a("s_cbranch_scc1 L_non_poll")
            a.lab("L_non_ok")
            a(f"v_mov_b32 v39, s{sNON}")
            flag_store(a, 0, sST, 36, 39)
            a.lab("L_nf0")
        if r == 1:
            a(f"s_cmp_lg_u32 s{sH}, 0"); a("s_cbranch_scc1 L_nl")
            a("v_mov_b32 v37, 0"); a(f"global_load_dword v38, v37, s[{pDBG}:{pDBG+1}]")
            a.lab("L_nl")
        dma_round()
        stamp(a, 32+r)
    a("s_waitcnt vmcnt(11)"); stamp(a, 21); a("s_barrier"); stamp(a, 29)
    a(f"s_cmp_lg_u32 s{sH}, 0"); a("s_cbranch_scc1 L_nogather")
    a("v_subrev_u32 v36, 18, v0"); a("v_cmp_gt_u32 vcc, 16, v0"); a.nop(2); a("v_cndmask_b32 v36, v36, v0, vcc")
    a(f"s_lshl_b32 s52, s{sRB}, 4"); a("v_add_u32 v36, s52, v36"); a("v_lshlrev_b32 v36, 7, v36"); a(f"v_add_u32 v36, {FLG_OFF}, v36")
    a(f"s_cmp_eq_u32 s{sRB}, 0"); a(f"s_mov_b32 s{sEX}, 0x3ffff"); a(f"s_cselect_b32 s{sEX}, 0xffff, s{sEX}")
    poll(a, 36, sNON, 38, sEX, sST, "p0")
    a(f"s_sub_u32 s52, s{sR0}, 16"); a("s_lshl_b32 s52, s52, 4"); a(f"s_add_u32 s52, s52, {STATS_OFF}")
    a(f"v_add_u32 v36, s52, v{vL16}")
    a(f"s_cmp_eq_u32 s{sRB}, 0"); a("s_cselect_b32 s53, 16, 0"); a("v_cmp_gt_u32 vcc, s53, v0"); a("v_mov_b32 v37, 0x80000000"); a.nop(1)
    a("v_cndmask_b32 v37, v36, v37, vcc")
    a(f"buffer_load_dwordx4 {vr(40,4)}, v37, {sr(sST,4)}, 0 offen sc1")
    a(f"buffer_load_dwordx4 {vr(44,4)}, v36, {sr(sST,4)}, 0 offen offset:1024 sc1")
    a("s_mov_b64 exec, 0xffff")
    a(f"buffer_load_dwordx4 {vr(48,4)}, v36, {sr(sST,4)}, 0 offen offset:2048 sc1")
    a("s_mov_b64 exec, -1")
    a("v_lshlrev_b32 v36, 2, v0"); a(f"v_add_u32 v36, {TAB}, v36")
    a("s_waitcnt vmcnt(0)")
    for q in range(3):
        if q == 2: a("s_mov_b64 exec, 0xffff")
        for k in range(4): a(f"ds_write_b32 v36, v{40+4*q+k} offset:{q*256 + k*576}")
    a("s_mov_b64 exec, -1")
    a.lab("L_nogather")
    a("s_waitcnt vmcnt(0) lgkmcnt(0)"); stamp(a, 22); a("s_barrier")
    a("s_barrier")
    stamp(a, 3)
    a(f"s_cmp_eq_u32 s{sTY}, 0"); a("s_cbranch_scc1 L_e1a"); a("s_barrier"); a.lab("L_e1a")
    NWR = 7
    sWO_, sW2_ = sA, sC
    srd(a, sWO_, pWO, D*D*2)
    vWo, vAo = 4, 5
    a("v_lshrrev_b32 v6, 4, v0"); a("v_lshlrev_b32 v6, 1, v6"); a("v_and_b32 v8, 7, v0"); a("v_xor_b32 v6, v6, v8")
    a("v_lshlrev_b32 v6, 4, v6"); a("v_lshrrev_b32 v8, 3, v0"); a("v_lshl_add_u32 v6, v8, 10, v6")
    a(f"s_lshl_b32 s52, s{sCG}, 7"); a(f"v_add_u32 v{vWo}, s52, v6")
    a(f"v_lshlrev_b32 v{vAo}, 4, v0")
    srd(a, sW2_, pW2, F*D*2)
    sSL, sWk = 56, 57
    a(f"s_lshl_b32 s{sWk}, s{sH}, 15"); a(f"s_lshl_b32 s{sSL}, s{sH}, 12")
    for r in range(NWR):
        if r == 4: a(f"s_lshl_b32 s{sWk}, s{sH}, 15")
        for q in range(4):
            a(f"s_add_u32 m0, s{sSL}, {r*16384 + q*1024}"); a(f"s_add_u32 s53, s{sWk}, {q*8192}")
            a(f"buffer_load_dwordx4 v{vWo}, {sr(sWO_ if r < 4 else sW2_,4)}, s53 offen lds")
        a(f"s_add_u32 s{sWk}, s{sWk}, {4*32768}")
    a(f"s_cmp_eq_u32 s{sTY}, 1"); a("s_cbranch_scc1 L_e1m"); a("s_barrier"); a.lab("L_e1m")
    HW = 64
    for r in range(NWR, 15):
        for q in range(4):
            a(f"s_add_u32 s53, s{sWk}, {q*8192}")
            a(f"buffer_load_dwordx4 {vr(HW+((r-NWR)*4+q)*4,4)}, v{vWo}, {sr(sW2_,4)}, s53 offen")
        a(f"s_add_u32 s{sWk}, s{sWk}, {4*32768}")
    tail_loads(a, TB)
    stamp(a, 56)
    a("s_barrier")
    stamp(a, 7)
    sFL = sC
    srd(a, sFL, pWS, WS_BYTES)
    a(f"s_cmp_lg_u32 s{sH}, 0"); a("s_cbranch_scc1 L_nf1")
    a(f"v_mov_b32 v37, s{sNON}")
    flag_store(a, 1, sFL, 36, 37)
    a("s_waitcnt vmcnt(1)"); a("s_branch L_nf1b")
    a.lab("L_nf1"); a("s_waitcnt vmcnt(0)"); a.lab("L_nf1b")
    a("s_barrier")
    a("s_barrier")
    a(f"s_cmp_lg_u32 s{sH}, 0"); a("s_cbranch_scc1 L_nf2")
    a(f"s_lshr_b32 s52, s{sRG}, 1"); a("s_lshl_b32 s52, s52, 4"); a("v_add_u32 v36, s52, v0"); a("v_lshlrev_b32 v36, 7, v36"); a(f"v_add_u32 v36, {FLG_OFF+4}, v36")
    a(f"s_mov_b32 s{sEX}, 0xffff")
    stamp(a, 57)
    poll(a, 36, sNON, 38, sEX, sFL, "p1")
    if PROF: a(f"s_sub_u32 s52, {SPIN_MAX}, s52"); a("v_writelane_b32 v255, s52, 58")
    a.lab("L_nf2")
    a("s_barrier")
    stamp(a, 8)
    a(f"v_add_u32 v6, s{sSL}, v{vAo}")
    for r in range(NWR, 15):
        if r == NWR + 4: a("v_add_u32 v6, 65536, v6")
        for q in range(4):
            a(f"ds_write_b128 v6, {vr(HW+((r-NWR)*4+q)*4,4)} offset:{((r-NWR) % 4)*16384 + q*1024}")
    a("s_waitcnt lgkmcnt(0)")
    a("s_barrier")
    a("s_barrier")

def build():
    a = A()
    a(f"; @launch grid=(256,1,1) block=(512,1,1) lds={LDS}")
    a('.amdgcn_target "amdgcn-amd-amdhsa--gfx950"')
    a(".text"); a(f".globl {KN}"); a(".p2align 8"); a(f".type {KN},@function"); a.lab(KN)
    END = "L_end"
    prologue(a, END)
    compute(a)
    helper(a)
    final(a, END)
    a.lab(END); a("s_endpgm")
    a.lab("L_code_end")
    a('.section .rodata,"a"'); a(".p2align 6")
    t = a.text()
    t += f""".amdhsa_kernel {KN}
  .amdhsa_next_free_vgpr 256
  .amdhsa_next_free_sgpr 102
  .amdhsa_accum_offset 256
  .amdhsa_group_segment_fixed_size 0
  .amdhsa_kernarg_size 88
  .amdhsa_user_sgpr_count 2
  .amdhsa_user_sgpr_kernarg_segment_ptr 1
  .amdhsa_system_sgpr_workgroup_id_x 1
.end_amdhsa_kernel
"""
    return t

if __name__ == "__main__":
    out = sys.argv[1] if len(sys.argv) > 1 else "v5.s"
    PROF = len(sys.argv) > 2 and sys.argv[2] == "p"
    open(out, "w").write(build())
```

```python
import sys, math, struct
NAME = "parallel_sum__sliding_local_dilated__mixer_channel_mlp__prompt"
KN = NAME + "_kernel"
def f2u(x): return struct.unpack("<I", struct.pack("<f", x))[0]
def hexf(x): return "0x%08x" % f2u(x)

class A:
    def __init__(s): s.l = []; s.uid = 0
    def __call__(s, t): s.l.append(t)
    def lab(s, n): s.l.append(n + ":")
    def nop(s, n):
        while n > 0:
            k = min(n, 16); s.l.append(f"s_nop {k-1}"); n -= k
    def u(s): s.uid += 1; return s.uid
    def text(s): return "\n".join(s.l) + "\n"

PROF = False
PF1 = True; PF2 = True
def stamp(a, i):
    if PROF: a("s_memtime s[90:91]"); a("s_waitcnt lgkmcnt(0)"); a(f"v_writelane_b32 v255, s90, {i}")
def stamp_dyn(a, sreg, base):
    if PROF:
        a("s_memtime s[90:91]"); a(f"s_add_u32 s89, s{sreg}, {base}"); a("s_mov_b32 m0, s89"); a("s_waitcnt lgkmcnt(0)"); a("v_writelane_b32 v255, s90, m0")
def stamp_rt(a, i):
    if PROF: a("s_memrealtime s[90:91]"); a("s_waitcnt lgkmcnt(0)"); a(f"v_writelane_b32 v255, s90, {i}")

def vr(b, n=1): return f"v{b}" if n == 1 else f"v[{b}:{b+n-1}]"
def sr(b, n=1): return f"s{b}" if n == 1 else f"s[{b}:{b+n-1}]"
def srd(a, d, lo, size):
    a(f"s_mov_b32 s{d}, s{lo}"); a(f"s_and_b32 s{d+1}, s{lo+1}, 0xffff")
    a(f"s_mov_b32 s{d+2}, {size}"); a(f"s_mov_b32 s{d+3}, 0x20000")

S, D, F = 2048, 512, 1376
NSTEP2 = 59
A2_BYTES = 128 * NSTEP2 * 1024
STATS_OFF = 0x800000
FLG_OFF = 0x810000
WS_BYTES = FLG_OFF + 256 * 128
NSLOT = 151552
PSX = 151552 + 64
RS = 43008; NR = 3; WOFF = 18432
TAB = 131072
T_CS = TAB + 2304
DUMMY = TAB + 3072
XB = TAB + 4096
LDS = 163840
BIG = -1e30
C_EXP = 0.25 * math.log2(math.e)
G1 = -2.0 * math.sqrt(2.0 / math.pi) * math.log2(math.e)
G2 = G1 * 0.044715
SPIN_MAX = 1 << 16

pX, pWQKV, pWO, pW1, pB1, pW2, pB2, pOUT, pDBG, pWS = 4, 6, 8, 12, 14, 16, 18, 20, 22, 24
sWV, sRB, sJ, sFS, sNF, sR0, sRG, sCG, sH = 26, 27, 28, 29, 30, 31, 32, 33, 34
sMASK = 35
sTY, sGR = 62, 63
sA, sB, sC, sDD = 36, 40, 44, 48
sT = 52

def MF32(d, a_, b_, c_=None):
    c_ = vr(d, 4) if c_ is None else c_
    return f"v_mfma_f32_16x16x32_bf16 {vr(d,4)}, {vr(a_,4)}, {vr(b_,4)}, {c_}"
def bf16r(a, dst, src):
    a(f"v_cvt_pk_bf16_f32 v{dst}, v{src}, v{src}"); a(f"v_and_b32 v{dst}, s{sMASK}, v{dst}")
def xlane(a, op, xs, ts):
    for sw in ("v_permlane16_swap_b32", "v_permlane32_swap_b32"):
        for x, t in zip(xs, ts): a(f"v_mov_b32 v{t}, v{x}")
        a.nop(max(0, 2 - (len(xs) - 1)))
        for x, t in zip(xs, ts): a(f"{sw} v{x}, v{t}")
        a.nop(max(0, 2 - (len(xs) - 1)))
        for x, t in zip(xs, ts): a(f"{op} v{x}, v{x}, v{t}")
def interleave(a, mf, fill, per=1):
    fi = 0
    for m in mf:
        a(m)
        for _ in range(per):
            if fi < len(fill): a(fill[fi]); fi += 1
    while fi < len(fill): a(fill[fi]); fi += 1

def poll(a, vOff, sExp, vD, sExec, srdreg, name):
    a(f"s_mov_b32 exec_lo, s{sExec}"); a("s_mov_b32 exec_hi, 0")
    a(f"s_mov_b32 s{sT}, {SPIN_MAX}")
    a.lab(f"L_poll_{name}")
    a(f"buffer_load_dword v{vD}, v{vOff}, {sr(srdreg,4)}, 0 offen sc1")
    a("s_waitcnt vmcnt(0)")
    a(f"v_cmp_eq_u32 vcc, s{sExp}, v{vD}")
    a.nop(2)
    a(f"s_cmp_eq_u32 vcc_lo, s{sExec}")
    a(f"s_cbranch_scc1 L_polld_{name}")
    a("s_sleep 2")
    a(f"s_sub_u32 s{sT}, s{sT}, 1"); a(f"s_cmp_lg_u32 s{sT}, 0")
    a(f"s_cbranch_scc1 L_poll_{name}")
    a.lab(f"L_polld_{name}")
    a("s_mov_b64 exec, -1")

def flag_store(a, which, srdreg, vT, vN):
    a(f"s_lshl_b32 s{sT}, s{sRB}, 4"); a(f"s_add_u32 s{sT}, s{sT}, s{sJ}"); a(f"s_lshl_b32 s{sT}, s{sT}, 7"); a(f"s_add_u32 s{sT}, s{sT}, {FLG_OFF + 4*which}")
    a(f"v_mov_b32 v{vT}, s{sT}")
    a("s_mov_b64 exec, 1")
    a(f"buffer_store_dword v{vN}, v{vT}, {sr(srdreg,4)}, 0 offen sc1")
    a("s_mov_b64 exec, -1")

def prologue(a, END):
    a("s_cmp_ge_u32 s2, 256"); a(f"s_cbranch_scc1 {END}")
    stamp_rt(a, 0); stamp(a, 1)
    a("s_load_dwordx16 s[4:19], s[0:1], 0")
    a("s_load_dwordx4 s[20:23], s[0:1], 64")
    a("s_load_dwordx2 s[24:25], s[0:1], 80")
    a("s_getpc_b64 s[98:99]")
    a.lab("L_pc")
    a("v_lshrrev_b32 v1, 6, v0"); a("v_and_b32 v0, 63, v0")
    a(f"v_readfirstlane_b32 s{sWV}, v1")
    a("s_and_b32 s52, s2, 7"); a("s_lshr_b32 s53, s2, 3")
    a(f"s_lshr_b32 s{sRB}, s52, 1"); a(f"s_lshl_b32 s{sRB}, s{sRB}, 2"); a("s_lshr_b32 s54, s53, 3"); a(f"s_add_u32 s{sRB}, s{sRB}, s54")
    a(f"s_bfe_u32 s{sTY}, s53, 0x10002")
    a(f"s_and_b32 s{sGR}, s52, 1"); a(f"s_lshl_b32 s{sGR}, s{sGR}, 2"); a("s_and_b32 s55, s53, 3"); a(f"s_add_u32 s{sGR}, s{sGR}, s55")
    a(f"s_lshl_b32 s{sJ}, s{sTY}, 3"); a(f"s_add_u32 s{sJ}, s{sJ}, s{sGR}")
    a(f"s_lshl_b32 s{sRG}, s52, 2"); a(f"s_add_u32 s{sRG}, s{sRG}, s54"); a(f"s_and_b32 s{sCG}, s53, 7")
    a(f"s_mul_i32 s{sFS}, s{sGR}, 6"); a(f"s_mul_i32 s54, s{sGR}, 5"); a("s_add_u32 s54, s54, 3")
    a(f"s_cmp_lt_u32 s{sGR}, 3"); a(f"s_cselect_b32 s{sFS}, s{sFS}, s54"); a(f"s_cselect_b32 s{sNF}, 6, 5")
    a(f"s_lshl_b32 s{sR0}, s{sRB}, 7")
    a(f"s_mov_b32 s{sMASK}, 0xffff0000")
    a(f"s_and_b32 s{sH}, s{sWV}, 3")
    a(f"s_cmp_ge_u32 s{sWV}, 4"); a("s_cbranch_scc1 L_helper")

def p0_stats(a):
    sX, sST, vL16, vP = sDD, sC, 7, 16
    a(f"v_lshlrev_b32 v{vL16}, 4, v0")
    a(f"s_lshl_b32 s52, s{sJ}, 3"); a(f"s_add_u32 s52, s52, s{sR0}"); a(f"s_lshl_b32 s53, s{sWV}, 1"); a("s_add_u32 s52, s52, s53")
    a("s_lshl_b32 s60, s52, 10"); a("s_lshl_b32 s61, s52, 4")
    a("s_waitcnt lgkmcnt(0)")
    srd(a, sX, pX, S*D*2)
    a(f"buffer_load_dwordx4 {vr(vP,4)}, v{vL16}, {sr(sX,4)}, s60 offen")
    a(f"buffer_load_dwordx4 {vr(vP+4,4)}, v{vL16}, {sr(sX,4)}, s60 offen offset:1024")
    a("s_lshr_b32 s53, s2, 3"); a(f"s_lshl_b32 s54, s{sWV}, 5"); a("s_add_u32 s53, s53, s54")
    a("s_lshl_b32 s53, s53, 10"); a("v_add_u32 v2, s53, v7")
    a("s_mov_b32 s54, L_code_end-L_pc-16"); a("v_min_u32 v2, s54, v2")
    a("global_load_dwordx4 v[248:251], v2, s[98:99]")
    global NPF
    NPF = 1
    return vP

def p0_finish(a, vP, nwait):
    sST, vL16 = sC, 7
    a(f"s_waitcnt vmcnt({nwait})")
    sA_, qA, sB_, qB = 24, 25, 26, 27
    for r in range(24, 28): a(f"v_mov_b32 v{r}, 0")
    a("v_mov_b32 v28, 0x3f803f80")
    for d in range(4):
        a(f"v_dot2c_f32_bf16 v{sA_}, v{vP+d}, v28"); a(f"v_dot2c_f32_bf16 v{qA}, v{vP+d}, v{vP+d}")
        a(f"v_dot2c_f32_bf16 v{sB_}, v{vP+4+d}, v28"); a(f"v_dot2c_f32_bf16 v{qB}, v{vP+4+d}, v{vP+4+d}")
    a.nop(2)
    for rot in (8, 4, 2, 1):
        for x in (sA_, qA, sB_, qB): a(f"v_add_f32_dpp v{x}, v{x}, v{x} row_ror:{rot} row_mask:0xf bank_mask:0xf")
    xlane(a, "v_add_f32", [sA_, qA, sB_, qB], [28, 29, 30, 31])
    a("v_and_b32 v28, 1, v0"); a("v_cmp_eq_u32 vcc, 1, v28"); a.nop(2)
    sm, sq, t0, t1, t2, t3 = 24, 25, 33, 32, 34, 35
    a(f"v_cndmask_b32 v{sm}, v{sA_}, v{sB_}, vcc"); a(f"v_cndmask_b32 v{sq}, v{qA}, v{qB}, vcc")
    a(f"v_mul_f32 v{sm}, {hexf(1/512)}, v{sm}"); a(f"v_mul_f32 v{sq}, {hexf(1/512)}, v{sq}")
    a(f"v_fma_f32 v{sq}, -v{sm}, v{sm}, v{sq}"); a(f"v_max_f32 v{sq}, 0, v{sq}")
    bf16r(a, t0, sm); bf16r(a, t1, sq)
    a(f"v_add_f32 v{t1}, {hexf(1e-5)}, v{t1}"); bf16r(a, t1, t1)
    a(f"v_sqrt_f32 v{t1}, v{t1}"); a.nop(1); bf16r(a, t1, t1)
    a(f"v_rcp_f32 v{t1}, v{t1}"); a.nop(1)
    a(f"v_mul_f32 v{t2}, v{sq}, v{t1}"); a(f"v_mul_f32 v{t2}, v{t2}, v{t1}"); bf16r(a, t2, t2)
    a(f"v_add_f32 v{t2}, {hexf(1e-5)}, v{t2}"); bf16r(a, t2, t2)
    a(f"v_sqrt_f32 v{t2}, v{t2}"); a.nop(1); bf16r(a, t2, t2)
    a(f"v_rcp_f32 v{t2}, v{t2}"); a.nop(1)
    a(f"v_mul_f32 v{t2}, v{t2}, v{t1}"); a(f"v_mul_f32 v{t0}, v{t0}, v{t1}"); a(f"v_mul_f32 v{t3}, v{sm}, v{t2}")
    a(f"s_lshl_b32 s52, s{sWV}, 5"); a(f"s_add_u32 s52, s52, {PSX}"); a(f"v_add_u32 v28, s52, v{vL16}")
    a("s_mov_b64 exec, 3")
    a(f"ds_write_b128 v28, {vr(32,4)}")
    a("s_mov_b64 exec, -1")
    a("s_waitcnt lgkmcnt(0)")

vI, vG, vAX0, vAX1, vCX = 8, 9, 10, 11, 12
vONE = 244; cS = 232
sBASE, sRND = 56, 57

def lane_common(a):
    a(f"v_and_b32 v{vI}, 15, v0"); a(f"v_lshrrev_b32 v{vG}, 4, v0")
    a(f"v_lshrrev_b32 v2, 1, v{vI}"); a(f"v_xor_b32 v2, v2, v{vG}"); a("v_lshlrev_b32 v2, 4, v2")
    a(f"v_lshl_add_u32 v{vAX0}, v{vI}, 7, v2")
    a(f"v_lshrrev_b32 v2, 2, v{vI}"); a(f"v_lshl_add_u32 v2, v{vG}, 3, v2"); a("v_lshlrev_b32 v2, 7, v2")
    a(f"v_and_b32 v3, 3, v{vI}"); a("v_lshl_add_u32 v2, v3, 3, v2"); a(f"v_add_u32 v2, {WOFF}, v2")
    a(f"v_bfe_u32 v3, v{vI}, 3, 1"); a(f"v_and_b32 v1, 1, v{vG}"); a("v_lshl_add_u32 v3, v1, 1, v3"); a("v_lshlrev_b32 v3, 5, v3")
    for i in range(4): a(f"v_mov_b32 v{vONE+i}, 0x3f803f80")

def adv_base():
    return [f"s_add_u32 s{sBASE}, s{sBASE}, {RS}", f"s_cmp_eq_u32 s{sBASE}, {RS*NR}", f"s_cselect_b32 s{sBASE}, 0, s{sBASE}"]

def main_loop(a, tag, mfmas, reads, w0):
    a("s_barrier")
    if w0: stamp(a, 2)
    for o in reads(0, 0): a(o)
    a("s_waitcnt lgkmcnt(0)")
    a.lab(f"L_cloop{tag}")
    interleave(a, mfmas(0), reads(1, 1))
    a("s_waitcnt lgkmcnt(0)"); stamp_dyn(a, sRND, 16); a("s_barrier")
    stamp_dyn(a, sRND, 24)
    interleave(a, mfmas(1), adv_base() + reads(0, 0))
    a(f"s_add_u32 s{sRND}, s{sRND}, 1"); a(f"s_cmp_lt_u32 s{sRND}, 8")
    a("s_waitcnt lgkmcnt(0)")
    a(f"s_cbranch_scc1 L_cloop{tag}")
    stamp(a, 3)
    a("s_waitcnt vmcnt(0)")
    a.nop(8)

def conv(a, acc, dst, r, m, cs, layout_b, t=4):
    for h in range(2):
        tp = t + 2*h
        if not layout_b:
            a(f"v_pk_mul_f32 {vr(tp,2)}, {vr(cs+2*h,2)}, {vr(m & ~1,2)} op_sel:[0,{m&1}] op_sel_hi:[1,{m&1}]")
            a(f"v_pk_fma_f32 {vr(tp,2)}, {vr(acc+2*h,2)}, {vr(r & ~1,2)}, {vr(tp,2)} op_sel:[0,{r&1},0] op_sel_hi:[1,{r&1},1] neg_lo:[0,0,1] neg_hi:[0,0,1]")
        else:
            a(f"v_pk_mul_f32 {vr(tp,2)}, {vr(m+2*h,2)}, {vr(cs,2)} op_sel:[0,0] op_sel_hi:[1,0]")
            a(f"v_pk_fma_f32 {vr(tp,2)}, {vr(acc+2*h,2)}, {vr(r+2*h,2)}, {vr(tp,2)} neg_lo:[0,0,1] neg_hi:[0,0,1]")
    for h in range(2): a(f"v_cvt_pk_bf16_f32 v{dst+h}, v{t+2*h}, v{t+2*h+1}")

def compute_A(a):
    XA, WA = [32, 68], [104, 116]
    aQ, aK, aV = 128, 160, 196
    vAW, vCW = 13, 14
    sWS_ = sA
    a.lab("L_typeA")
    lane_common(a)
    a(f"v_xor_b32 v{vAX1}, 64, v{vAX0}")
    a(f"s_lshl_b32 s52, s{sWV}, 5"); a("v_xor_b32 v3, s52, v3"); a(f"v_add_u32 v{vAW}, v2, v3")
    for r in range(aQ, cS + 12): a(f"v_mov_b32 v{r}, 0")
    a(f"s_mov_b32 s{sBASE}, 0"); a(f"s_mov_b32 s{sRND}, 0")
    srd(a, sWS_, pWS, A2_BYTES)
    p0_finish(a, 16, NPF)
    def reads(buf, sub):
        o = [f"v_add_u32 v{vCX}, s{sBASE}, v{vAX1 if sub else vAX0}"]
        if sub == 0: o.append(f"v_add_u32 v{vCW}, s{sBASE}, v{vAW}")
        for p in range(3):
            o.append(f"ds_read_b64_tr_b16 {vr(WA[buf]+4*p,2)}, v{vCW} offset:{p*8192+sub*4096}")
            o.append(f"ds_read_b64_tr_b16 {vr(WA[buf]+4*p+2,2)}, v{vCW} offset:{p*8192+sub*4096+512}")
        for t in range(9): o.append(f"ds_read_b128 {vr(XA[buf]+4*t,4)}, v{vCX} offset:{t*2048}")
        return o
    def mfmas(buf):
        X, W = XA[buf], WA[buf]
        mf = []
        for t in range(9):
            mf.append(MF32(aK+4*t, W+4, X+4*t)); mf.append(MF32(aV+4*t, X+4*t, W+8))
            if t >= 1: mf.append(MF32(aQ+4*(t-1), W, X+4*t))
        mf += [MF32(cS, W, vONE), MF32(cS+4, W+4, vONE), MF32(cS+8, vONE, W+8)]
        return mf
    main_loop(a, "A", mfmas, reads, True)
    stamp(a, 4)
    vTA, vTB = 13, 14
    a(f"v_lshlrev_b32 v{vTA}, 2, v{vI}"); a(f"v_add_u32 v{vTA}, {TAB}, v{vTA}")
    a(f"v_lshlrev_b32 v{vTB}, 4, v{vG}"); a(f"v_add_u32 v{vTB}, {TAB}, v{vTB}")
    RA, MA = 32, 42
    RB_, MB_ = [52, 56], [60, 64]
    for t in range(9): a(f"ds_read_b32 v{RA+t}, v{vTA} offset:{t*64}")
    a(f"ds_read_b128 {vr(RB_[0],4)}, v{vTB}"); a(f"ds_read_b128 {vr(MB_[0],4)}, v{vTB} offset:576")
    a("s_waitcnt lgkmcnt(4)")
    for t in range(9): a(f"ds_read_b32 v{MA+t}, v{vTA} offset:{576+t*64}")
    bC, bP, bPF = 68, 72, 76
    Mc0, Mc1, Mp0, Mp1 = 80, 81, 82, 83
    tt = 84
    a(f"v_mov_b32 v{tt+3}, {hexf(BIG)}")
    for r in range(4):
        a(f"v_lshl_add_u32 v{tt}, v{vG}, 2, {r}"); a(f"v_sub_u32 v{tt}, v{vI}, v{tt}")
        a(f"v_and_b32 v{tt+1}, 1, v{tt}")
        a(f"v_cmp_eq_u32 vcc, 0, v{tt+1}"); a(f"v_cmp_le_i32 s[52:53], 0, v{tt}")
        hm = "0xffff0000" if (r & 1) else "0xffff"
        a(f"v_mov_b32 v{tt+2}, {hm}"); a.nop(1)
        a("s_and_b64 s[54:55], vcc, s[52:53]"); a("s_andn2_b64 s[58:59], vcc, s[52:53]")
        a(f"v_cndmask_b32 v{bC+r}, v{tt+3}, 0, s[54:55]"); a(f"v_cndmask_b32 v{bP+r}, v{tt+3}, 0, s[58:59]")
        mc, mp = (Mc0, Mp0) if r < 2 else (Mc1, Mp1)
        z = "0" if (r & 1) == 0 else None
        a(f"v_cndmask_b32 v{mc}, {z or 'v%d' % mc}, v{tt+2}, s[54:55]"); a(f"v_cndmask_b32 v{mp}, {z or 'v%d' % mp}, v{tt+2}, s[58:59]")
    a(f"s_cmp_eq_u32 s{sRB}, 0"); a("s_cselect_b64 vcc, -1, 0")
    for r in range(4): a(f"v_cndmask_b32 v{bPF+r}, v{bP+r}, v{tt+3}, vcc")
    a("s_waitcnt lgkmcnt(0)")
    Kb, Vb, Qb = aK, aV, aQ
    for t in range(9):
        if t < 8:
            a(f"ds_read_b128 {vr(RB_[(t+1)&1],4)}, v{vTB} offset:{(t+1)*64}"); a(f"ds_read_b128 {vr(MB_[(t+1)&1],4)}, v{vTB} offset:{576+(t+1)*64}")
        conv(a, aK+4*t, Kb+2*t, RA+t, MA+t, cS+4, False)
        if t >= 1: conv(a, aQ+4*(t-1), Qb+2*(t-1), RA+t, MA+t, cS, False)
        if t > 0: a("s_waitcnt lgkmcnt(2)" if t < 8 else "s_waitcnt lgkmcnt(0)")
        conv(a, aV+4*t, Vb+2*t, RB_[t&1], MB_[t&1], cS+8, True)
    a(f"s_mov_b32 s54, {hexf(C_EXP)}")
    Sr, Tr, Pr, Or = 88, 144, 178, 214
    for b in range(2):
        U = range(4)
        for u in U:
            gu = 4*b + u; t = gu + 1
            bp = bPF if gu == 0 else bP
            a(f"v_mfma_f32_16x16x16_bf16 {vr(Sr+8*u,4)}, {vr(Kb+2*(t-1),2)}, {vr(Qb+2*gu,2)}, {vr(bp,4)}")
            a(f"v_mfma_f32_16x16x16_bf16 {vr(Sr+8*u+4,4)}, {vr(Kb+2*t,2)}, {vr(Qb+2*gu,2)}, {vr(bC,4)}")
        a.nop(4)
        for u in U:
            Sp, Sc, a0, a1 = Sr+8*u, Sr+8*u+4, Tr+4*u, Tr+4*u+1
            a(f"v_max3_f32 v{a0}, v{Sp}, v{Sp+1}, v{Sc}"); a(f"v_max3_f32 v{a1}, v{Sp+2}, v{Sp+3}, v{Sc+2}")
            a(f"v_max_f32 v{a0}, v{a0}, v{Sc+1}"); a(f"v_max_f32 v{a1}, v{a1}, v{Sc+3}")
            a(f"v_max_f32 v{Tr+4*u+2}, v{a0}, v{a1}")
        xlane(a, "v_max_f32", [Tr+4*u+2 for u in U], [Tr+4*u+3 for u in U])
        for u in U: a(f"v_mul_f32 v{Tr+4*u+2}, s54, v{Tr+4*u+2}")
        for u in U:
            for k in range(2): a(f"v_fma_f32 v{Tr+4*u+k}, v{Tr+4*u+k}, s54, -v{Tr+4*u+2}")
        for u in U:
            for k in range(2): a(f"v_exp_f32 v{Tr+4*u+k}, v{Tr+4*u+k}")
        for u in U:
            for k in range(2): a(f"v_cvt_pk_bf16_f32 v{Tr+4*u+k}, v{Tr+4*u+k}, v{Tr+4*u+k}")
        for u in U:
            P = Pr+4*u; a0, a1 = Tr+4*u, Tr+4*u+1
            a(f"v_and_b32 v{P}, v{a0}, v{Mp0}"); a(f"v_and_b32 v{P+1}, v{a1}, v{Mp1}")
            a(f"v_and_b32 v{P+2}, v{a0}, v{Mc0}"); a(f"v_and_b32 v{P+3}, v{a1}, v{Mc1}")
        a.nop(2)
        for u in U:
            t = 4*b + u + 1
            a(MF32(Sr+8*u, vONE, Pr+4*u, "0")); a(MF32(Sr+8*u+4, Vb+2*(t-1), Pr+4*u, "0"))
        a.nop(4)
        for u in U: a(f"v_rcp_f32 v{Sr+8*u}, v{Sr+8*u}")
        for u in U:
            for k in range(4): a(f"v_mul_f32 v{Sr+8*u+4+k}, v{Sr+8*u+4+k}, v{Sr+8*u}")
        for u in U:
            for k in range(2): a(f"v_cvt_pk_bf16_f32 v{Or+2*(4*b+u)+k}, v{Sr+8*u+4+2*k}, v{Sr+8*u+4+2*k+1}")
    stamp(a, 5)
    a(f"s_lshr_b32 s52, s{sWV}, 1"); a("s_lshl_b32 s52, s52, 13"); a(f"s_add_u32 s52, s52, {XB}")
    a(f"s_and_b32 s53, s{sWV}, 1"); a("s_lshl_b32 s54, s53, 3"); a("s_add_u32 s54, s54, s52")
    a("v_lshlrev_b32 v15, 4, v0"); a("v_add_u32 v2, s54, v15")
    for u in range(8): a(f"ds_write_b64 v2, {vr(Or+2*u,2)} offset:{u*1024}")
    a("s_lshl_b32 s54, s53, 12"); a("s_add_u32 s54, s54, s52"); a("v_add_u32 v3, s54, v15")
    a("s_waitcnt lgkmcnt(0)"); a("s_barrier")
    for u in range(4): a(f"ds_read_b128 {vr(88+4*u,4)}, v3 offset:{u*1024}")
    a(f"s_lshl_b32 s52, s{sRB}, 3"); a("s_lshl_b32 s54, s53, 2"); a("s_add_u32 s52, s52, s54"); a(f"s_mul_i32 s52, s52, {NSTEP2}")
    a(f"s_lshl_b32 s54, s{sGR}, 1"); a("s_add_u32 s52, s52, s54"); a(f"s_lshr_b32 s54, s{sWV}, 1"); a("s_add_u32 s52, s52, s54"); a("s_lshl_b32 s52, s52, 10")
    for u in range(4):
        a(f"s_waitcnt lgkmcnt({3-u})")
        a(f"buffer_store_dwordx4 {vr(88+4*u,4)}, v15, {sr(sWS_,4)}, s52 offen sc1")
        if u < 3: a(f"s_add_u32 s52, s52, {NSTEP2*1024}")
    stamp(a, 6)
    a("s_branch L_p1done")

def compute_M(a):
    XM, WM = [32, 48], [64, 88]
    aF = 128
    vAW, vCW = 13, 112
    vAWb = 116
    vB1 = 16
    sWS_, sB1_ = sA, sB
    a.lab("L_typeM")
    lane_common(a)
    a(f"s_lshr_b32 s52, s{sWV}, 1"); a("s_lshl_b32 s52, s52, 13"); a("s_add_u32 s52, s52, 2048")
    a(f"v_add_u32 v{vAX0}, s52, v{vAX0}"); a(f"v_xor_b32 v{vAX1}, 64, v{vAX0}")
    for cb in range(4):
        a(f"v_xor_b32 v1, {cb*32}, v3"); a(f"v_add_u32 v{vAWb+cb}, v2, v1")
    for r in range(aF, cS + 12): a(f"v_mov_b32 v{r}, 0")
    a(f"s_mov_b32 s{sBASE}, 0"); a(f"s_mov_b32 s{sRND}, 0")
    srd(a, sWS_, pWS, A2_BYTES); srd(a, sB1_, pB1, F * 2)
    p0_finish(a, 16, NPF)
    a(f"s_and_b32 s52, s{sWV}, 1"); a("s_mul_i32 s52, s52, 3"); a(f"s_add_u32 s52, s52, s{sFS}"); a("s_lshl_b32 s52, s52, 6")
    a(f"v_lshlrev_b32 v2, 3, v{vG}")
    for k in range(6): a(f"buffer_load_dwordx2 {vr(vB1+2*k,2)}, v2, {sr(sB1_,4)}, s52 offen offset:{k*32}")
    for w in range(1, 4):
        a(f"s_cmp_eq_u32 s{sWV}, {w}"); a(f"s_cbranch_scc1 L_mv{w}")
    for w in range(4):
        ch, rh = w & 1, w >> 1
        a.lab(f"L_mv{w}")
        def reads(buf, sub):
            o = [f"v_add_u32 v{vCX}, s{sBASE}, v{vAX1 if sub else vAX0}"]
            cbs = sorted(set((6*ch + k) & 3 for k in range(6)))
            if sub == 0:
                for cb in cbs: o.append(f"v_add_u32 v{vCW+cb}, s{sBASE}, v{vAWb+cb}")
            for k in range(6):
                cg = 6*ch + k; q, cb = cg >> 2, cg & 3
                o.append(f"ds_read_b64_tr_b16 {vr(WM[buf]+4*k,2)}, v{vCW+cb} offset:{q*8192+sub*4096}")
                o.append(f"ds_read_b64_tr_b16 {vr(WM[buf]+4*k+2,2)}, v{vCW+cb} offset:{q*8192+sub*4096+512}")
            for t in range(4): o.append(f"ds_read_b128 {vr(XM[buf]+4*t,4)}, v{vCX} offset:{t*2048}")
            return o
        def mfmas(buf):
            X, W = XM[buf], WM[buf]
            mf = []
            for k in range(6):
                for t in range(4): mf.append(MF32(aF + ((k >> 1)*4 + t)*8 + 4*(k & 1), W+4*k, X+4*t))
            for e in range(3): mf.append(MF32(cS+4*e, W+4*(3*rh+e), vONE))
            return mf
        main_loop(a, f"M{w}", mfmas, reads, w == 0)
        a(f"v_lshlrev_b32 v2, 4, v{vG}"); a(f"v_add_u32 v2, {T_CS}, v2")
        a("s_mov_b32 exec_lo, 0x00010001"); a("s_mov_b32 exec_hi, 0x00010001")
        for e in range(3): a(f"ds_write_b128 v2, {vr(cS+4*e,4)} offset:{(6*ch+3*rh+e)*64}")
        a("s_mov_b64 exec, -1")
        if w < 3: a("s_branch L_mepi")
    a.lab("L_mepi")
    a("s_waitcnt lgkmcnt(0)"); a("s_barrier")
    stamp(a, 4)
    CS, B1, RR_, MR_ = 32, 56, 80, 84
    a(f"s_lshr_b32 s52, s{sWV}, 1"); a("s_lshl_b32 s52, s52, 8")
    a(f"v_lshl_add_u32 v2, v{vI}, 2, s52"); a(f"v_add_u32 v2, {TAB + 64}, v2")
    for t in range(4):
        a(f"ds_read_b32 v{RR_+t}, v2 offset:{1152+t*64}"); a(f"ds_read_b32 v{MR_+t}, v2 offset:{1728+t*64}")
    a(f"s_and_b32 s53, s{sWV}, 1"); a("s_mul_i32 s54, s53, 384"); a(f"v_lshl_add_u32 v3, v{vG}, 4, s54"); a(f"v_add_u32 v3, {T_CS}, v3")
    for k in range(6): a(f"ds_read_b128 {vr(CS+4*k,4)}, v3 offset:{k*64}")
    for k in range(12):
        a(f"v_lshlrev_b32 v{B1+2*k}, 16, v{vB1+k}"); a(f"v_and_b32 v{B1+2*k+1}, s{sMASK}, v{vB1+k}")
    sC2, kC1 = 60, 112
    a(f"s_mov_b32 s{sC2}, {hexf(G2)}"); a(f"s_mov_b32 s{sC2+1}, {hexf(G2)}")
    a(f"v_mov_b32 v{kC1}, {hexf(G1)}"); a(f"v_mov_b32 v{kC1+1}, {hexf(G1)}")
    a("v_lshlrev_b32 v15, 4, v0")
    a(f"s_lshr_b32 s52, s{sWV}, 1"); a("s_lshl_b32 s52, s52, 2"); a(f"s_lshl_b32 s54, s{sRB}, 3"); a("s_add_u32 s52, s52, s54"); a(f"s_mul_i32 s52, s52, {NSTEP2}")
    a("s_mul_i32 s54, s53, 3"); a("s_add_u32 s52, s52, s54"); a(f"s_add_u32 s52, s52, s{sFS}"); a("s_add_u32 s52, s52, 16"); a("s_lshl_b32 s52, s52, 10")
    a(f"s_sub_u32 s55, s{sNF}, s54")
    a("s_waitcnt lgkmcnt(0)")
    for sp in range(3):
        if sp == 2:
            a("s_cmp_lt_u32 s55, 3"); a("s_cbranch_scc1 L_gelu_done")
        for t in range(4):
            g = sp*4 + t
            o = 104 + 4*(g & 1)
            r, m = RR_+t, MR_+t
            cs, b1, acc = CS + 8*sp, B1 + 8*sp, aF + 8*g
            T = 88
            for p in range(4):
                u = T + 2*p
                a(f"v_pk_fma_f32 {vr(u,2)}, {vr(cs+2*p,2)}, {vr(m&~1,2)}, {vr(b1+2*p,2)} op_sel:[0,{m&1},0] op_sel_hi:[1,{m&1},1] neg_lo:[0,1,0] neg_hi:[0,1,0]")
            for p in range(4):
                u = T + 2*p
                a(f"v_pk_fma_f32 {vr(u,2)}, {vr(acc+2*p,2)}, {vr(r&~1,2)}, {vr(u,2)} op_sel:[0,{r&1},0] op_sel_hi:[1,{r&1},1]")
            for p in range(4): a(f"v_pk_mul_f32 {vr(T+8+2*p,2)}, {vr(T+2*p,2)}, {vr(T+2*p,2)}")
            for p in range(4): a(f"v_pk_fma_f32 {vr(T+8+2*p,2)}, {vr(T+8+2*p,2)}, {sr(sC2,2)}, {vr(kC1,2)}")
            for p in range(4): a(f"v_pk_mul_f32 {vr(T+8+2*p,2)}, {vr(T+8+2*p,2)}, {vr(T+2*p,2)}")
            for p in range(8): a(f"v_exp_f32 v{T+8+p}, v{T+8+p}")
            for p in range(4): a(f"v_pk_add_f32 {vr(T+8+2*p,2)}, {vr(T+8+2*p,2)}, 1.0 op_sel_hi:[1,0]")
            for p in range(8): a(f"v_rcp_f32 v{T+8+p}, v{T+8+p}")
            for p in range(4): a(f"v_pk_mul_f32 {vr(T+8+2*p,2)}, {vr(T+8+2*p,2)}, {vr(T+2*p,2)}")
            for p in range(4): a(f"v_cvt_pk_bf16_f32 v{o+p}, v{T+8+2*p}, v{T+8+2*p+1}")
            a(f"s_add_u32 s53, s52, {(t*NSTEP2+sp)*1024}")
            a(f"buffer_store_dwordx4 {vr(o,4)}, v15, {sr(sWS_,4)}, s53 offen sc1")
    a.lab("L_gelu_done")
    stamp(a, 6)

def compute(a):
    p0_stats(a)
    a(f"s_cmp_eq_u32 s{sTY}, 1"); a("s_cbranch_scc1 L_typeM")
    compute_A(a)
    compute_M(a)
    a.lab("L_p1done")
    a("s_waitcnt vmcnt(0)"); stamp(a, 33); a("s_barrier")
    stamp(a, 7)
    NWR = 7
    AFB = [12, 28, 44, 60]; WR = 76; acc = 188
    vAo, vRA = 1, 2
    sA2_ = sC
    srd(a, sA2_, pWS, A2_BYTES)
    for r in range(acc, acc+64): a(f"v_mov_b32 v{r}, 0")
    a(f"v_lshrrev_b32 v6, 2, v{vI}"); a(f"v_lshl_add_u32 v6, v{vG}, 2, v6")
    a("v_lshrrev_b32 v7, 1, v6"); a("v_and_b32 v7, 3, v7"); a("v_lshlrev_b32 v7, 5, v7")
    a("v_lshlrev_b32 v6, 7, v6"); a(f"v_and_b32 v10, 3, v{vI}"); a("v_lshl_add_u32 v6, v10, 3, v6")
    a(f"s_lshl_b32 s52, s{sWV}, 12"); a("v_add_u32 v6, s52, v6")
    for cb in range(4):
        a(f"v_xor_b32 v10, {cb*32}, v7"); a(f"v_add_u32 v{vRA+cb}, v6, v10")
    a(f"v_lshlrev_b32 v{vAo}, 4, v0")
    sAk, sOff = 56, 58
    a(f"s_lshl_b32 s{sAk}, s{sRG}, 2"); a(f"s_mul_i32 s{sAk}, s{sAk}, {NSTEP2}"); a(f"s_add_u32 s{sAk}, s{sAk}, s{sWV}"); a(f"s_lshl_b32 s{sAk}, s{sAk}, 10")
    a(f"s_add_u32 s57, s{sAk}, {14*4096}"); a(f"s_cmp_eq_u32 s{sWV}, 3"); a("s_cselect_b32 s57, 0x80000000, s57")
    a("s_barrier")
    def wread(dst, r, addr_base_add):
        o = []
        for cb in range(4):
            o.append(f"ds_read_b64_tr_b16 {vr(dst+4*cb,2)}, v{vRA+cb} offset:{(r % 4)*16384}")
            o.append(f"ds_read_b64_tr_b16 {vr(dst+4*cb+2,2)}, v{vRA+cb} offset:{(r % 4)*16384+2048}")
        return o
    for r in range(NWR):
        if r == 4:
            for cb in range(4): a(f"v_add_u32 v{vRA+cb}, 65536, v{vRA+cb}")
        for o in wread(WR+16*r, r, 0): a(o)
    for cb in range(4): a(f"v_subrev_u32 v{vRA+cb}, 65536, v{vRA+cb}")
    a("s_waitcnt lgkmcnt(0)")
    a("s_barrier")
    a("s_barrier")
    stamp(a, 8)
    free = list(AFB); buf = {}; issued = []
    def issue(sl):
        b0 = free.pop(0); buf[sl] = b0; issued.append(sl)
        for b in range(4):
            if sl == 14: a(f"s_add_u32 s{sOff}, s57, {b*NSTEP2*1024}")
            else: a(f"s_add_u32 s{sOff}, s{sAk}, {sl*4096 + b*NSTEP2*1024}")
            a(f"buffer_load_dwordx4 {vr(b0+4*b,4)}, v{vAo}, {sr(sA2_,4)}, s{sOff} offen sc1")
    nxt = 0
    while free and nxt < 15: issue(nxt); nxt += 1
    WFs = []
    tail_issued = False
    def lds_w(r):
        if r - NWR == 4:
            for cb in range(4): a(f"v_add_u32 v{vRA+cb}, 65536, v{vRA+cb}")
        for o in wread(WFs[(r - NWR) & 1], r - NWR, 0): a(o)
    for r in range(15):
        wf = WR + 16*r if r < NWR else WFs[(r - NWR) & 1]
        newer = len(issued) - 1 - issued.index(r)
        extra = 2 if tail_issued else 0
        a(f"s_waitcnt vmcnt({min(63, 4*newer + extra)})")
        if r >= NWR: a("s_waitcnt lgkmcnt(0)")
        stamp(a, 40+r)
        if r == NWR - 1:
            assert len(WFs) >= 1
            a("s_barrier")
        if NWR <= r + 1 < 15: lds_w(r + 1)
        for b in range(4):
            for cb in range(4): a(MF32(acc+(cb*4+b)*4, wf+4*cb, buf[r]+4*b))
        if r == 0: a("s_barrier"); stamp(a, 59)
        free.append(buf[r])
        if r < NWR: free.append(WR + 16*r)
        while free and nxt < 15: issue(nxt); nxt += 1
        while nxt == 15 and len(WFs) < 2 and free: WFs.append(free.pop(0))
        if nxt == 15 and len(WFs) == 2 and not tail_issued and len(free) >= 1:
            tail_issued = True
            tb = free.pop(0)
            tail_loads(a, tb)
    a.lab("L_p2done")
    stamp(a, 9)
    a.nop(8)
    a("s_barrier")
    a(f"s_mul_i32 s52, s{sWV}, 17408"); a(f"v_mul_u32_u24 v6, 272, v{vI}"); a(f"v_lshl_add_u32 v6, v{vG}, 4, v6"); a("v_add_u32 v6, s52, v6")
    for cb in range(4):
        for b in range(4):
            a(f"ds_write_b128 v6, {vr(acc+(cb*4+b)*4,4)} offset:{b*16*272 + cb*64}")
    move_tail(a, tb)
    a("s_waitcnt lgkmcnt(0)")
    a("s_branch L_final")

TB = 12
vXO, vRow, vCol, vXD, vB2 = TB, TB+1, TB+2, TB+8, TB+12
def tail_loads(a, tb):
    sXs, sB2_ = sB, sDD
    srd(a, sXs, pX, S*D*2); srd(a, sB2_, pB2, D*2)
    a(f"s_lshl_b32 s52, s{sWV}, 3"); a(f"v_lshrrev_b32 v{tb+1}, 3, v0"); a(f"v_add_u32 v{tb+1}, s52, v{tb+1}"); a(f"v_and_b32 v{tb+2}, 7, v0")
    a(f"s_lshl_b32 s52, s{sRG}, 6"); a(f"v_add_u32 v{tb+3}, s52, v{tb+1}"); a(f"v_lshlrev_b32 v{tb+3}, 10, v{tb+3}")
    a(f"s_lshl_b32 s53, s{sCG}, 7"); a(f"v_lshlrev_b32 v{tb+4}, 4, v{tb+2}"); a(f"v_add_u32 v{tb+4}, s53, v{tb+4}")
    a(f"v_add_u32 v{tb}, v{tb+3}, v{tb+4}")
    a(f"buffer_load_dwordx4 {vr(tb+8,4)}, v{tb}, {sr(sXs,4)}, 0 offen")
    a(f"buffer_load_dwordx4 {vr(tb+12,4)}, v{tb+4}, {sr(sB2_,4)}, 0 offen")
def move_tail(a, tb):
    if tb == TB: return
    a("s_waitcnt vmcnt(0)")
    for k in list(range(3)) + list(range(8, 16)): a(f"v_mov_b32 v{TB+k}, v{tb+k}")

def final(a, END):
    a.lab("L_final")
    a("s_barrier")
    stamp(a, 10)
    srd(a, sA, pOUT, S*D*2)
    a(f"v_mul_u32_u24 v30, 272, v{vRow}"); a(f"v_lshl_add_u32 v30, v{vCol}, 5, v30")
    P = 32
    for w in range(4):
        o = w*17408
        a(f"ds_read_b128 {vr(P+8*w,4)}, v30 offset:{o}"); a(f"ds_read_b128 {vr(P+8*w+4,4)}, v30 offset:{o+16}")
    R = 64
    a("s_waitcnt vmcnt(0)")
    for d in range(4):
        a(f"v_lshlrev_b32 v{R+2*d}, 16, v{vXD+d}"); a(f"v_and_b32 v{R+2*d+1}, s{sMASK}, v{vXD+d}")
        a(f"v_lshlrev_b32 v72, 16, v{vB2+d}"); a(f"v_and_b32 v73, s{sMASK}, v{vB2+d}")
        a(f"v_pk_add_f32 {vr(R+2*d,2)}, {vr(R+2*d,2)}, {vr(72,2)}")
    a("s_waitcnt lgkmcnt(0)")
    for w in range(4):
        for d in range(4):
            a(f"v_pk_add_f32 {vr(R+2*d,2)}, {vr(R+2*d,2)}, {vr(P+8*w+2*d,2)}")
    for d in range(4): a(f"v_cvt_pk_bf16_f32 v{76+d}, v{R+2*d}, v{R+2*d+1}")
    a(f"buffer_store_dwordx4 {vr(76,4)}, v{vXO}, {sr(sA,4)}, 0 offen")
    if PROF:
        a("s_waitcnt vmcnt(0)")
        stamp(a, 12); stamp_rt(a, 13)
        a(f"s_mov_b32 s96, s{pWS}"); a(f"s_and_b32 s97, s{pWS+1}, 0xffff"); a("s_mov_b32 s98, 0x10000000"); a("s_mov_b32 s99, 0x20000")
        a(f"s_lshl_b32 s94, s2, 3"); a(f"s_add_u32 s94, s94, s{sWV}"); a("s_lshl_b32 s94, s94, 8"); a(f"s_add_u32 s94, s94, {0x4000000}")
        a("v_lshlrev_b32 v250, 2, v0")
        a("buffer_store_dword v255, v250, s[96:99], s94 offen")
        a("s_waitcnt vmcnt(0)")

def helper(a):
    a.lab("L_helper")
    sX, sW, sST, sDB = sA, sB, sC, sDD
    sSLW, sKX, sKW, sKWs, sCST, sM0X, sM0W, sHM, sHMUL = 56, 57, 58, 59, 92, 93, 94, 95, 96
    vX0, vX1, vW0, vW1, vHo, vL16 = 3, 4, 8, 9, 5, 7
    a("v_lshrrev_b32 v1, 3, v0"); a("v_and_b32 v2, 7, v0"); a("v_lshrrev_b32 v6, 4, v0")
    a("v_xor_b32 v10, v2, v6"); a("v_lshlrev_b32 v10, 4, v10")
    a(f"s_lshl_b32 s52, s{sH}, 5"); a(f"s_add_u32 s52, s52, s{sR0}")
    a(f"v_add_u32 v{vX0}, s52, v1"); a(f"v_lshl_add_u32 v{vX0}, v{vX0}, 10, v10")
    a(f"v_xor_b32 v{vX1}, 64, v{vX0}"); a(f"v_add_u32 v{vX1}, 8192, v{vX1}")
    a(f"s_lshl_b32 s52, s{sH}, 3"); a(f"s_add_u32 s52, s52, s{sR0}"); a("s_sub_u32 s52, s52, 16")
    a(f"v_add_u32 v{vHo}, s52, v1"); a(f"v_lshl_add_u32 v{vHo}, v{vHo}, 10, v10")
    a(f"s_and_b32 s52, s{sH}, 1"); a("s_lshl_b32 s52, s52, 6"); a(f"v_xor_b32 v{vHo}, s52, v{vHo}")
    a(f"s_lshr_b32 s52, s{sH}, 1"); a(f"s_or_b32 s52, s52, s{sTY}")
    a("s_cmp_eq_u32 s52, 0"); a(f"s_cselect_b32 s{sHMUL}, 1, 0"); a(f"s_lshl_b32 s{sHM}, s{sH}, 10");
    a("s_cmp_eq_u32 s52, 0"); a(f"s_cselect_b32 s{sHM}, s{sHM}, {DUMMY}")
    a(f"s_cselect_b32 s53, 0, 0x80000000"); a(f"s_cmp_eq_u32 s{sRB}, 0"); a("s_cselect_b32 s53, 0x80000000, s53")
    a(f"v_or_b32 v{vHo}, s53, v{vHo}")
    a(f"s_cmp_eq_u32 s{sTY}, 0"); a("s_mov_b32 s53, 2752"); a("s_cselect_b32 s52, 3072, s53")
    a("s_mov_b32 s54, 128"); a(f"s_cselect_b32 s{sCST}, 1024, s54")
    a(f"s_lshl_b32 s{sKWs}, s52, 6")
    a("v_and_b32 v6, 1, v6"); a("v_lshlrev_b32 v6, 1, v6"); a("v_xor_b32 v6, v6, v2"); a("v_lshlrev_b32 v6, 4, v6")
    a(f"s_lshl_b32 s53, s{sH}, 4")
    a(f"v_add_u32 v{vW0}, s53, v1"); a(f"v_mul_u32_u24 v{vW0}, s52, v{vW0}")
    a("s_lshl_b32 s54, s52, 3"); a(f"v_add_u32 v{vW1}, s54, v{vW0}")
    a(f"v_add_u32 v{vW0}, v{vW0}, v6"); a("v_xor_b32 v6, 64, v6"); a(f"v_add_u32 v{vW1}, v{vW1}, v6")
    a(f"s_lshl_b32 s53, s{sGR}, 7"); a(f"s_lshl_b32 s54, s{sFS}, 6"); a(f"s_cmp_eq_u32 s{sTY}, 0"); a(f"s_cselect_b32 s{sKW}, s53, s54")
    a(f"s_lshl_b32 s{sM0X}, s{sH}, 12"); a(f"s_add_u32 s{sM0X}, s{sM0X}, 2048")
    a(f"s_lshl_b32 s{sM0W}, s{sH}, 11"); a(f"s_add_u32 s{sM0W}, s{sM0W}, {WOFF}")
    a(f"v_lshlrev_b32 v{vL16}, 4, v0")
    a(f"s_mov_b32 s{sSLW}, 0"); a(f"s_mov_b32 s{sKX}, 0")
    a("s_waitcnt lgkmcnt(0)")
    srd(a, sX, pX, S*D*2)
    a(f"s_cmp_eq_u32 s{sTY}, 0")
    a(f"s_cselect_b32 s{sW}, s{pWQKV}, s{pW1}"); a(f"s_cselect_b32 s{sW+1}, s{pWQKV+1}, s{pW1+1}")
    a(f"s_mov_b32 s52, {D*F*2}"); a(f"s_cselect_b32 s{sW+2}, {D*3*D*2}, s52")
    a(f"s_and_b32 s{sW+1}, s{sW+1}, 0xffff"); a(f"s_mov_b32 s{sW+3}, 0x20000")
    def dma_round():
        def ld(v, srdr, so): a(f"buffer_load_dwordx4 v{v}, {sr(srdr,4)}, s{so} offen lds")
        a(f"s_add_u32 m0, s{sSLW}, s{sM0W}"); a(f"s_add_u32 s53, s{sKW}, s{sCST}"); ld(vW0, sW, sKW)
        a("s_add_u32 m0, m0, 8192"); a(f"s_add_u32 s54, s53, s{sCST}"); ld(vW0, sW, 53)
        a("s_add_u32 m0, m0, 8192"); a.nop(1); ld(vW0, sW, 54)
        a(f"s_add_u32 m0, s{sSLW}, s{sM0X}"); a(f"s_add_u32 s55, s{sKX}, 16384"); ld(vX0, sX, sKX)
        a("s_add_u32 m0, m0, 1024"); a.nop(1); ld(vX1, sX, sKX)
        a(f"s_add_u32 m0, s{sSLW}, s{sM0W}"); a("s_add_u32 m0, m0, 1024"); a.nop(1); ld(vW1, sW, sKW)
        a("s_add_u32 m0, m0, 8192"); a.nop(1); ld(vW1, sW, 53)
        a("s_add_u32 m0, m0, 8192"); a.nop(1); ld(vW1, sW, 54)
        a(f"s_add_u32 m0, s{sSLW}, s{sM0X}"); a("s_add_u32 m0, m0, 2048"); a.nop(1); ld(vX0, sX, 55)
        a("s_add_u32 m0, m0, 1024"); a.nop(1); ld(vX1, sX, 55)
        a(f"s_mul_i32 s52, s{sSLW}, s{sHMUL}"); a(f"s_add_u32 m0, s52, s{sHM}"); a.nop(1); ld(vHo, sX, sKX)
        a(f"s_add_u32 s{sKX}, s{sKX}, 128"); a(f"s_add_u32 s{sKW}, s{sKW}, s{sKWs}")
        a(f"s_add_u32 s{sSLW}, s{sSLW}, {RS}"); a(f"s_cmp_eq_u32 s{sSLW}, {RS*NR}"); a(f"s_cselect_b32 s{sSLW}, 0, s{sSLW}")
    sNON, sEX = 97, 60
    srd(a, sST, pWS, WS_BYTES)
    a("v_mov_b32 v36, 0"); a("v_mov_b32 v37, 0"); a(f"s_mov_b32 s{sEX}, 1"); a(f"s_mov_b32 s{sNON}, 0")
    a(f"s_or_b32 s52, s2, s{sH}"); a("s_cmp_lg_u32 s52, 0"); a("s_cbranch_scc1 L_nonon")
    a("s_memrealtime s[60:61]"); a("s_waitcnt lgkmcnt(0)"); a("s_or_b32 s60, s60, 1")
    a("v_mov_b32 v36, s60"); a("v_mov_b32 v37, 0"); a("s_mov_b64 exec, 1")
    a(f"global_store_dword v37, v36, s[{pDBG}:{pDBG+1}] sc1")
    a("s_mov_b64 exec, -1")
    a.lab("L_nonon")
    stamp(a, 14)
    dma_round()
    stamp(a, 15); dma_round(); stamp(a, 11)
    a("s_waitcnt vmcnt(11)"); a("s_barrier")
    stamp(a, 2)
    dma_round()
    a(f"s_cmp_lg_u32 s{sH}, 0"); a("s_cbranch_scc1 L_nost")
    a(f"v_add_u32 v36, {PSX}, v{vL16}"); a("ds_read_b128 v[40:43], v36")
    a(f"s_lshl_b32 s52, s{sJ}, 3"); a(f"s_add_u32 s52, s52, s{sR0}"); a("s_lshl_b32 s52, s52, 4"); a(f"s_add_u32 s52, s52, {STATS_OFF}")
    a("s_waitcnt lgkmcnt(0)"); a("s_mov_b64 exec, 0xff")
    a(f"buffer_store_dwordx4 v[40:43], v{vL16}, {sr(sST,4)}, s52 offen sc1")
    a("s_mov_b64 exec, -1")
    a("v_mov_b32 v37, 0"); a(f"global_load_dword v38, v37, s[{pDBG}:{pDBG+1}]")
    a.lab("L_nost")
    npf = 0
    if PF1:
        a(f"s_lshr_b32 s52, s{sKWs}, 6")
        a("v_lshrrev_b32 v12, 2, v0"); a("v_mul_u32_u24 v12, s52, v12"); a("v_and_b32 v13, 3, v0"); a(f"v_mul_u32_u24 v14, s{sCST}, v13"); a("v_add_u32 v12, v12, v14")
        a(f"s_cmp_eq_u32 s{sTY}, 0"); a("s_cselect_b32 s53, 3, 99"); a("v_cmp_eq_u32 vcc, s53, v13"); a("v_mov_b32 v14, 0x80000000"); a.nop(1); a("v_cndmask_b32 v12, v12, v14, vcc")
        a(f"s_lshl_b32 s55, s{sGR}, 7"); a(f"s_lshl_b32 s53, s{sFS}, 6"); a(f"s_cmp_eq_u32 s{sTY}, 0"); a("s_cselect_b32 s55, s55, s53")
        a("s_lshr_b32 s54, s2, 6"); a("s_lshl_b32 s54, s54, 4")
        a(f"s_add_u32 s53, s{sH}, 3"); a("s_lshl_b32 s53, s53, 6"); a("s_add_u32 s53, s53, s54"); a("s_mul_i32 s53, s53, s52"); a("s_add_u32 s53, s53, s55")
        a(f"buffer_load_dword v15, v12, {sr(sW,4)}, s53 offen")
        a("s_add_u32 s53, s54, 448"); a("s_mul_i32 s53, s53, s52"); a("s_add_u32 s53, s53, s55")
        a(f"s_cmp_eq_u32 s{sH}, 0"); a("s_cselect_b32 s53, s53, 0x80000000")
        a(f"buffer_load_dword v15, v12, {sr(sW,4)}, s53 offen")
        a("v_mul_u32_u24 v13, 57, v0"); a("v_lshrrev_b32 v13, 10, v13"); a("v_mul_u32_u24 v14, 18, v13"); a("v_sub_u32 v14, v0, v14")
        a("s_lshr_b32 s54, s2, 3"); a("s_and_b32 s54, s54, 7"); a("s_mul_i32 s54, s54, 18"); a(f"s_add_u32 s54, s54, s{sR0}"); a("s_sub_u32 s54, s54, 16")
        a("v_add_u32 v14, s54, v14"); a("v_lshlrev_b32 v14, 10, v14"); a("v_lshl_add_u32 v14, v13, 7, v14")
        a("v_cmp_lt_u32 vcc, 2, v13"); a("v_mov_b32 v13, 0x80000000"); a.nop(1); a("v_cndmask_b32 v14, v14, v13, vcc")
        a("s_mov_b32 s53, 0x80000000"); a(f"s_cmp_eq_u32 s{sH}, 1"); a("s_cselect_b32 s53, 384, s53"); a(f"s_cmp_eq_u32 s{sH}, 2"); a("s_cselect_b32 s53, 768, s53")
        a(f"buffer_load_dword v15, v14, {sr(sX,4)}, s53 offen")
        npf = 3
    def h0(name):
        a(f"s_cmp_lg_u32 s{sH}, 0"); a(f"s_cbranch_scc1 {name}")
    a("s_waitcnt vmcnt(11)"); stamp(a, 16); a("s_barrier"); stamp(a, 24)
    dma_round(); stamp(a, 32)
    a(f"s_waitcnt vmcnt({11+npf})"); stamp(a, 17); a("s_barrier"); stamp(a, 25)
    h0("L_h0b")
    a(f"v_readfirstlane_b32 s{sNON}, v38"); a.nop(2); a(f"s_cmp_lg_u32 s{sNON}, 0"); a("s_cbranch_scc1 L_non_ok")
    a(f"s_mov_b32 s{sT}, {SPIN_MAX}"); a("v_mov_b32 v37, 0")
    a.lab("L_non_poll")
    a(f"global_load_dword v38, v37, s[{pDBG}:{pDBG+1}] sc1"); a("s_waitcnt vmcnt(0)"); a(f"v_readfirstlane_b32 s{sNON}, v38"); a.nop(2)
    a(f"s_cmp_lg_u32 s{sNON}, 0"); a("s_cbranch_scc1 L_non_ok")
    a("s_sleep 2"); a(f"s_sub_u32 s{sT}, s{sT}, 1"); a(f"s_cmp_lg_u32 s{sT}, 0"); a("s_cbranch_scc1 L_non_poll")
    a.lab("L_non_ok")
    a(f"v_mov_b32 v39, s{sNON}")
    flag_store(a, 0, sST, 36, 39)
    a.lab("L_h0b")
    dma_round(); stamp(a, 33)
    a("s_waitcnt vmcnt(11)"); stamp(a, 18); a("s_barrier"); stamp(a, 26)
    dma_round(); stamp(a, 34)
    a("s_waitcnt vmcnt(11)"); stamp(a, 19); a("s_barrier"); stamp(a, 27)
    h0("L_h0c")
    a("v_subrev_u32 v36, 18, v0"); a("v_cmp_gt_u32 vcc, 16, v0"); a.nop(2); a("v_cndmask_b32 v36, v36, v0, vcc")
    a(f"s_lshl_b32 s52, s{sRB}, 4"); a("v_add_u32 v36, s52, v36"); a("v_lshlrev_b32 v36, 7, v36"); a(f"v_add_u32 v36, {FLG_OFF}, v36")
    a(f"s_cmp_eq_u32 s{sRB}, 0"); a(f"s_mov_b32 s{sEX}, 0x3ffff"); a(f"s_cselect_b32 s{sEX}, 0xffff, s{sEX}")
    a(f"s_mov_b32 exec_lo, s{sEX}"); a("s_mov_b32 exec_hi, 0")
    a(f"buffer_load_dword v38, v36, {sr(sST,4)}, 0 offen sc1")
    a("s_mov_b64 exec, -1")
    a.lab("L_h0c")
    dma_round(); stamp(a, 35)
    a("s_waitcnt vmcnt(11)"); stamp(a, 20); a("s_barrier"); stamp(a, 28)
    h0("L_h0d")
    a(f"s_mov_b32 exec_lo, s{sEX}"); a("s_mov_b32 exec_hi, 0")
    a(f"v_cmp_eq_u32 vcc, s{sNON}, v38"); a("s_mov_b64 exec, -1"); a.nop(1)
    a(f"s_cmp_eq_u32 vcc_lo, s{sEX}"); a("s_cbranch_scc1 L_p0ok")
    poll(a, 36, sNON, 38, sEX, sST, "p0")
    a.lab("L_p0ok")
    a(f"s_sub_u32 s52, s{sR0}, 16"); a("s_lshl_b32 s52, s52, 4"); a(f"s_add_u32 s52, s52, {STATS_OFF}")
    a(f"v_add_u32 v36, s52, v{vL16}")
    a(f"s_cmp_eq_u32 s{sRB}, 0"); a("s_cselect_b32 s53, 16, 0"); a("v_cmp_gt_u32 vcc, s53, v0"); a("v_mov_b32 v37, 0x80000000"); a.nop(1)
    a("v_cndmask_b32 v37, v36, v37, vcc")
    a(f"buffer_load_dwordx4 {vr(40,4)}, v37, {sr(sST,4)}, 0 offen sc1")
    a(f"buffer_load_dwordx4 {vr(44,4)}, v36, {sr(sST,4)}, 0 offen offset:1024 sc1")
    a("s_mov_b64 exec, 0xffff")
    a(f"buffer_load_dwordx4 {vr(48,4)}, v36, {sr(sST,4)}, 0 offen offset:2048 sc1")
    a("s_mov_b64 exec, -1")
    a.lab("L_h0d")
    dma_round(); stamp(a, 36)
    npf2 = 0
    if PF2:
        a(f"s_cmp_eq_u32 s{sH}, 0")
        a(f"s_cselect_b32 s{sDD}, s{pWO}, s{pW2}"); a(f"s_cselect_b32 s{sDD+1}, s{pWO+1}, s{pW2+1}")
        a(f"s_mov_b32 s53, {F*D*2}"); a(f"s_cselect_b32 s{sDD+2}, {D*D*2}, s53"); a(f"s_mov_b32 s{sDD+3}, 0x20000")
        a(f"s_and_b32 s{sDD+1}, s{sDD+1}, 0xffff")
        a("s_lshr_b32 s53, s2, 3"); a("s_lshl_b32 s54, s53, 14"); a("s_mul_i32 s53, s53, 44032")
        a(f"s_sub_u32 s55, s{sH}, 1"); a("s_lshl_b32 s55, s55, 14"); a("s_add_u32 s53, s53, s55")
        a(f"s_cmp_eq_u32 s{sH}, 0"); a("s_cselect_b32 s53, s54, s53")
        a("v_lshlrev_b32 v12, 7, v0")
        a(f"buffer_load_dword v13, v12, {sr(sDD,4)}, s53 offen"); a("s_add_u32 s53, s53, 8192")
        a(f"buffer_load_dword v14, v12, {sr(sDD,4)}, s53 offen")
        npf2 = 2
    a(f"s_waitcnt vmcnt({11+npf2})"); stamp(a, 21); a("s_barrier"); stamp(a, 29)
    h0("L_h0e")
    a("v_lshlrev_b32 v36, 2, v0"); a(f"v_add_u32 v36, {TAB}, v36")
    for q in range(3):
        if q == 2: a("s_mov_b64 exec, 0xffff")
        for k in range(4): a(f"ds_write_b32 v36, v{40+4*q+k} offset:{q*256 + k*576}")
    a("s_mov_b64 exec, -1")
    a.lab("L_h0e")
    a(f"s_waitcnt vmcnt({npf2}) lgkmcnt(0)"); stamp(a, 22); a("s_barrier")
    a("s_barrier")
    stamp(a, 3)
    a(f"s_cmp_eq_u32 s{sTY}, 0"); a("s_cbranch_scc1 L_e1a"); a("s_barrier"); a.lab("L_e1a")
    NWR = 7
    vWo, vAo = 4, 5
    a("v_lshrrev_b32 v6, 4, v0"); a("v_lshlrev_b32 v6, 1, v6"); a("v_and_b32 v8, 7, v0"); a("v_xor_b32 v6, v6, v8")
    a("v_lshlrev_b32 v6, 4, v6"); a("v_lshrrev_b32 v8, 3, v0"); a("v_lshl_add_u32 v6, v8, 10, v6")
    a(f"s_lshl_b32 s52, s{sCG}, 7"); a(f"v_add_u32 v{vWo}, s52, v6")
    a(f"v_lshlrev_b32 v{vAo}, 4, v0")
    sWO_, sW2_ = sA, sB
    srd(a, sWO_, pWO, D*D*2); srd(a, sW2_, pW2, F*D*2)
    sSL, sWk = 56, 57
    a(f"s_lshl_b32 s{sSL}, s{sH}, 12"); a(f"s_lshl_b32 s{sWk}, s{sH}, 15")
    HW = 28
    def wload(r):
        for q in range(4):
            off = (r*4 if r < 4 else (r-4)*4)*32768 + q*8192
            a(f"s_add_u32 s53, s{sWk}, {off}")
            a(f"buffer_load_dwordx4 {vr(HW+(r*4+q)*4,4)}, v{vWo}, {sr(sWO_ if r < 4 else sW2_,4)}, s53 offen")
    for r in range(0, 14): wload(r)
    for q in range(4):
        a(f"s_add_u32 m0, s{sSL}, {7*16384 + q*1024}"); a(f"s_add_u32 s53, s{sWk}, {10*4*32768 + q*8192}")
        a(f"buffer_load_dwordx4 v{vWo}, {sr(sW2_,4)}, s53 offen lds")
    a(f"v_add_u32 v6, s{sSL}, v{vAo}")
    a("s_waitcnt vmcnt(32)")
    for r in range(NWR):
        if r == 4: a("v_add_u32 v6, 65536, v6")
        for q in range(4):
            a(f"ds_write_b128 v6, {vr(HW+(r*4+q)*4,4)} offset:{(r % 4)*16384 + q*1024}")
    a("s_waitcnt lgkmcnt(0)")
    a(f"s_cmp_eq_u32 s{sTY}, 1"); a("s_cbranch_scc1 L_e1m"); a("s_barrier"); a.lab("L_e1m")
    tail_loads(a, TB)
    stamp(a, 56)
    a("s_barrier")
    stamp(a, 7)
    sFL = sC
    srd(a, sFL, pWS, WS_BYTES)
    a(f"s_cmp_lg_u32 s{sH}, 0"); a("s_cbranch_scc1 L_nf1")
    a(f"v_mov_b32 v9, s{sNON}")
    flag_store(a, 1, sFL, 8, 9)
    a.lab("L_nf1")
    a("s_barrier")
    a("s_barrier")
    a(f"s_cmp_lg_u32 s{sH}, 0"); a("s_cbranch_scc1 L_nf2")
    a(f"s_lshr_b32 s52, s{sRG}, 1"); a("s_lshl_b32 s52, s52, 4"); a("v_add_u32 v8, s52, v0"); a("v_lshlrev_b32 v8, 7, v8"); a(f"v_add_u32 v8, {FLG_OFF+4}, v8")
    a(f"s_mov_b32 s{sEX}, 0xff")
    stamp(a, 57)
    poll(a, 8, sNON, 9, sEX, sFL, "p1a")
    a.lab("L_nf2")
    a("s_barrier")
    stamp(a, 8)
    a(f"s_cmp_lg_u32 s{sH}, 0"); a("s_cbranch_scc1 L_nf3")
    a(f"s_mov_b32 s{sEX}, 0xff00")
    poll(a, 8, sNON, 9, sEX, sFL, "p1m")
    if PROF: a(f"s_sub_u32 s52, {SPIN_MAX}, s52"); a("v_writelane_b32 v255, s52, 58")
    a.lab("L_nf3")
    a("s_barrier")
    a(f"v_add_u32 v6, s{sSL}, v{vAo}")
    a("s_waitcnt vmcnt(0)")
    for r in range(NWR, 14):
        if r == NWR + 4: a("v_add_u32 v6, 65536, v6")
        for q in range(4):
            a(f"ds_write_b128 v6, {vr(HW+(r*4+q)*4,4)} offset:{((r-NWR) % 4)*16384 + q*1024}")
    a("s_waitcnt lgkmcnt(0)")
    a("s_barrier")
    a("s_barrier")

def build():
    a = A()
    a(f"; @launch grid=(256,1,1) block=(512,1,1) lds={LDS}")
    a('.amdgcn_target "amdgcn-amd-amdhsa--gfx950"')
    a(".text"); a(f".globl {KN}"); a(".p2align 8"); a(f".type {KN},@function"); a.lab(KN)
    END = "L_end"
    prologue(a, END)
    compute(a)
    helper(a)
    final(a, END)
    a.lab(END); a("s_endpgm")
    a.lab("L_code_end")
    a('.section .rodata,"a"'); a(".p2align 6")
    t = a.text()
    t += f""".amdhsa_kernel {KN}
  .amdhsa_next_free_vgpr 256
  .amdhsa_next_free_sgpr 102
  .amdhsa_accum_offset 256
  .amdhsa_group_segment_fixed_size 0
  .amdhsa_kernarg_size 88
  .amdhsa_user_sgpr_count 2
  .amdhsa_user_sgpr_kernarg_segment_ptr 1
  .amdhsa_system_sgpr_workgroup_id_x 1
.end_amdhsa_kernel
"""
    return t

if __name__ == "__main__":
    out = sys.argv[1] if len(sys.argv) > 1 else "v10.s"
    PROF = len(sys.argv) > 2 and sys.argv[2] == "p"
    for arg in sys.argv[3:]:
        k, v = arg.split("=")
        globals()[k] = {"True": True, "False": False}.get(v, int(v) if v.isdigit() else v)
    open(out, "w").write(build())
```

```python
import sys, math, struct
NAME = "parallel_sum__sliding_local_dilated__mixer_channel_mlp__prompt"
KN = NAME + "_kernel"
def f2u(x): return struct.unpack("<I", struct.pack("<f", x))[0]
def hexf(x): return "0x%08x" % f2u(x)

class A:
    def __init__(s): s.l = []; s.uid = 0
    def __call__(s, t): s.l.append(t)
    def lab(s, n): s.l.append(n + ":")
    def nop(s, n):
        while n > 0:
            k = min(n, 16); s.l.append(f"s_nop {k-1}"); n -= k
    def u(s): s.uid += 1; return s.uid
    def text(s): return "\n".join(s.l) + "\n"

PROF = False
PF1 = False; PF2 = True; PRIO = 0; ASC = 'sc1'; SSC = 'sc1'; PFA = 'sc1'; DEFER = False; NOW2 = False; NOST = False; PFPOS = 'mid'; ROT = True; WIN = 2; HPRIO = 1; ROTM = 40; OSC = ''; LIGHT = False; EARLYF = True; MBX = False; WRD = 1; PSL = 2; SPREAD = 99; MAP = 0; ADDTID = True; HDROP = 3; WPACE = 0; WPACE2 = 0; WAHEAD = 1; STRICT = False
def stamp(a, i):
    if PROF and not (LIGHT and i not in (1,2,3,4,5,6,8,9,10,12,33,59,50,51,52,56,61,62,22)): a("s_memtime s[90:91]"); a("s_waitcnt lgkmcnt(0)"); a(f"v_writelane_b32 v255, s90, {i}")
def stamp_dyn(a, sreg, base):
    if PROF and not LIGHT:
        a("s_memtime s[90:91]"); a(f"s_add_u32 s89, s{sreg}, {base}"); a("s_mov_b32 m0, s89"); a("s_waitcnt lgkmcnt(0)"); a("v_writelane_b32 v255, s90, m0")
def stamp_rt(a, i):
    if PROF: a("s_memrealtime s[90:91]"); a("s_waitcnt lgkmcnt(0)"); a(f"v_writelane_b32 v255, s90, {i}")

def vr(b, n=1): return f"v{b}" if n == 1 else f"v[{b}:{b+n-1}]"
def sr(b, n=1): return f"s{b}" if n == 1 else f"s[{b}:{b+n-1}]"
def srd(a, d, lo, size):
    a(f"s_mov_b32 s{d}, s{lo}"); a(f"s_and_b32 s{d+1}, s{lo+1}, 0xffff")
    a(f"s_mov_b32 s{d+2}, {size}"); a(f"s_mov_b32 s{d+3}, 0x20000")

S, D, F = 2048, 512, 1376
NSTEP2 = 59
A2_BYTES = 128 * NSTEP2 * 1024
STATS_OFF = 0x800000
FLG_OFF = 0x810000
MBX_OFF = FLG_OFF + 256 * 128
WS_BYTES = MBX_OFF + 256 * 128
NSLOT = 151552
PCNT = 151552 + 256
PSX = 151552 + 64
RS = 43008; NR = 3; WOFF = 18432
TAB = 131072
T_CS = TAB + 2304
DUMMY = TAB + 3072
XB = TAB + 4096
LDS = 163840
BIG = -1e30
C_EXP = 0.25 * math.log2(math.e)
G1 = -2.0 * math.sqrt(2.0 / math.pi) * math.log2(math.e)
G2 = G1 * 0.044715
SPIN_MAX = 1 << 16

pX, pWQKV, pWO, pW1, pB1, pW2, pB2, pOUT, pDBG, pWS = 4, 6, 8, 12, 14, 16, 18, 20, 22, 24
sWV, sRB, sJ, sFS, sNF, sR0, sRG, sCG, sH = 26, 27, 28, 29, 30, 31, 32, 33, 34
sMASK = 35
sTY, sGR = 62, 63
sA, sB, sC, sDD = 36, 40, 44, 48
sT = 52

def MF32(d, a_, b_, c_=None):
    c_ = vr(d, 4) if c_ is None else c_
    return f"v_mfma_f32_16x16x32_bf16 {vr(d,4)}, {vr(a_,4)}, {vr(b_,4)}, {c_}"
def bf16r(a, dst, src):
    a(f"v_cvt_pk_bf16_f32 v{dst}, v{src}, v{src}"); a(f"v_and_b32 v{dst}, s{sMASK}, v{dst}")
def xlane(a, op, xs, ts):
    for sw in ("v_permlane16_swap_b32", "v_permlane32_swap_b32"):
        for x, t in zip(xs, ts): a(f"v_mov_b32 v{t}, v{x}")
        a.nop(max(0, 2 - (len(xs) - 1)))
        for x, t in zip(xs, ts): a(f"{sw} v{x}, v{t}")
        a.nop(max(0, 2 - (len(xs) - 1)))
        for x, t in zip(xs, ts): a(f"{op} v{x}, v{x}, v{t}")
def interleave(a, mf, fill, per=1):
    if SPREAD > 50:
        fi = 0
        for m in mf:
            a(m)
            for _ in range(per):
                if fi < len(fill): a(fill[fi]); fi += 1
        while fi < len(fill): a(fill[fi]); fi += 1
        return
    n = len(mf) - SPREAD
    cheap = [f for f in fill if not f.startswith("ds_")]
    reads = [f for f in fill if f.startswith("ds_")]
    slots = [[] for _ in mf]
    for k, f in enumerate(cheap): slots[min(k // 2, len(mf) - 1)].append(f)
    first = (len(cheap) + 1) // 2
    for k, f in enumerate(reads):
        slots[min(first + (k * (n - first)) // len(reads), len(mf) - 1)].append(f)
    for m, sl in zip(mf, slots):
        a(m)
        for f in sl: a(f)

def poll(a, vOff, sExp, vD, sExec, srdreg, name):
    a(f"s_mov_b32 exec_lo, s{sExec}"); a("s_mov_b32 exec_hi, 0")
    a(f"s_mov_b32 s{sT}, {SPIN_MAX}")
    a.lab(f"L_poll_{name}")
    a(f"buffer_load_dword v{vD}, v{vOff}, {sr(srdreg,4)}, 0 offen sc1")
    a("s_waitcnt vmcnt(0)")
    a(f"v_cmp_eq_u32 vcc, s{sExp}, v{vD}")
    a.nop(2)
    a(f"s_cmp_eq_u32 vcc_lo, s{sExec}")
    a(f"s_cbranch_scc1 L_polld_{name}")
    if PSL: a(f"s_sleep {PSL}")
    a(f"s_sub_u32 s{sT}, s{sT}, 1"); a(f"s_cmp_lg_u32 s{sT}, 0")
    a(f"s_cbranch_scc1 L_poll_{name}")
    a.lab(f"L_polld_{name}")
    a("s_mov_b64 exec, -1")

def flag_store(a, which, srdreg, vT, vN):
    a(f"s_lshl_b32 s{sT}, s{sRB}, 4"); a(f"s_add_u32 s{sT}, s{sT}, s{sJ}"); a(f"s_lshl_b32 s{sT}, s{sT}, 7"); a(f"s_add_u32 s{sT}, s{sT}, {FLG_OFF + 4*which}")
    a(f"v_mov_b32 v{vT}, s{sT}")
    a("s_mov_b64 exec, 1")
    a(f"buffer_store_dword v{vN}, v{vT}, {sr(srdreg,4)}, 0 offen sc1")
    a("s_mov_b64 exec, -1")

def prologue(a, END):
    a("s_cmp_ge_u32 s2, 256"); a(f"s_cbranch_scc1 {END}")
    stamp_rt(a, 0); stamp(a, 1)
    a("s_load_dwordx16 s[4:19], s[0:1], 0")
    a("s_load_dwordx4 s[20:23], s[0:1], 64")
    a("s_load_dwordx2 s[24:25], s[0:1], 80")
    a("s_getpc_b64 s[98:99]")
    a.lab("L_pc")
    a("v_lshrrev_b32 v1, 6, v0"); a("v_and_b32 v0, 63, v0")
    a(f"v_readfirstlane_b32 s{sWV}, v1")
    a("s_and_b32 s52, s2, 7"); a("s_lshr_b32 s53, s2, 3")
    if MAP == 0:
        a(f"s_lshr_b32 s{sRB}, s52, 1"); a(f"s_lshl_b32 s{sRB}, s{sRB}, 2"); a("s_lshr_b32 s54, s53, 3"); a(f"s_add_u32 s{sRB}, s{sRB}, s54")
        a(f"s_bfe_u32 s{sTY}, s53, 0x10002")
        a(f"s_and_b32 s{sGR}, s52, 1"); a(f"s_lshl_b32 s{sGR}, s{sGR}, 2"); a("s_and_b32 s55, s53, 3"); a(f"s_add_u32 s{sGR}, s{sGR}, s55")
    else:
        a(f"s_lshr_b32 s{sRB}, s52, 1"); a(f"s_lshl_b32 s{sRB}, s{sRB}, 2"); a("s_and_b32 s54, s53, 3"); a(f"s_add_u32 s{sRB}, s{sRB}, s54")
        a(f"s_lshr_b32 s{sTY}, s53, 4"); a(f"s_xor_b32 s{sTY}, s{sTY}, 1")
        a(f"s_and_b32 s{sGR}, s52, 1"); a(f"s_lshl_b32 s{sGR}, s{sGR}, 2"); a("s_bfe_u32 s55, s53, 0x20002"); a(f"s_add_u32 s{sGR}, s{sGR}, s55")
        a("s_lshr_b32 s54, s53, 3")
    a(f"s_lshl_b32 s{sJ}, s{sTY}, 3"); a(f"s_add_u32 s{sJ}, s{sJ}, s{sGR}")
    a(f"s_lshl_b32 s{sRG}, s52, 2"); a(f"s_add_u32 s{sRG}, s{sRG}, s54"); a(f"s_and_b32 s{sCG}, s53, 7")
    a(f"s_mul_i32 s{sFS}, s{sGR}, 6"); a(f"s_mul_i32 s54, s{sGR}, 5"); a("s_add_u32 s54, s54, 3")
    a(f"s_cmp_lt_u32 s{sGR}, 3"); a(f"s_cselect_b32 s{sFS}, s{sFS}, s54"); a(f"s_cselect_b32 s{sNF}, 6, 5")
    a(f"s_lshl_b32 s{sR0}, s{sRB}, 7")
    a(f"s_mov_b32 s{sMASK}, 0xffff0000")
    a(f"s_and_b32 s{sH}, s{sWV}, 3")
    a("v_mov_b32 v6, 0"); a("v_mov_b32 v7, 0")
    a(f"s_cmp_lt_u32 s{sWV}, 4"); a("s_cbranch_scc1 L_compute")

def p0_stats(a):
    sX, sST, vL16, vP = sDD, sC, 7, 16
    a(f"v_lshlrev_b32 v{vL16}, 4, v0")
    a(f"s_lshl_b32 s52, s{sJ}, 3"); a(f"s_add_u32 s52, s52, s{sR0}"); a(f"s_lshl_b32 s53, s{sWV}, 1"); a("s_add_u32 s52, s52, s53")
    a("s_lshl_b32 s60, s52, 10"); a("s_lshl_b32 s61, s52, 4")
    a("s_waitcnt lgkmcnt(0)")
    srd(a, sX, pX, S*D*2)
    a(f"buffer_load_dwordx4 {vr(vP,4)}, v{vL16}, {sr(sX,4)}, s60 offen")
    a(f"buffer_load_dwordx4 {vr(vP+4,4)}, v{vL16}, {sr(sX,4)}, s60 offen offset:1024")
    a("s_lshr_b32 s53, s2, 3"); a(f"s_lshl_b32 s54, s{sWV}, 5"); a("s_add_u32 s53, s53, s54")
    a("s_lshl_b32 s53, s53, 10"); a("v_add_u32 v2, s53, v7")
    a("s_mov_b32 s54, L_code_end-L_pc-16"); a("v_min_u32 v2, s54, v2")
    a("global_load_dwordx4 v[248:251], v2, s[98:99]")
    global NPF
    NPF = 1
    return vP

def p0_finish(a, vP, nwait):
    sST, vL16 = sC, 7
    a(f"s_waitcnt vmcnt({nwait})")
    sA_, qA, sB_, qB = 24, 25, 26, 27
    for r in range(24, 28): a(f"v_mov_b32 v{r}, 0")
    a("v_mov_b32 v28, 0x3f803f80")
    for d in range(4):
        a(f"v_dot2c_f32_bf16 v{sA_}, v{vP+d}, v28"); a(f"v_dot2c_f32_bf16 v{qA}, v{vP+d}, v{vP+d}")
        a(f"v_dot2c_f32_bf16 v{sB_}, v{vP+4+d}, v28"); a(f"v_dot2c_f32_bf16 v{qB}, v{vP+4+d}, v{vP+4+d}")
    a.nop(2)
    for rot in (8, 4, 2, 1):
        for x in (sA_, qA, sB_, qB): a(f"v_add_f32_dpp v{x}, v{x}, v{x} row_ror:{rot} row_mask:0xf bank_mask:0xf")
    xlane(a, "v_add_f32", [sA_, qA, sB_, qB], [28, 29, 30, 31])
    a("v_and_b32 v28, 1, v0"); a("v_cmp_eq_u32 vcc, 1, v28"); a.nop(2)
    sm, sq, t0, t1, t2, t3 = 24, 25, 33, 32, 34, 35
    a(f"v_cndmask_b32 v{sm}, v{sA_}, v{sB_}, vcc"); a(f"v_cndmask_b32 v{sq}, v{qA}, v{qB}, vcc")
    a(f"v_mul_f32 v{sm}, {hexf(1/512)}, v{sm}"); a(f"v_mul_f32 v{sq}, {hexf(1/512)}, v{sq}")
    a(f"v_fma_f32 v{sq}, -v{sm}, v{sm}, v{sq}"); a(f"v_max_f32 v{sq}, 0, v{sq}")
    bf16r(a, t0, sm); bf16r(a, t1, sq)
    a(f"v_add_f32 v{t1}, {hexf(1e-5)}, v{t1}"); bf16r(a, t1, t1)
    a(f"v_sqrt_f32 v{t1}, v{t1}"); a.nop(1); bf16r(a, t1, t1)
    a(f"v_rcp_f32 v{t1}, v{t1}"); a.nop(1)
    a(f"v_mul_f32 v{t2}, v{sq}, v{t1}"); a(f"v_mul_f32 v{t2}, v{t2}, v{t1}"); bf16r(a, t2, t2)
    a(f"v_add_f32 v{t2}, {hexf(1e-5)}, v{t2}"); bf16r(a, t2, t2)
    a(f"v_sqrt_f32 v{t2}, v{t2}"); a.nop(1); bf16r(a, t2, t2)
    a(f"v_rcp_f32 v{t2}, v{t2}"); a.nop(1)
    a(f"v_mul_f32 v{t2}, v{t2}, v{t1}"); a(f"v_mul_f32 v{t0}, v{t0}, v{t1}"); a(f"v_mul_f32 v{t3}, v{sm}, v{t2}")
    a(f"s_lshl_b32 s52, s{sWV}, 5"); a(f"s_add_u32 s52, s52, {PSX}"); a(f"v_add_u32 v28, s52, v{vL16}")
    a("s_mov_b64 exec, 3")
    a(f"ds_write_b128 v28, {vr(32,4)}")
    a("s_mov_b64 exec, -1")
    a("s_waitcnt lgkmcnt(0)")

vI, vG, vAX0, vAX1, vCX = 8, 9, 10, 11, 12
vONE = 244; cS = 232
sBASE, sRND = 56, 57

def lane_common(a):
    a(f"v_and_b32 v{vI}, 15, v0"); a(f"v_lshrrev_b32 v{vG}, 4, v0")
    a(f"v_lshrrev_b32 v2, 1, v{vI}"); a(f"v_xor_b32 v2, v2, v{vG}"); a("v_lshlrev_b32 v2, 4, v2")
    a(f"v_lshl_add_u32 v{vAX0}, v{vI}, 7, v2")
    a(f"v_lshrrev_b32 v2, 2, v{vI}"); a(f"v_lshl_add_u32 v2, v{vG}, 3, v2"); a("v_lshlrev_b32 v2, 7, v2")
    a(f"v_and_b32 v3, 3, v{vI}"); a("v_lshl_add_u32 v2, v3, 3, v2"); a(f"v_add_u32 v2, {WOFF}, v2")
    a(f"v_bfe_u32 v3, v{vI}, 3, 1"); a(f"v_and_b32 v1, 1, v{vG}"); a("v_lshl_add_u32 v3, v1, 1, v3"); a("v_lshlrev_b32 v3, 5, v3")
    for i in range(4): a(f"v_mov_b32 v{vONE+i}, 0x3f803f80")

def adv_base():
    return [f"s_add_u32 s{sBASE}, s{sBASE}, {RS}", f"s_cmp_eq_u32 s{sBASE}, {RS*NR}", f"s_cselect_b32 s{sBASE}, 0, s{sBASE}"]

def main_loop(a, tag, mfmas, reads, w0):
    a("s_barrier")
    if w0: stamp(a, 2)
    for o in reads(0, 0): a(o)
    a("s_waitcnt lgkmcnt(0)")
    a.lab(f"L_cloop{tag}")
    interleave(a, mfmas(0), reads(1, 1))
    a("s_waitcnt lgkmcnt(0)"); stamp_dyn(a, sRND, 16); a("s_barrier")
    stamp_dyn(a, sRND, 24)
    interleave(a, mfmas(1), adv_base() + reads(0, 0))
    a(f"s_add_u32 s{sRND}, s{sRND}, 1"); a(f"s_cmp_lt_u32 s{sRND}, 8")
    a("s_waitcnt lgkmcnt(0)")
    a(f"s_cbranch_scc1 L_cloop{tag}")
    stamp(a, 3)
    if PRIO: a(f"s_setprio {PRIO}")
    a("s_waitcnt vmcnt(0)")
    a.nop(8)

def lds_sync(a, addr_expr_sgpr, target, name):
    a(f"v_mov_b32 v2, s{addr_expr_sgpr}"); a("v_mov_b32 v3, 1")
    a("s_mov_b64 exec, 1"); a("ds_add_u32 v2, v3");
    a.lab(f"L_ls_{name}")
    a("ds_read_b32 v3, v2"); a("s_waitcnt lgkmcnt(0)"); a("v_readfirstlane_b32 s59, v3"); a.nop(2)
    a(f"s_cmp_lt_u32 s59, {target}"); a(f"s_cbranch_scc1 L_ls_{name}")
    a("s_mov_b64 exec, -1")

def conv(a, acc, dst, r, m, cs, layout_b, t=4):
    for h in range(2):
        tp = t + 2*h
        if not layout_b:
            a(f"v_pk_mul_f32 {vr(tp,2)}, {vr(cs+2*h,2)}, {vr(m & ~1,2)} op_sel:[0,{m&1}] op_sel_hi:[1,{m&1}]")
            a(f"v_pk_fma_f32 {vr(tp,2)}, {vr(acc+2*h,2)}, {vr(r & ~1,2)}, {vr(tp,2)} op_sel:[0,{r&1},0] op_sel_hi:[1,{r&1},1] neg_lo:[0,0,1] neg_hi:[0,0,1]")
        else:
            a(f"v_pk_mul_f32 {vr(tp,2)}, {vr(m+2*h,2)}, {vr(cs,2)} op_sel:[0,0] op_sel_hi:[1,0]")
            a(f"v_pk_fma_f32 {vr(tp,2)}, {vr(acc+2*h,2)}, {vr(r+2*h,2)}, {vr(tp,2)} neg_lo:[0,0,1] neg_hi:[0,0,1]")
    for h in range(2): a(f"v_cvt_pk_bf16_f32 v{dst+h}, v{t+2*h}, v{t+2*h+1}")

def compute_A(a):
    XA, WA = [32, 68], [104, 116]
    aQ, aK, aV = 128, 160, 196
    vAW, vCW = 13, 14
    sWS_ = sA
    a.lab("L_typeA")
    lane_common(a)
    a(f"v_xor_b32 v{vAX1}, 64, v{vAX0}")
    a(f"s_lshl_b32 s52, s{sWV}, 5"); a("v_xor_b32 v3, s52, v3"); a(f"v_add_u32 v{vAW}, v2, v3")
    for r in range(aQ, cS + 12): a(f"v_mov_b32 v{r}, 0")
    a(f"s_mov_b32 s{sBASE}, 0"); a(f"s_mov_b32 s{sRND}, 0")
    srd(a, sWS_, pWS, A2_BYTES)
    p0_finish(a, 16, NPF)
    bC, bP, bPF = 16, 20, 24
    Mc0, Mc1, Mp0, Mp1 = 28, 29, 30, 31
    tt = 84
    a(f"v_mov_b32 v{tt+3}, {hexf(BIG)}")
    for r in range(4):
        a(f"v_lshl_add_u32 v{tt}, v{vG}, 2, {r}"); a(f"v_sub_u32 v{tt}, v{vI}, v{tt}")
        a(f"v_and_b32 v{tt+1}, 1, v{tt}")
        a(f"v_cmp_eq_u32 vcc, 0, v{tt+1}"); a(f"v_cmp_le_i32 s[52:53], 0, v{tt}")
        hm = "0xffff0000" if (r & 1) else "0xffff"
        a(f"v_mov_b32 v{tt+2}, {hm}"); a.nop(1)
        a("s_and_b64 s[54:55], vcc, s[52:53]"); a("s_andn2_b64 s[58:59], vcc, s[52:53]")
        a(f"v_cndmask_b32 v{bC+r}, v{tt+3}, 0, s[54:55]"); a(f"v_cndmask_b32 v{bP+r}, v{tt+3}, 0, s[58:59]")
        mc, mp = (Mc0, Mp0) if r < 2 else (Mc1, Mp1)
        z = "0" if (r & 1) == 0 else None
        a(f"v_cndmask_b32 v{mc}, {z or 'v%d' % mc}, v{tt+2}, s[54:55]"); a(f"v_cndmask_b32 v{mp}, {z or 'v%d' % mp}, v{tt+2}, s[58:59]")
    a(f"s_cmp_eq_u32 s{sRB}, 0"); a("s_cselect_b64 vcc, -1, 0")
    for r in range(4): a(f"v_cndmask_b32 v{bPF+r}, v{bP+r}, v{tt+3}, vcc")
    def reads(buf, sub):
        o = [f"v_add_u32 v{vCX}, s{sBASE}, v{vAX1 if sub else vAX0}"]
        if sub == 0: o.append(f"v_add_u32 v{vCW}, s{sBASE}, v{vAW}")
        for p in range(3):
            o.append(f"ds_read_b64_tr_b16 {vr(WA[buf]+4*p,2)}, v{vCW} offset:{p*8192+sub*4096}")
            o.append(f"ds_read_b64_tr_b16 {vr(WA[buf]+4*p+2,2)}, v{vCW} offset:{p*8192+sub*4096+512}")
        for t in range(9): o.append(f"ds_read_b128 {vr(XA[buf]+4*t,4)}, v{vCX} offset:{t*2048}")
        return o
    def mfmas(buf):
        X, W = XA[buf], WA[buf]
        mf = []
        for t in range(9):
            mf.append(MF32(aK+4*t, W+4, X+4*t)); mf.append(MF32(aV+4*t, X+4*t, W+8))
            if t >= 1: mf.append(MF32(aQ+4*(t-1), W, X+4*t))
        mf += [MF32(cS, W, vONE), MF32(cS+4, W+4, vONE), MF32(cS+8, vONE, W+8)]
        return mf
    main_loop(a, "A", mfmas, reads, True)
    stamp(a, 4)
    vTA, vTB = 13, 14
    a(f"v_lshlrev_b32 v{vTA}, 2, v{vI}"); a(f"v_add_u32 v{vTA}, {TAB}, v{vTA}")
    a(f"v_lshlrev_b32 v{vTB}, 4, v{vG}"); a(f"v_add_u32 v{vTB}, {TAB}, v{vTB}")
    RA, MA = 32, 42
    RB_, MB_ = 52, 88
    for t in range(9): a(f"ds_read_b32 v{RA+t}, v{vTA} offset:{t*64}")
    for t in range(3): a(f"ds_read_b128 {vr(RB_+4*t,4)}, v{vTB} offset:{t*64}"); a(f"ds_read_b128 {vr(MB_+4*t,4)}, v{vTB} offset:{576+t*64}")
    a("s_waitcnt lgkmcnt(6)")
    for t in range(9): a(f"ds_read_b32 v{MA+t}, v{vTA} offset:{576+t*64}")
    a("s_waitcnt lgkmcnt(3)")
    for t in range(3, 9): a(f"ds_read_b128 {vr(RB_+4*t,4)}, v{vTB} offset:{t*64}"); a(f"ds_read_b128 {vr(MB_+4*t,4)}, v{vTB} offset:{576+t*64}")
    a("s_waitcnt lgkmcnt(12)")
    Kb, Vb, Qb = aK, aV, aQ
    for t in range(9):
        conv(a, aK+4*t, Kb+2*t, RA+t, MA+t, cS+4, False)
        if t >= 1: conv(a, aQ+4*(t-1), Qb+2*(t-1), RA+t, MA+t, cS, False)
    a("s_waitcnt lgkmcnt(0)")
    for t in range(9):
        conv(a, aV+4*t, Vb+2*t, RB_+4*t, MB_+4*t, cS+8, True)
    a(f"s_mov_b32 s54, {hexf(C_EXP)}")
    Sr, Tr, Pr, Or = 88, 144, 178, 214
    for b in range(2):
        U = range(4)
        for u in U:
            gu = 4*b + u; t = gu + 1
            bp = bPF if gu == 0 else bP
            a(f"v_mfma_f32_16x16x16_bf16 {vr(Sr+8*u,4)}, {vr(Kb+2*(t-1),2)}, {vr(Qb+2*gu,2)}, {vr(bp,4)}")
            a(f"v_mfma_f32_16x16x16_bf16 {vr(Sr+8*u+4,4)}, {vr(Kb+2*t,2)}, {vr(Qb+2*gu,2)}, {vr(bC,4)}")
        a.nop(4)
        for u in U:
            Sp, Sc, a0, a1 = Sr+8*u, Sr+8*u+4, Tr+4*u, Tr+4*u+1
            a(f"v_max3_f32 v{a0}, v{Sp}, v{Sp+1}, v{Sc}"); a(f"v_max3_f32 v{a1}, v{Sp+2}, v{Sp+3}, v{Sc+2}")
            a(f"v_max_f32 v{a0}, v{a0}, v{Sc+1}"); a(f"v_max_f32 v{a1}, v{a1}, v{Sc+3}")
            a(f"v_max_f32 v{Tr+4*u+2}, v{a0}, v{a1}")
        xlane(a, "v_max_f32", [Tr+4*u+2 for u in U], [Tr+4*u+3 for u in U])
        for u in U: a(f"v_mul_f32 v{Tr+4*u+2}, s54, v{Tr+4*u+2}")
        for u in U:
            for k in range(2): a(f"v_fma_f32 v{Tr+4*u+k}, v{Tr+4*u+k}, s54, -v{Tr+4*u+2}")
        for u in U:
            for k in range(2): a(f"v_exp_f32 v{Tr+4*u+k}, v{Tr+4*u+k}")
        for u in U:
            for k in range(2): a(f"v_cvt_pk_bf16_f32 v{Tr+4*u+k}, v{Tr+4*u+k}, v{Tr+4*u+k}")
        for u in U:
            P = Pr+4*u; a0, a1 = Tr+4*u, Tr+4*u+1
            a(f"v_and_b32 v{P}, v{a0}, v{Mp0}"); a(f"v_and_b32 v{P+1}, v{a1}, v{Mp1}")
            a(f"v_and_b32 v{P+2}, v{a0}, v{Mc0}"); a(f"v_and_b32 v{P+3}, v{a1}, v{Mc1}")
        a.nop(2)
        for u in U:
            t = 4*b + u + 1
            a(MF32(Sr+8*u, vONE, Pr+4*u, "0")); a(MF32(Sr+8*u+4, Vb+2*(t-1), Pr+4*u, "0"))
        a.nop(4)
        for u in U: a(f"v_rcp_f32 v{Sr+8*u}, v{Sr+8*u}")
        for u in U:
            for k in range(4): a(f"v_mul_f32 v{Sr+8*u+4+k}, v{Sr+8*u+4+k}, v{Sr+8*u}")
        for u in U:
            for k in range(2): a(f"v_cvt_pk_bf16_f32 v{Or+2*(4*b+u)+k}, v{Sr+8*u+4+2*k}, v{Sr+8*u+4+2*k+1}")
    stamp(a, 5)
    a(f"s_lshr_b32 s52, s{sWV}, 1"); a("s_lshl_b32 s52, s52, 13"); a(f"s_add_u32 s52, s52, {XB}")
    a(f"s_and_b32 s53, s{sWV}, 1"); a("s_lshl_b32 s54, s53, 3"); a("s_add_u32 s54, s54, s52")
    a("v_lshlrev_b32 v15, 4, v0"); a("v_add_u32 v2, s54, v15")
    for u in range(8): a(f"ds_write_b64 v2, {vr(Or+2*u,2)} offset:{u*1024}")
    a("s_lshl_b32 s54, s53, 12"); a("s_add_u32 s54, s54, s52")
    a(f"s_lshr_b32 s55, s{sWV}, 1"); a("s_lshl_b32 s55, s55, 2"); a(f"s_add_u32 s55, s55, {PCNT+4}")
    lds_sync(a, 55, 2, "xa")
    a("v_add_u32 v3, s54, v15")
    for u in range(4): a(f"ds_read_b128 {vr(88+4*u,4)}, v3 offset:{u*1024}")
    a(f"s_lshl_b32 s52, s{sRB}, 3"); a("s_lshl_b32 s54, s53, 2"); a("s_add_u32 s52, s52, s54"); a(f"s_mul_i32 s52, s52, {NSTEP2}")
    a(f"s_lshl_b32 s54, s{sGR}, 1"); a("s_add_u32 s52, s52, s54"); a(f"s_lshr_b32 s54, s{sWV}, 1"); a("s_add_u32 s52, s52, s54"); a("s_lshl_b32 s52, s52, 10")
    for u in range(4):
        a(f"s_waitcnt lgkmcnt({3-u})")
        a(f"buffer_store_dwordx4 {vr(88+4*u,4)}, v15, {sr(sWS_,4)}, s52 offen {SSC.replace('_',' ')}")
        if u < 3: a(f"s_add_u32 s52, s52, {NSTEP2*1024}")
    stamp(a, 6)
    a("s_branch L_p1done")

def compute_M(a):
    XM, WM = [32, 48], [64, 88]
    aF = 128
    vAW, vCW = 13, 112
    vAWb = 116
    vB1 = 16
    sWS_, sB1_ = sA, sB
    a.lab("L_typeM")
    lane_common(a)
    a(f"s_lshr_b32 s52, s{sWV}, 1"); a("s_lshl_b32 s52, s52, 13"); a("s_add_u32 s52, s52, 2048")
    a(f"v_add_u32 v{vAX0}, s52, v{vAX0}"); a(f"v_xor_b32 v{vAX1}, 64, v{vAX0}")
    for cb in range(4):
        a(f"v_xor_b32 v1, {cb*32}, v3"); a(f"v_add_u32 v{vAWb+cb}, v2, v1")
    for r in range(aF, cS + 12): a(f"v_mov_b32 v{r}, 0")
    a(f"s_mov_b32 s{sBASE}, 0"); a(f"s_mov_b32 s{sRND}, 0")
    srd(a, sWS_, pWS, A2_BYTES); srd(a, sB1_, pB1, F * 2)
    p0_finish(a, 16, NPF)
    a(f"s_and_b32 s52, s{sWV}, 1"); a("s_mul_i32 s52, s52, 3"); a(f"s_add_u32 s52, s52, s{sFS}"); a("s_lshl_b32 s52, s52, 6")
    a(f"v_lshlrev_b32 v2, 3, v{vG}")
    for k in range(6): a(f"buffer_load_dwordx2 {vr(vB1+2*k,2)}, v2, {sr(sB1_,4)}, s52 offen offset:{k*32}")
    for w in range(1, 4):
        a(f"s_cmp_eq_u32 s{sWV}, {w}"); a(f"s_cbranch_scc1 L_mv{w}")
    for w in range(4):
        ch, rh = w & 1, w >> 1
        a.lab(f"L_mv{w}")
        def reads(buf, sub):
            o = [f"v_add_u32 v{vCX}, s{sBASE}, v{vAX1 if sub else vAX0}"]
            cbs = sorted(set((6*ch + k) & 3 for k in range(6)))
            if sub == 0:
                for cb in cbs: o.append(f"v_add_u32 v{vCW+cb}, s{sBASE}, v{vAWb+cb}")
            for k in range(6):
                cg = 6*ch + k; q, cb = cg >> 2, cg & 3
                o.append(f"ds_read_b64_tr_b16 {vr(WM[buf]+4*k,2)}, v{vCW+cb} offset:{q*8192+sub*4096}")
                o.append(f"ds_read_b64_tr_b16 {vr(WM[buf]+4*k+2,2)}, v{vCW+cb} offset:{q*8192+sub*4096+512}")
            for t in range(4): o.append(f"ds_read_b128 {vr(XM[buf]+4*t,4)}, v{vCX} offset:{t*2048}")
            return o
        def mfmas(buf):
            X, W = XM[buf], WM[buf]
            mf = []
            for k in range(6):
                for t in range(4): mf.append(MF32(aF + ((k >> 1)*4 + t)*8 + 4*(k & 1), W+4*k, X+4*t))
            for e in range(3): mf.append(MF32(cS+4*e, W+4*(3*rh+e), vONE))
            return mf
        main_loop(a, f"M{w}", mfmas, reads, w == 0)
        a(f"v_lshlrev_b32 v2, 4, v{vG}"); a(f"v_add_u32 v2, {T_CS}, v2")
        a("s_mov_b32 exec_lo, 0x00010001"); a("s_mov_b32 exec_hi, 0x00010001")
        for e in range(3): a(f"ds_write_b128 v2, {vr(cS+4*e,4)} offset:{(6*ch+3*rh+e)*64}")
        a("s_mov_b64 exec, -1")
        if w < 3: a("s_branch L_mepi")
    a.lab("L_mepi")
    a("s_waitcnt lgkmcnt(0)"); a("s_barrier")
    stamp(a, 4)
    CS, B1, RR_, MR_ = 32, 56, 80, 84
    a(f"s_lshr_b32 s52, s{sWV}, 1"); a("s_lshl_b32 s52, s52, 8")
    a(f"v_lshl_add_u32 v2, v{vI}, 2, s52"); a(f"v_add_u32 v2, {TAB + 64}, v2")
    for t in range(4):
        a(f"ds_read_b32 v{RR_+t}, v2 offset:{1152+t*64}"); a(f"ds_read_b32 v{MR_+t}, v2 offset:{1728+t*64}")
    a(f"s_and_b32 s53, s{sWV}, 1"); a("s_mul_i32 s54, s53, 384"); a(f"v_lshl_add_u32 v3, v{vG}, 4, s54"); a(f"v_add_u32 v3, {T_CS}, v3")
    for k in range(6): a(f"ds_read_b128 {vr(CS+4*k,4)}, v3 offset:{k*64}")
    for k in range(12):
        a(f"v_lshlrev_b32 v{B1+2*k}, 16, v{vB1+k}"); a(f"v_and_b32 v{B1+2*k+1}, s{sMASK}, v{vB1+k}")
    sC2, kC1 = 60, 112
    a(f"s_mov_b32 s{sC2}, {hexf(G2)}"); a(f"s_mov_b32 s{sC2+1}, {hexf(G2)}")
    a(f"v_mov_b32 v{kC1}, {hexf(G1)}"); a(f"v_mov_b32 v{kC1+1}, {hexf(G1)}")
    a("v_lshlrev_b32 v15, 4, v0")
    a(f"s_lshr_b32 s52, s{sWV}, 1"); a("s_lshl_b32 s52, s52, 2"); a(f"s_lshl_b32 s54, s{sRB}, 3"); a("s_add_u32 s52, s52, s54"); a(f"s_mul_i32 s52, s52, {NSTEP2}")
    a("s_mul_i32 s54, s53, 3"); a("s_add_u32 s52, s52, s54"); a(f"s_add_u32 s52, s52, s{sFS}"); a("s_add_u32 s52, s52, 16"); a("s_lshl_b32 s52, s52, 10")
    a(f"s_sub_u32 s55, s{sNF}, s54")
    a("s_waitcnt lgkmcnt(0)")
    for sp in range(3):
        stamp(a, 50+sp)
        if sp == 2:
            a("s_cmp_lt_u32 s55, 3"); a("s_cbranch_scc1 L_gelu_done")
        for t in range(4):
            g = sp*4 + t
            o = 104 + 4*(g & 1)
            r, m = RR_+t, MR_+t
            cs, b1, acc = CS + 8*sp, B1 + 8*sp, aF + 8*g
            T = 88
            for p in range(4):
                u = T + 2*p
                a(f"v_pk_fma_f32 {vr(u,2)}, {vr(cs+2*p,2)}, {vr(m&~1,2)}, {vr(b1+2*p,2)} op_sel:[0,{m&1},0] op_sel_hi:[1,{m&1},1] neg_lo:[0,1,0] neg_hi:[0,1,0]")
            for p in range(4):
                u = T + 2*p
                a(f"v_pk_fma_f32 {vr(u,2)}, {vr(acc+2*p,2)}, {vr(r&~1,2)}, {vr(u,2)} op_sel:[0,{r&1},0] op_sel_hi:[1,{r&1},1]")
            for p in range(4): a(f"v_pk_mul_f32 {vr(T+8+2*p,2)}, {vr(T+2*p,2)}, {vr(T+2*p,2)}")
            for p in range(4): a(f"v_pk_fma_f32 {vr(T+8+2*p,2)}, {vr(T+8+2*p,2)}, {sr(sC2,2)}, {vr(kC1,2)}")
            for p in range(4): a(f"v_pk_mul_f32 {vr(T+8+2*p,2)}, {vr(T+8+2*p,2)}, {vr(T+2*p,2)}")
            for p in range(8): a(f"v_exp_f32 v{T+8+p}, v{T+8+p}")
            for p in range(4): a(f"v_pk_add_f32 {vr(T+8+2*p,2)}, {vr(T+8+2*p,2)}, 1.0 op_sel_hi:[1,0]")
            for p in range(8): a(f"v_rcp_f32 v{T+8+p}, v{T+8+p}")
            for p in range(4): a(f"v_pk_mul_f32 {vr(T+8+2*p,2)}, {vr(T+8+2*p,2)}, {vr(T+2*p,2)}")
            if DEFER: o = acc
            for p in range(4): a(f"v_cvt_pk_bf16_f32 v{o+p}, v{T+8+2*p}, v{T+8+2*p+1}")
            if not DEFER and not NOST:
                a(f"s_add_u32 s53, s52, {(t*NSTEP2+sp)*1024}")
                a(f"buffer_store_dwordx4 {vr(o,4)}, v15, {sr(sWS_,4)}, s53 offen {SSC.replace('_',' ')}")
        if DEFER and sp == 1:
            pass
    if DEFER:
        for t in range(4):
            a(f"s_add_u32 s53, s52, {(t*NSTEP2+2)*1024}")
            a(f"buffer_store_dwordx4 {vr(aF+8*(8+t),4)}, v15, {sr(sWS_,4)}, s53 offen {SSC.replace('_',' ')}")
    a.lab("L_gelu_done")
    if DEFER:
        for sp in range(2):
            for t in range(4):
                a(f"s_add_u32 s53, s52, {(t*NSTEP2+sp)*1024}")
                a(f"buffer_store_dwordx4 {vr(aF+8*(sp*4+t),4)}, v15, {sr(sWS_,4)}, s53 offen {SSC.replace('_',' ')}")
    stamp(a, 6)

def compute(a):
    p0_stats(a)
    a(f"s_cmp_eq_u32 s{sTY}, 1"); a("s_cbranch_scc1 L_typeM")
    compute_A(a)
    compute_M(a)
    a.lab("L_p1done")
    a("s_waitcnt vmcnt(0)"); stamp(a, 33)
    srd(a, sB, pWS, WS_BYTES)
    a(f"v_mov_b32 v2, {PCNT}"); a("v_mov_b32 v3, 1"); a(f"v_mov_b32 v4, {NSLOT}")
    a("s_mov_b64 exec, 1")
    a("ds_add_rtn_u32 v3, v2, v3"); a("ds_read_b32 v5, v4")
    a("s_waitcnt lgkmcnt(0)")
    a("s_mov_b64 exec, -1")
    a("v_readfirstlane_b32 s52, v3"); a.nop(2); a("s_cmp_lg_u32 s52, 3"); a("s_cbranch_scc1 L_nopub")
    if MBX:
        a("v_readfirstlane_b32 s53, v5"); a(f"s_lshl_b32 s52, s{sRB}, 4"); a("v_add_u32 v2, s52, v0"); a("v_lshlrev_b32 v2, 7, v2")
        a(f"s_lshl_b32 s52, s{sJ}, 2"); a(f"s_add_u32 s52, s52, {MBX_OFF}"); a("v_add_u32 v2, s52, v2"); a("v_mov_b32 v5, s53")
        a("s_mov_b64 exec, 0xffff")
        a(f"buffer_store_dword v5, v2, {sr(sB,4)}, 0 offen sc1")
        a("s_mov_b64 exec, -1")
    else:
        flag_store(a, 1, sB, 2, 5)
    a.lab("L_nopub")
    p2_addr(a)
    a(f"s_lshl_b32 s52, s{sWV}, 12"); a("v_add_u32 v6, s52, v6")
    for cb in range(4):
        a(f"v_xor_b32 v10, {cb*32}, v7"); a(f"v_add_u32 v{2+cb}, v6, v10")
    p2_main(a)

AF2 = [12, 28, 44]; ACC2 = 60; WF2 = 124
def p2_addr(a):
    a(f"v_lshrrev_b32 v6, 2, v{vI}"); a(f"v_lshl_add_u32 v6, v{vG}, 2, v6")
    a("v_lshrrev_b32 v7, 1, v6"); a("v_and_b32 v7, 3, v7"); a("v_lshlrev_b32 v7, 5, v7")
    a("v_lshlrev_b32 v6, 7, v6"); a(f"v_and_b32 v10, 3, v{vI}"); a("v_lshl_add_u32 v6, v10, 3, v6")
def w_frag_reads(a, i):
    for cb in range(4):
        d = WF2 + 16*i + 4*cb
        a(f"ds_read_b64_tr_b16 {vr(d,2)}, v{2+cb} offset:{(i % 4)*16384}"); a(f"ds_read_b64_tr_b16 {vr(d+2,2)}, v{2+cb} offset:{(i % 4)*16384+2048}")

def p2_main(a):
    a.lab("L_p2")
    vAo, sA2_, sAk, sOff = 1, sC, 56, 58
    srd(a, sA2_, pWS, WS_BYTES)
    a(f"v_lshlrev_b32 v{vAo}, 4, v0")
    a(f"s_lshl_b32 s{sAk}, s{sRG}, 2"); a(f"s_mul_i32 s{sAk}, s{sAk}, {NSTEP2}"); a(f"s_add_u32 s{sAk}, s{sAk}, s{sWV}"); a(f"s_lshl_b32 s{sAk}, s{sAk}, 10")
    a(f"s_add_u32 s57, s{sAk}, {7*8192}"); a(f"s_cmp_lt_u32 s{sWV}, 3"); a("s_cselect_b32 s57, s57, 0x80000000")
    if HPRIO:
        a(f"s_cmp_lt_u32 s{sWV}, 4"); a("s_cbranch_scc1 L_np"); a(f"s_setprio {HPRIO}"); a.lab("L_np")
    a("s_barrier")
    stamp(a, 8)
    free = list(AF2); buf = {}; issued = []
    def issue(i):
        b0 = free.pop(0); buf[i] = b0; issued.append(i)
        for b in range(4):
            if i == 7: a(f"s_add_u32 s{sOff}, s57, {b*NSTEP2*1024}")
            else: a(f"s_add_u32 s{sOff}, s{sAk}, {i*8192 + b*NSTEP2*1024}")
            a(f"buffer_load_dwordx4 {vr(b0+4*b,4)}, v{vAo}, {sr(sA2_,4)}, s{sOff} offen {ASC.replace('_',' ') if ASC != 'none' else ''}")
    a(f"s_cmp_lg_u32 s{sWV}, 4"); a("s_cbranch_scc1 L_nsn")
    a("s_mov_b64 exec, 0xffff"); a(f"buffer_load_dword v7, v6, {sr(sA2_,4)}, 0 offen sc1"); a("s_mov_b64 exec, -1")
    a.lab("L_nsn")
    issue(0); issue(1)
    def wreads():
        a(f"s_cmp_ge_u32 s{sWV}, 4"); a("s_cbranch_scc1 L_wrdy")
        for i in range(8):
            if i == 4:
                for cb in range(4): a(f"v_add_u32 v{2+cb}, 65536, v{2+cb}")
            w_frag_reads(a, i)
        a("s_waitcnt lgkmcnt(0)")
        a.lab("L_wrdy")
    if WRD: wreads()
    a(f"s_cmp_lg_u32 s{sWV}, 4"); a("s_cbranch_scc1 L_g2")
    a("s_waitcnt vmcnt(8)")
    a("s_mov_b32 s60, 0xff00")
    a("s_mov_b32 exec_lo, s60"); a("s_mov_b32 exec_hi, 0"); a("v_cmp_eq_u32 vcc, s97, v7"); a("s_mov_b64 exec, -1"); a.nop(1)
    a("s_cmp_eq_u32 vcc_lo, s60"); a("s_cbranch_scc1 L_g2")
    poll(a, 6, 97, 7, 60, sA2_, "p1m")
    a.lab("L_g2")
    a("s_barrier"); stamp(a, 59)
    issue(2); nxt = 3
    if not WRD: wreads()
    tail_issued = False; tb = None
    for i in range(8):
        newer = len(issued) - 1 - issued.index(i)
        a(f"s_waitcnt vmcnt({min(63, 4*newer + ((3 if ADDTID else 2) if tail_issued else 0))})")
        stamp(a, 40+i)
        if i == 7: a(f"s_cmp_ge_u32 s{sWV}, 3"); a("s_cbranch_scc1 L_s7skip")
        for b in range(4):
            for cb in range(4):
                if ADDTID: a(MF32(ACC2+(cb*4+b)*4, buf[i]+4*b, WF2+16*i+4*cb, "0" if i == 0 else None))
                else: a(MF32(ACC2+(cb*4+b)*4, WF2+16*i+4*cb, buf[i]+4*b, "0" if i == 0 else None))
        if i == HDROP: a("s_setprio 0")
        free.append(buf[i]); free.append(WF2 + 16*i)
        while free and nxt < 8 and nxt < i + 1 + WIN: issue(nxt); nxt += 1
        if nxt == 8 and not tail_issued and free:
            tail_issued = True; tb = free.pop(0); tail_loads(a, tb)
    a.lab("L_s7skip")
    stamp(a, 9)
    if ADDTID:
        a(f"s_lshl_b32 s52, s{sWV}, 14"); a(f"s_cmp_ge_u32 s{sWV}, 4"); a("s_cselect_b32 s53, 49216, 0"); a("s_sub_u32 s52, s52, s53"); a("s_mov_b32 m0, s52")
        a.nop(6)
        a(f"s_cmp_ge_u32 s{sWV}, 4"); a("s_cbranch_scc1 L_wrhi")
        for k in range(64): a(f"ds_write_addtid_b32 v{ACC2+k} offset:{k*256}")
        a("s_branch L_wrd")
        a.lab("L_wrhi")
        for k in range(64): a(f"ds_write_addtid_b32 v{ACC2+k} offset:{49216 + k*256}")
        a.lab("L_wrd")
    else:
        a.nop(8)
        a(f"s_mul_i32 s52, s{sWV}, 17408"); a(f"v_mul_u32_u24 v6, 272, v{vI}"); a(f"v_lshl_add_u32 v6, v{vG}, 4, v6"); a("v_add_u32 v6, s52, v6")
        for cb in range(4):
            for b in range(4):
                a(f"ds_write_b128 v6, {vr(ACC2+(cb*4+b)*4,4)} offset:{b*16*272 + cb*64}")
    move_tail(a, tb)
    a("s_waitcnt lgkmcnt(0)")

TB = 12
vXO, vRow, vCol, vXD, vB2 = TB, TB+1, TB+2, TB+8, TB+12
def tail_loads(a, tb):
    sXs, sB2_ = sB, sDD
    srd(a, sXs, pX, S*D*2); srd(a, sB2_, pB2, D*2)
    if ADDTID:
        a(f"v_bfe_u32 v{tb+1}, v0, 2, 2"); a(f"v_lshrrev_b32 v{tb+2}, 4, v0"); a(f"v_lshl_add_u32 v{tb+3}, v{tb+1}, 2, v{tb+2}")
        a(f"s_lshr_b32 s52, s{sWV}, 2"); a("s_lshl_b32 s52, s52, 5"); a(f"s_lshl_b32 s53, s{sRG}, 6"); a("s_add_u32 s52, s52, s53")
        a(f"v_add_u32 v{tb+3}, s52, v{tb+3}"); a(f"v_lshlrev_b32 v{tb+3}, 10, v{tb+3}")
        a(f"s_and_b32 s52, s{sWV}, 3"); a("s_lshl_b32 s52, s52, 5"); a(f"s_lshl_b32 s53, s{sCG}, 7"); a("s_add_u32 s52, s52, s53")
        a(f"v_and_b32 v{tb+4}, 3, v0"); a(f"v_lshl_add_u32 v{tb+4}, v{tb+4}, 3, s52")
        a(f"v_add_u32 v{tb}, v{tb+3}, v{tb+4}")
        a(f"buffer_load_dwordx2 {vr(tb+8,2)}, v{tb}, {sr(sXs,4)}, 0 offen")
        a(f"s_mov_b32 s52, 16384"); a(f"buffer_load_dwordx2 {vr(tb+10,2)}, v{tb}, {sr(sXs,4)}, s52 offen")
        a(f"buffer_load_dwordx2 {vr(tb+12,2)}, v{tb+4}, {sr(sB2_,4)}, 0 offen")
        return
    a(f"s_lshl_b32 s52, s{sWV}, 3"); a(f"v_lshrrev_b32 v{tb+1}, 3, v0"); a(f"v_add_u32 v{tb+1}, s52, v{tb+1}"); a(f"v_and_b32 v{tb+2}, 7, v0")
    a(f"s_lshl_b32 s52, s{sRG}, 6"); a(f"v_add_u32 v{tb+3}, s52, v{tb+1}"); a(f"v_lshlrev_b32 v{tb+3}, 10, v{tb+3}")
    a(f"s_lshl_b32 s53, s{sCG}, 7"); a(f"v_lshlrev_b32 v{tb+4}, 4, v{tb+2}"); a(f"v_add_u32 v{tb+4}, s53, v{tb+4}")
    a(f"v_add_u32 v{tb}, v{tb+3}, v{tb+4}")
    a(f"buffer_load_dwordx4 {vr(tb+8,4)}, v{tb}, {sr(sXs,4)}, 0 offen")
    a(f"buffer_load_dwordx4 {vr(tb+12,4)}, v{tb+4}, {sr(sB2_,4)}, 0 offen")
def move_tail(a, tb):
    if tb == TB: return
    a("s_waitcnt vmcnt(0)")
    for k in list(range(3)) + list(range(8, 16)): a(f"v_mov_b32 v{TB+k}, v{tb+k}")

def final(a, END):
    a.lab("L_final")
    if ADDTID:
        R = 28
        a("s_waitcnt vmcnt(0)")
        for bb in range(2):
            for h in range(2):
                d = R + 4*bb + 2*h
                a(f"v_lshlrev_b32 v{d}, 16, v{vXD+2*bb+h}"); a(f"v_and_b32 v{d+1}, s{sMASK}, v{vXD+2*bb+h}")
                a(f"v_lshlrev_b32 v36, 16, v{vB2+h}"); a(f"v_and_b32 v37, s{sMASK}, v{vB2+h}")
                a(f"v_pk_add_f32 {vr(d,2)}, {vr(d,2)}, {vr(36,2)}")
    a("s_barrier")
    stamp(a, 10)
    srd(a, sA, pOUT, S*D*2)
    if ADDTID:
        a(f"s_and_b32 s52, s{sWV}, 3"); a("s_lshl_b32 s52, s52, 12"); a(f"s_lshr_b32 s53, s{sWV}, 2"); a("s_lshl_b32 s53, s53, 11"); a("s_add_u32 s52, s52, s53")
        a(f"v_lshlrev_b32 v40, 8, v{vCol}"); a(f"v_lshl_add_u32 v40, v{vRow}, 6, v40"); a("v_and_b32 v41, 3, v0"); a("v_lshl_add_u32 v40, v41, 4, v40"); a("v_add_u32 v40, s52, v40")
        P = 128
        for w in range(8):
            if w == 4: a("v_add_u32 v40, 65536, v40")
            o = (w % 4)*16384
            a(f"ds_read_b128 {vr(P+8*w,4)}, v40 offset:{o}"); a(f"ds_read_b128 {vr(P+8*w+4,4)}, v40 offset:{o+1024}")
        R = 28
        for w in range(8):
            a(f"s_waitcnt lgkmcnt({min(15, 2*(7-w))})")
            for d in range(4):
                a(f"v_pk_add_f32 {vr(R+2*d,2)}, {vr(R+2*d,2)}, {vr(P+8*w+2*d,2)}")
        for d in range(4): a(f"v_cvt_pk_bf16_f32 v{76+d}, v{R+2*d}, v{R+2*d+1}")
        a(f"buffer_store_dwordx2 {vr(76,2)}, v{vXO}, {sr(sA,4)}, 0 offen {OSC.replace('_',' ')}")
        a("s_mov_b32 s52, 16384"); a(f"buffer_store_dwordx2 {vr(78,2)}, v{vXO}, {sr(sA,4)}, s52 offen {OSC.replace('_',' ')}")
    else:
        a(f"v_mul_u32_u24 v30, 272, v{vRow}"); a(f"v_lshl_add_u32 v30, v{vCol}, 5, v30")
        P = 128
        for w in range(8):
            if w == 3: a(f"v_add_u32 v31, {3*17408}, v30")
            if w == 6: a(f"v_add_u32 v31, {6*17408}, v30")
            ad = 30 if w < 3 else 31
            o = (w % 3)*17408
            a(f"ds_read_b128 {vr(P+8*w,4)}, v{ad} offset:{o}"); a(f"ds_read_b128 {vr(P+8*w+4,4)}, v{ad} offset:{o+16}")
        R = 64
        a("s_waitcnt vmcnt(0)")
        for d in range(4):
            a(f"v_lshlrev_b32 v{R+2*d}, 16, v{vXD+d}"); a(f"v_and_b32 v{R+2*d+1}, s{sMASK}, v{vXD+d}")
            a(f"v_lshlrev_b32 v72, 16, v{vB2+d}"); a(f"v_and_b32 v73, s{sMASK}, v{vB2+d}")
            a(f"v_pk_add_f32 {vr(R+2*d,2)}, {vr(R+2*d,2)}, {vr(72,2)}")
        for w in range(8):
            a(f"s_waitcnt lgkmcnt({min(15, 2*(7-w))})")
            for d in range(4):
                a(f"v_pk_add_f32 {vr(R+2*d,2)}, {vr(R+2*d,2)}, {vr(P+8*w+2*d,2)}")
        for d in range(4): a(f"v_cvt_pk_bf16_f32 v{76+d}, v{R+2*d}, v{R+2*d+1}")
        a(f"buffer_store_dwordx4 {vr(76,4)}, v{vXO}, {sr(sA,4)}, 0 offen {OSC.replace('_',' ')}")
    if PROF:
        a("s_waitcnt vmcnt(0)")
        stamp(a, 12); stamp_rt(a, 13)
        a(f"s_mov_b32 s96, s{pWS}"); a(f"s_and_b32 s97, s{pWS+1}, 0xffff"); a("s_mov_b32 s98, 0x10000000"); a("s_mov_b32 s99, 0x20000")
        a(f"s_lshl_b32 s94, s2, 3"); a(f"s_add_u32 s94, s94, s{sWV}"); a("s_lshl_b32 s94, s94, 8"); a(f"s_add_u32 s94, s94, {0x4000000}")
        a("v_lshlrev_b32 v250, 2, v0")
        a("buffer_store_dword v255, v250, s[96:99], s94 offen")
        a("s_waitcnt vmcnt(0)")

def helper(a):
    a.lab("L_helper")
    sX, sW, sST, sDB = sA, sB, sC, sDD
    sSLW, sKX, sKW, sKWs, sCST, sM0X, sM0W, sHM, sHMUL = 56, 57, 58, 59, 92, 93, 94, 95, 96
    vX0, vX1, vW0, vW1, vHo, vL16 = 3, 4, 8, 9, 5, 7
    a("v_lshrrev_b32 v1, 3, v0"); a("v_and_b32 v2, 7, v0"); a("v_lshrrev_b32 v6, 4, v0")
    a("v_xor_b32 v10, v2, v6"); a("v_lshlrev_b32 v10, 4, v10")
    a(f"s_lshl_b32 s52, s{sH}, 5"); a(f"s_add_u32 s52, s52, s{sR0}")
    a(f"v_add_u32 v{vX0}, s52, v1"); a(f"v_lshl_add_u32 v{vX0}, v{vX0}, 10, v10")
    a(f"v_xor_b32 v{vX1}, 64, v{vX0}"); a(f"v_add_u32 v{vX1}, 8192, v{vX1}")
    a(f"s_lshl_b32 s52, s{sH}, 3"); a(f"s_add_u32 s52, s52, s{sR0}"); a("s_sub_u32 s52, s52, 16")
    a(f"v_add_u32 v{vHo}, s52, v1"); a(f"v_lshl_add_u32 v{vHo}, v{vHo}, 10, v10")
    a(f"s_and_b32 s52, s{sH}, 1"); a("s_lshl_b32 s52, s52, 6"); a(f"v_xor_b32 v{vHo}, s52, v{vHo}")
    a(f"s_lshr_b32 s52, s{sH}, 1"); a(f"s_or_b32 s52, s52, s{sTY}")
    a("s_cmp_eq_u32 s52, 0"); a(f"s_cselect_b32 s{sHMUL}, 1, 0"); a(f"s_lshl_b32 s{sHM}, s{sH}, 10");
    a("s_cmp_eq_u32 s52, 0"); a(f"s_cselect_b32 s{sHM}, s{sHM}, {DUMMY}")
    a(f"s_cselect_b32 s53, 0, 0x80000000"); a(f"s_cmp_eq_u32 s{sRB}, 0"); a("s_cselect_b32 s53, 0x80000000, s53")
    a(f"v_or_b32 v{vHo}, s53, v{vHo}")
    a(f"s_cmp_eq_u32 s{sTY}, 0"); a("s_mov_b32 s53, 2752"); a("s_cselect_b32 s52, 3072, s53")
    a("s_mov_b32 s54, 128"); a(f"s_cselect_b32 s{sCST}, 1024, s54")
    a(f"s_lshl_b32 s{sKWs}, s52, 6")
    a("v_and_b32 v6, 1, v6"); a("v_lshlrev_b32 v6, 1, v6"); a("v_xor_b32 v6, v6, v2"); a("v_lshlrev_b32 v6, 4, v6")
    a(f"s_lshl_b32 s53, s{sH}, 4")
    a(f"v_add_u32 v{vW0}, s53, v1"); a(f"v_mul_u32_u24 v{vW0}, s52, v{vW0}")
    a("s_lshl_b32 s54, s52, 3"); a(f"v_add_u32 v{vW1}, s54, v{vW0}")
    a(f"v_add_u32 v{vW0}, v{vW0}, v6"); a("v_xor_b32 v6, 64, v6"); a(f"v_add_u32 v{vW1}, v{vW1}, v6")
    a(f"s_lshl_b32 s53, s{sGR}, 7"); a(f"s_lshl_b32 s54, s{sFS}, 6"); a(f"s_cmp_eq_u32 s{sTY}, 0"); a(f"s_cselect_b32 s{sKW}, s53, s54")
    a(f"s_lshl_b32 s{sM0X}, s{sH}, 12"); a(f"s_add_u32 s{sM0X}, s{sM0X}, 2048")
    a(f"s_lshl_b32 s{sM0W}, s{sH}, 11"); a(f"s_add_u32 s{sM0W}, s{sM0W}, {WOFF}")
    a(f"v_lshlrev_b32 v{vL16}, 4, v0")
    a(f"s_mov_b32 s{sSLW}, 0"); a(f"s_mov_b32 s{sKX}, 0")
    sROT, sCB = 100, 101
    if ROT:
        if ROTM == 8:
            a("s_lshr_b32 s52, s2, 6"); a("s_lshl_b32 s52, s52, 1"); a("s_lshr_b32 s53, s2, 3"); a("s_add_u32 s52, s52, s53"); a(f"s_and_b32 s{sROT}, s52, 7")
        elif ROTM == 4:
            a("s_lshr_b32 s52, s2, 6"); a("s_lshr_b32 s53, s2, 3"); a("s_add_u32 s52, s52, s53"); a("s_and_b32 s52, s52, 3"); a(f"s_lshl_b32 s{sROT}, s52, 1")
        elif ROTM == 2:
            a("s_lshr_b32 s52, s2, 6"); a("s_lshr_b32 s53, s2, 3"); a("s_add_u32 s52, s52, s53"); a("s_and_b32 s52, s52, 1"); a(f"s_lshl_b32 s{sROT}, s52, 2")
        elif ROTM == 40:
            a(f"s_and_b32 s52, s{sRB}, 3"); a(f"s_lshl_b32 s{sROT}, s52, 1")
        a(f"s_mov_b32 s{sCB}, s{sKW}")
        a(f"s_lshl_b32 s{sKX}, s{sROT}, 7"); a(f"s_mul_i32 s52, s{sROT}, s{sKWs}"); a(f"s_add_u32 s{sKW}, s{sCB}, s52")
    a("s_waitcnt lgkmcnt(0)")
    srd(a, sX, pX, S*D*2)
    a(f"s_cmp_eq_u32 s{sTY}, 0")
    a(f"s_cselect_b32 s{sW}, s{pWQKV}, s{pW1}"); a(f"s_cselect_b32 s{sW+1}, s{pWQKV+1}, s{pW1+1}")
    a(f"s_mov_b32 s52, {D*F*2}"); a(f"s_cselect_b32 s{sW+2}, {D*3*D*2}, s52")
    a(f"s_and_b32 s{sW+1}, s{sW+1}, 0xffff"); a(f"s_mov_b32 s{sW+3}, 0x20000")
    def dma_round():
        def ld(v, srdr, so): a(f"buffer_load_dwordx4 v{v}, {sr(srdr,4)}, s{so} offen lds")
        a(f"s_add_u32 m0, s{sSLW}, s{sM0W}"); a(f"s_add_u32 s53, s{sKW}, s{sCST}"); ld(vW0, sW, sKW)
        a("s_add_u32 m0, m0, 8192"); a(f"s_add_u32 s54, s53, s{sCST}"); ld(vW0, sW, 53)
        a("s_add_u32 m0, m0, 8192"); a.nop(1); ld(vW0, sW, 54)
        a(f"s_add_u32 m0, s{sSLW}, s{sM0X}"); a(f"s_add_u32 s55, s{sKX}, 16384"); ld(vX0, sX, sKX)
        a("s_add_u32 m0, m0, 1024"); a.nop(1); ld(vX1, sX, sKX)
        a(f"s_add_u32 m0, s{sSLW}, s{sM0W}"); a("s_add_u32 m0, m0, 1024"); a.nop(1); ld(vW1, sW, sKW)
        a("s_add_u32 m0, m0, 8192"); a.nop(1); ld(vW1, sW, 53)
        a("s_add_u32 m0, m0, 8192"); a.nop(1); ld(vW1, sW, 54)
        a(f"s_add_u32 m0, s{sSLW}, s{sM0X}"); a("s_add_u32 m0, m0, 2048"); a.nop(1); ld(vX0, sX, 55)
        a("s_add_u32 m0, m0, 1024"); a.nop(1); ld(vX1, sX, 55)
        a(f"s_mul_i32 s52, s{sSLW}, s{sHMUL}"); a(f"s_add_u32 m0, s52, s{sHM}"); a.nop(1); ld(vHo, sX, sKX)
        a(f"s_add_u32 s{sKX}, s{sKX}, 128"); a(f"s_add_u32 s{sKW}, s{sKW}, s{sKWs}")
        if ROT:
            a(f"s_cmp_eq_u32 s{sKX}, 1024"); a(f"s_cselect_b32 s{sKX}, 0, s{sKX}"); a(f"s_cselect_b32 s{sKW}, s{sCB}, s{sKW}")
        a(f"s_add_u32 s{sSLW}, s{sSLW}, {RS}"); a(f"s_cmp_eq_u32 s{sSLW}, {RS*NR}"); a(f"s_cselect_b32 s{sSLW}, 0, s{sSLW}")
    sNON, sEX = 97, 60
    srd(a, sST, pWS, WS_BYTES)
    a("v_mov_b32 v36, 0"); a("v_mov_b32 v37, 0"); a(f"s_mov_b32 s{sEX}, 1"); a(f"s_mov_b32 s{sNON}, 0")
    a(f"v_mov_b32 v38, {PCNT}"); a("v_mov_b32 v39, 0"); a("v_mov_b32 v40, 0"); a("v_mov_b32 v41, 0"); a("v_mov_b32 v42, 0"); a("v_mov_b32 v43, 0")
    a("ds_write_b128 v38, v[40:43]")
    a(f"s_or_b32 s52, s2, s{sH}"); a("s_cmp_lg_u32 s52, 0"); a("s_cbranch_scc1 L_nonon")
    a("s_memrealtime s[60:61]"); a("s_waitcnt lgkmcnt(0)"); a("s_or_b32 s60, s60, 1")
    a("v_mov_b32 v36, s60"); a("v_mov_b32 v37, 0"); a("s_mov_b64 exec, 1")
    a(f"global_store_dword v37, v36, s[{pDBG}:{pDBG+1}] sc1")
    a("s_mov_b64 exec, -1")
    a.lab("L_nonon")
    def pf1(r0):
        a(f"s_lshr_b32 s52, s{sKWs}, 6")
        a("v_lshrrev_b32 v12, 2, v0"); a("v_mul_u32_u24 v12, s52, v12"); a("v_and_b32 v13, 3, v0"); a(f"v_mul_u32_u24 v14, s{sCST}, v13"); a("v_add_u32 v12, v12, v14")
        a(f"s_cmp_eq_u32 s{sTY}, 0"); a("s_cselect_b32 s53, 3, 99"); a("v_cmp_eq_u32 vcc, s53, v13"); a("v_mov_b32 v14, 0x80000000"); a.nop(1); a("v_cndmask_b32 v12, v12, v14, vcc")
        a(f"s_lshl_b32 s55, s{sGR}, 7"); a(f"s_lshl_b32 s53, s{sFS}, 6"); a(f"s_cmp_eq_u32 s{sTY}, 0"); a("s_cselect_b32 s55, s55, s53")
        a("s_lshr_b32 s54, s2, 6"); a("s_lshl_b32 s54, s54, 4")
        a(f"s_add_u32 s53, s{sH}, {r0}"); a("s_lshl_b32 s53, s53, 6"); a("s_add_u32 s53, s53, s54"); a("s_mul_i32 s53, s53, s52"); a("s_add_u32 s53, s53, s55")
        a(f"buffer_load_dword v15, v12, {sr(sW,4)}, s53 offen")
        a("v_mul_u32_u24 v13, 57, v0"); a("v_lshrrev_b32 v13, 10, v13"); a("v_mul_u32_u24 v14, 18, v13"); a("v_sub_u32 v14, v0, v14")
        a("s_lshr_b32 s61, s2, 3"); a("s_and_b32 s61, s61, 7"); a("s_mul_i32 s61, s61, 18"); a(f"s_add_u32 s61, s61, s{sR0}"); a("s_sub_u32 s61, s61, 16")
        a("v_add_u32 v14, s61, v14"); a("v_lshlrev_b32 v14, 10, v14"); a("v_lshl_add_u32 v14, v13, 7, v14")
        a("v_cmp_lt_u32 vcc, 2, v13"); a("v_mov_b32 v13, 0x80000000"); a.nop(1); a("v_cndmask_b32 v14, v14, v13, vcc")
        if r0 == 0:
            a(f"s_mul_i32 s53, s{sH}, 384"); a(f"s_cmp_lt_u32 s{sH}, 3"); a("s_cselect_b32 s53, s53, 0x80000000")
        else:
            a("s_mov_b32 s53, 0x80000000"); a(f"s_cmp_eq_u32 s{sH}, 2"); a("s_cselect_b32 s53, 256, s53"); a(f"s_cmp_eq_u32 s{sH}, 3"); a("s_cselect_b32 s53, 640, s53")
        a(f"buffer_load_dword v15, v14, {sr(sX,4)}, s53 offen")
        a(f"s_add_u32 s53, s{sH}, {r0+4}"); a("s_lshl_b32 s53, s53, 6"); a("s_add_u32 s53, s53, s54"); a("s_mul_i32 s53, s53, s52"); a("s_add_u32 s53, s53, s55")
        if r0: a(f"s_cmp_lt_u32 s{sH}, 2"); a("s_cselect_b32 s53, s53, 0x80000000")
        a(f"buffer_load_dword v15, v12, {sr(sW,4)}, s53 offen")
    if PF1 and PFPOS == 'first': pf1(0)
    stamp(a, 14)
    dma_round()
    stamp(a, 15); dma_round(); stamp(a, 11)
    npf = (3 if PF1 and PFPOS == 'mid' else 0)
    if PF1 and PFPOS == 'mid': pf1(2)
    a(f"s_waitcnt vmcnt({11}+NPFX) lgkmcnt(0)".replace("11+NPFX", str(11+npf))); a("s_barrier")
    stamp(a, 2)
    dma_round()
    a(f"s_cmp_lg_u32 s{sH}, 0"); a("s_cbranch_scc1 L_nost")
    a(f"v_add_u32 v36, {PSX}, v{vL16}"); a("ds_read_b128 v[40:43], v36")
    a(f"s_lshl_b32 s52, s{sJ}, 3"); a(f"s_add_u32 s52, s52, s{sR0}"); a("s_lshl_b32 s52, s52, 4"); a(f"s_add_u32 s52, s52, {STATS_OFF}")
    a("s_waitcnt lgkmcnt(0)"); a("s_mov_b64 exec, 0xff")
    a(f"buffer_store_dwordx4 v[40:43], v{vL16}, {sr(sST,4)}, s52 offen sc1")
    a("s_mov_b64 exec, -1")
    a("v_mov_b32 v37, 0"); a(f"global_load_dword v38, v37, s[{pDBG}:{pDBG+1}]")
    a.lab("L_nost")
    def h0(name):
        a(f"s_cmp_lg_u32 s{sH}, 0"); a(f"s_cbranch_scc1 {name}")
    a(f"s_waitcnt vmcnt({11+npf})"); stamp(a, 16); a("s_barrier"); stamp(a, 24)
    dma_round(); stamp(a, 32)
    a(f"s_waitcnt vmcnt(11)"); stamp(a, 17); a("s_barrier"); stamp(a, 25)
    h0("L_h0b")
    a(f"v_readfirstlane_b32 s{sNON}, v38"); a.nop(2); a(f"s_cmp_lg_u32 s{sNON}, 0"); a("s_cbranch_scc1 L_non_ok")
    a(f"s_mov_b32 s{sT}, {SPIN_MAX}"); a("v_mov_b32 v37, 0")
    a.lab("L_non_poll")
    a(f"global_load_dword v38, v37, s[{pDBG}:{pDBG+1}] sc1"); a("s_waitcnt vmcnt(0)"); a(f"v_readfirstlane_b32 s{sNON}, v38"); a.nop(2)
    a(f"s_cmp_lg_u32 s{sNON}, 0"); a("s_cbranch_scc1 L_non_ok")
    a("s_sleep 2"); a(f"s_sub_u32 s{sT}, s{sT}, 1"); a(f"s_cmp_lg_u32 s{sT}, 0"); a("s_cbranch_scc1 L_non_poll")
    a.lab("L_non_ok")
    a(f"v_mov_b32 v39, s{sNON}")
    a("s_waitcnt vmcnt(0)")
    flag_store(a, 0, sST, 36, 39)
    a(f"v_mov_b32 v36, {NSLOT}"); a("ds_write_b32 v36, v39")
    a.lab("L_h0b")
    dma_round(); stamp(a, 33)
    a("s_waitcnt vmcnt(11)"); stamp(a, 18); a("s_barrier"); stamp(a, 26)
    dma_round(); stamp(a, 34)
    a("s_waitcnt vmcnt(11)"); stamp(a, 19); a("s_barrier"); stamp(a, 27)
    h0("L_h0c")
    a("v_subrev_u32 v36, 18, v0"); a("v_cmp_gt_u32 vcc, 16, v0"); a.nop(2); a("v_cndmask_b32 v36, v36, v0, vcc")
    a(f"s_lshl_b32 s52, s{sRB}, 4"); a("v_add_u32 v36, s52, v36"); a("v_lshlrev_b32 v36, 7, v36"); a(f"v_add_u32 v36, {FLG_OFF}, v36")
    a(f"s_cmp_eq_u32 s{sRB}, 0"); a(f"s_mov_b32 s{sEX}, 0x3ffff"); a(f"s_cselect_b32 s{sEX}, 0xffff, s{sEX}")
    a(f"s_mov_b32 exec_lo, s{sEX}"); a("s_mov_b32 exec_hi, 0")
    a(f"buffer_load_dword v38, v36, {sr(sST,4)}, 0 offen sc1")
    a("s_mov_b64 exec, -1")
    a.lab("L_h0c")
    dma_round(); stamp(a, 35)
    a("s_waitcnt vmcnt(11)"); stamp(a, 20); a("s_barrier"); stamp(a, 28)
    h0("L_h0d")
    a(f"s_mov_b32 exec_lo, s{sEX}"); a("s_mov_b32 exec_hi, 0")
    a(f"v_cmp_eq_u32 vcc, s{sNON}, v38"); a("s_mov_b64 exec, -1"); a.nop(1)
    a(f"s_cmp_eq_u32 vcc_lo, s{sEX}"); a("s_cbranch_scc1 L_p0ok")
    poll(a, 36, sNON, 38, sEX, sST, "p0")
    a.lab("L_p0ok")
    a(f"s_sub_u32 s52, s{sR0}, 16"); a("s_lshl_b32 s52, s52, 4"); a(f"s_add_u32 s52, s52, {STATS_OFF}")
    a(f"v_add_u32 v36, s52, v{vL16}")
    a(f"s_cmp_eq_u32 s{sRB}, 0"); a("s_cselect_b32 s53, 16, 0"); a("v_cmp_gt_u32 vcc, s53, v0"); a("v_mov_b32 v37, 0x80000000"); a.nop(1)
    a("v_cndmask_b32 v37, v36, v37, vcc")
    a(f"buffer_load_dwordx4 {vr(40,4)}, v37, {sr(sST,4)}, 0 offen sc1")
    a(f"buffer_load_dwordx4 {vr(44,4)}, v36, {sr(sST,4)}, 0 offen offset:1024 sc1")
    a("s_mov_b64 exec, 0xffff")
    a(f"buffer_load_dwordx4 {vr(48,4)}, v36, {sr(sST,4)}, 0 offen offset:2048 sc1")
    a("s_mov_b64 exec, -1")
    a.lab("L_h0d")
    dma_round(); stamp(a, 36)
    npf2 = 0
    if PF2:
        a(f"s_cmp_eq_u32 s{sH}, 0")
        a(f"s_cselect_b32 s{sDD}, s{pWO}, s{pW2}"); a(f"s_cselect_b32 s{sDD+1}, s{pWO+1}, s{pW2+1}")
        a(f"s_mov_b32 s53, {F*D*2}"); a(f"s_cselect_b32 s{sDD+2}, {D*D*2}, s53"); a(f"s_mov_b32 s{sDD+3}, 0x20000")
        a(f"s_and_b32 s{sDD+1}, s{sDD+1}, 0xffff")
        a("s_lshr_b32 s53, s2, 3"); a("s_lshl_b32 s54, s53, 14"); a("s_mul_i32 s53, s53, 44032")
        a(f"s_sub_u32 s55, s{sH}, 1"); a("s_lshl_b32 s55, s55, 14"); a("s_add_u32 s53, s53, s55")
        a(f"s_cmp_eq_u32 s{sH}, 0"); a("s_cselect_b32 s53, s54, s53")
        a("v_lshlrev_b32 v12, 7, v0")
        a(f"buffer_load_dword v13, v12, {sr(sDD,4)}, s53 offen"); a("s_add_u32 s53, s53, 8192")
        a(f"buffer_load_dword v14, v12, {sr(sDD,4)}, s53 offen")
        npf2 = 2
    a(f"s_waitcnt vmcnt({11+npf2})"); stamp(a, 21); a("s_barrier"); stamp(a, 29)
    h0("L_h0e")
    a("v_lshlrev_b32 v36, 2, v0"); a(f"v_add_u32 v36, {TAB}, v36")
    for q in range(3):
        if q == 2: a("s_mov_b64 exec, 0xffff")
        for k in range(4): a(f"ds_write_b32 v36, v{40+4*q+k} offset:{q*256 + k*576}")
    a("s_mov_b64 exec, -1")
    a.lab("L_h0e")
    a(f"s_waitcnt vmcnt({npf2}) lgkmcnt(0)"); stamp(a, 22); a("s_barrier")
    a("s_barrier")
    stamp(a, 3)
    a(f"s_cmp_eq_u32 s{sTY}, 0"); a("s_cbranch_scc1 L_e1a"); a("s_barrier"); a.lab("L_e1a")
    vWo, vAo = 10, 11
    a("v_lshrrev_b32 v6, 4, v0"); a("v_lshlrev_b32 v6, 1, v6"); a("v_and_b32 v8, 7, v0"); a("v_xor_b32 v6, v6, v8")
    a("v_lshlrev_b32 v6, 4, v6"); a("v_lshrrev_b32 v8, 3, v0"); a("v_lshl_add_u32 v6, v8, 10, v6")
    a(f"s_lshl_b32 s52, s{sCG}, 7"); a(f"v_add_u32 v{vWo}, s52, v6")
    a(f"v_lshlrev_b32 v{vAo}, 4, v0")
    sWO_, sW2_ = sA, sB
    srd(a, sWO_, pWO, D*D*2); srd(a, sW2_, pW2, F*D*2)
    sSL, sWk = 56, 57
    a(f"s_lshl_b32 s{sSL}, s{sH}, 12"); a(f"s_lshl_b32 s{sWk}, s{sH}, 15")
    def wdma(t0, place, pace=None):
        pace = WPACE if pace is None else pace
        for q in range(4):
            off = (t0 if t0 < 16 else t0 - 16)*32768 + q*8192
            a(f"s_add_u32 m0, s{sSL}, {place*16384 + q*1024}"); a(f"s_add_u32 s53, s{sWk}, {off}")
            a(f"buffer_load_dwordx4 v{vWo}, {sr(sWO_ if t0 < 16 else sW2_,4)}, s53 offen lds")
            if pace and (q & 1): a(f"s_sleep {pace}")
    if NOW2: a("s_branch L_now2")
    order = []
    def iss(kind, i):
        if kind == 'o': wdma(8*i + 4, i)
        else: wdma(8*i, i)
        order.append((kind, i))
    for i in range(min(WAHEAD, 7)): iss('o', i)
    a(f"v_and_b32 v{vI}, 15, v0"); a(f"v_lshrrev_b32 v{vG}, 4, v0")
    a("v_mov_b32 v12, v10")
    p2_addr(a)
    a(f"v_add_u32 v6, s{sSL}, v6")
    for cb in range(4):
        a(f"v_xor_b32 v1, {cb*32}, v7"); a(f"v_add_u32 v{2+cb}, v6, v1")
    vWo = 12
    for i in range(7):
        if i == 4:
            for cb in range(4): a(f"v_add_u32 v{2+cb}, 65536, v{2+cb}")
        newer = len(order) - 1 - order.index(('o', i))
        a(f"s_waitcnt vmcnt({4*newer})")
        w_frag_reads(a, i)
        if not STRICT and i + WAHEAD < 7: iss('o', i + WAHEAD)
        a("s_waitcnt lgkmcnt(0)")
        iss('e', i)
        if STRICT and i + WAHEAD < 7: iss('o', i + WAHEAD)
    iss('e', 7)
    for r in range(WF2+112, WF2+128): a(f"v_mov_b32 v{r}, 0")
    srd(a, sC, pWS, WS_BYTES)
    if MBX:
        a(f"s_lshl_b32 s52, s{sRG}, 3"); a(f"s_add_u32 s52, s52, s{sCG}"); a("s_lshl_b32 s52, s52, 7"); a(f"s_add_u32 s52, s52, {MBX_OFF}"); a("v_lshl_add_u32 v6, v0, 2, s52")
    else:
        a(f"s_lshr_b32 s52, s{sRG}, 1"); a("s_lshl_b32 s52, s52, 4"); a("v_add_u32 v6, s52, v0"); a("v_lshlrev_b32 v6, 7, v6"); a(f"v_add_u32 v6, {FLG_OFF+4}, v6")
    stamp(a, 62)
    a(f"s_cmp_lg_u32 s{sH}, 0"); a("s_cbranch_scc1 L_nef")
    a("s_mov_b64 exec, 0xffff")
    a(f"buffer_load_dword v7, v6, {sr(sC,4)}, 0 offen sc1")
    a("s_mov_b64 exec, -1")
    a("s_waitcnt vmcnt(0)")
    stamp(a, 61)
    a(f"s_mov_b32 s{sT}, {SPIN_MAX}")
    a.lab("L_pa")
    a("s_mov_b64 exec, 0xff"); a("v_cmp_eq_u32 vcc, s97, v7"); a("s_mov_b64 exec, -1"); a.nop(1)
    a("s_cmp_eq_u32 vcc_lo, 0xff"); a("s_cbranch_scc1 L_nef")
    a("s_mov_b64 exec, 0xffff")
    a(f"buffer_load_dword v7, v6, {sr(sC,4)}, 0 offen sc1")
    a("s_mov_b64 exec, -1")
    a("s_waitcnt vmcnt(0)")
    a(f"s_sub_u32 s{sT}, s{sT}, 1"); a(f"s_cmp_lg_u32 s{sT}, 0"); a("s_cbranch_scc1 L_pa")
    a.lab("L_nef")
    a("s_waitcnt vmcnt(0)")
    stamp(a, 56)
    a("s_branch L_p2")

def build():
    a = A()
    a(f"; @launch grid=(256,1,1) block=(512,1,1) lds={LDS}")
    a('.amdgcn_target "amdgcn-amd-amdhsa--gfx950"')
    a(".text"); a(f".globl {KN}"); a(".p2align 8"); a(f".type {KN},@function"); a.lab(KN)
    END = "L_end"
    prologue(a, END)
    helper(a)
    a.lab("L_compute")
    compute(a)
    final(a, END)
    a.lab(END); a("s_endpgm")
    a.lab("L_code_end")
    a('.section .rodata,"a"'); a(".p2align 6")
    t = a.text()
    t += f""".amdhsa_kernel {KN}
  .amdhsa_next_free_vgpr 256
  .amdhsa_next_free_sgpr 102
  .amdhsa_accum_offset 256
  .amdhsa_group_segment_fixed_size 0
  .amdhsa_kernarg_size 88
  .amdhsa_user_sgpr_count 2
  .amdhsa_user_sgpr_kernarg_segment_ptr 1
  .amdhsa_system_sgpr_workgroup_id_x 1
.end_amdhsa_kernel
"""
    return t

if __name__ == "__main__":
    out = sys.argv[1] if len(sys.argv) > 1 else "v34.s"
    PROF = len(sys.argv) > 2 and sys.argv[2] == "p"
    for arg in sys.argv[3:]:
        k, v = arg.split("=")
        globals()[k] = {"True": True, "False": False}.get(v, int(v) if v.isdigit() else v)
    open(out, "w").write(build())
```

```python
import sys, math, struct
NAME = "parallel_sum__sliding_local_dilated__mixer_channel_mlp__prompt"
KN = NAME + "_kernel"
def f2u(x): return struct.unpack("<I", struct.pack("<f", x))[0]
def hexf(x): return "0x%08x" % f2u(x)

class A:
    def __init__(s): s.l = []; s.uid = 0
    def __call__(s, t): s.l.append(t)
    def lab(s, n): s.l.append(n + ":")
    def nop(s, n):
        while n > 0:
            k = min(n, 16); s.l.append(f"s_nop {k-1}"); n -= k
    def u(s): s.uid += 1; return s.uid
    def text(s): return "\n".join(s.l) + "\n"

PROF = False
PF1 = False; PF2 = True; PRIO = 0; ASC = 'sc1'; SSC = 'sc1'; PFA = 'sc1'; DEFER = False; NOW2 = False; NOST = False; PFPOS = 'mid'; ROT = True; WIN = 2; HPRIO = 1; ROTM = 40; OSC = ''; LIGHT = False; EARLYF = True; MBX = False; WRD = 1; PSL = 2; SPREAD = 99; MAP = 0; ADDTID = True; HDROP = 3; WPACE = 0; WPACE2 = 0; WAHEAD = 1; STRICT = False; TOUCH = True
def stamp(a, i):
    if PROF and not (LIGHT and i not in (1,2,3,4,5,6,8,9,10,12,33,59,50,51,52,56,61,62,22)): a("s_memtime s[90:91]"); a("s_waitcnt lgkmcnt(0)"); a(f"v_writelane_b32 v255, s90, {i}")
def stamp_dyn(a, sreg, base):
    if PROF and not LIGHT:
        a("s_memtime s[90:91]"); a(f"s_add_u32 s89, s{sreg}, {base}"); a("s_mov_b32 m0, s89"); a("s_waitcnt lgkmcnt(0)"); a("v_writelane_b32 v255, s90, m0")
def stamp_rt(a, i):
    if PROF: a("s_memrealtime s[90:91]"); a("s_waitcnt lgkmcnt(0)"); a(f"v_writelane_b32 v255, s90, {i}")

def vr(b, n=1): return f"v{b}" if n == 1 else f"v[{b}:{b+n-1}]"
def sr(b, n=1): return f"s{b}" if n == 1 else f"s[{b}:{b+n-1}]"
def srd(a, d, lo, size):
    a(f"s_mov_b32 s{d}, s{lo}"); a(f"s_and_b32 s{d+1}, s{lo+1}, 0xffff")
    a(f"s_mov_b32 s{d+2}, {size}"); a(f"s_mov_b32 s{d+3}, 0x20000")

S, D, F = 2048, 512, 1376
NSTEP2 = 60
A2_BYTES = 128 * NSTEP2 * 1024
STATS_OFF = 0x800000
FLG_OFF = 0x810000
MBX_OFF = FLG_OFF + 256 * 128
WS_BYTES = MBX_OFF + 256 * 128
NSLOT = 151552
PCNT = 151552 + 256
PSX = 151552 + 64
RS = 43008; NR = 3; WOFF = 18432
TAB = 131072
T_CS = TAB + 2304
DUMMY = TAB + 3072
XB = TAB + 4096
LDS = 163840
BIG = -1e30
C_EXP = 0.25 * math.log2(math.e)
G1 = -2.0 * math.sqrt(2.0 / math.pi) * math.log2(math.e)
G2 = G1 * 0.044715
SPIN_MAX = 1 << 16

pX, pWQKV, pWO, pW1, pB1, pW2, pB2, pOUT, pDBG, pWS = 4, 6, 8, 12, 14, 16, 18, 20, 22, 24
sWV, sRB, sJ, sFS, sNF, sR0, sRG, sCG, sH = 26, 27, 28, 29, 30, 31, 32, 33, 34
sMASK = 35
sTY, sGR = 62, 63
sA, sB, sC, sDD = 36, 40, 44, 48
sT = 52

def MF32(d, a_, b_, c_=None):
    c_ = vr(d, 4) if c_ is None else c_
    return f"v_mfma_f32_16x16x32_bf16 {vr(d,4)}, {vr(a_,4)}, {vr(b_,4)}, {c_}"
def bf16r(a, dst, src):
    a(f"v_cvt_pk_bf16_f32 v{dst}, v{src}, v{src}"); a(f"v_and_b32 v{dst}, s{sMASK}, v{dst}")
def xlane(a, op, xs, ts):
    for sw in ("v_permlane16_swap_b32", "v_permlane32_swap_b32"):
        for x, t in zip(xs, ts): a(f"v_mov_b32 v{t}, v{x}")
        a.nop(max(0, 2 - (len(xs) - 1)))
        for x, t in zip(xs, ts): a(f"{sw} v{x}, v{t}")
        a.nop(max(0, 2 - (len(xs) - 1)))
        for x, t in zip(xs, ts): a(f"{op} v{x}, v{x}, v{t}")
def interleave(a, mf, fill, per=1):
    if SPREAD > 50:
        fi = 0
        for m in mf:
            a(m)
            for _ in range(per):
                if fi < len(fill): a(fill[fi]); fi += 1
        while fi < len(fill): a(fill[fi]); fi += 1
        return
    n = len(mf) - SPREAD
    cheap = [f for f in fill if not f.startswith("ds_")]
    reads = [f for f in fill if f.startswith("ds_")]
    slots = [[] for _ in mf]
    for k, f in enumerate(cheap): slots[min(k // 2, len(mf) - 1)].append(f)
    first = (len(cheap) + 1) // 2
    for k, f in enumerate(reads):
        slots[min(first + (k * (n - first)) // len(reads), len(mf) - 1)].append(f)
    for m, sl in zip(mf, slots):
        a(m)
        for f in sl: a(f)

def poll(a, vOff, sExp, vD, sExec, srdreg, name):
    a(f"s_mov_b32 exec_lo, s{sExec}"); a("s_mov_b32 exec_hi, 0")
    a(f"s_mov_b32 s{sT}, {SPIN_MAX}")
    a.lab(f"L_poll_{name}")
    a(f"buffer_load_dword v{vD}, v{vOff}, {sr(srdreg,4)}, 0 offen sc1")
    a("s_waitcnt vmcnt(0)")
    a(f"v_cmp_eq_u32 vcc, s{sExp}, v{vD}")
    a.nop(2)
    a(f"s_cmp_eq_u32 vcc_lo, s{sExec}")
    a(f"s_cbranch_scc1 L_polld_{name}")
    if PSL: a(f"s_sleep {PSL}")
    a(f"s_sub_u32 s{sT}, s{sT}, 1"); a(f"s_cmp_lg_u32 s{sT}, 0")
    a(f"s_cbranch_scc1 L_poll_{name}")
    a.lab(f"L_polld_{name}")
    a("s_mov_b64 exec, -1")

def flag_store(a, which, srdreg, vT, vN):
    a(f"s_lshl_b32 s{sT}, s{sRB}, 4"); a(f"s_add_u32 s{sT}, s{sT}, s{sJ}"); a(f"s_lshl_b32 s{sT}, s{sT}, 7"); a(f"s_add_u32 s{sT}, s{sT}, {FLG_OFF + 4*which}")
    a(f"v_mov_b32 v{vT}, s{sT}")
    a("s_mov_b64 exec, 1")
    a(f"buffer_store_dword v{vN}, v{vT}, {sr(srdreg,4)}, 0 offen sc1")
    a("s_mov_b64 exec, -1")

def prologue(a, END):
    a("s_cmp_ge_u32 s2, 256"); a(f"s_cbranch_scc1 {END}")
    stamp_rt(a, 0); stamp(a, 1)
    a("s_load_dwordx16 s[4:19], s[0:1], 0")
    a("s_load_dwordx4 s[20:23], s[0:1], 64")
    a("s_load_dwordx2 s[24:25], s[0:1], 80")
    a("s_getpc_b64 s[98:99]")
    a.lab("L_pc")
    a("v_lshrrev_b32 v1, 6, v0"); a("v_and_b32 v0, 63, v0")
    a(f"v_readfirstlane_b32 s{sWV}, v1")
    a("s_and_b32 s52, s2, 7"); a("s_lshr_b32 s53, s2, 3")
    if MAP == 0:
        a(f"s_lshr_b32 s{sRB}, s52, 1"); a(f"s_lshl_b32 s{sRB}, s{sRB}, 2"); a("s_lshr_b32 s54, s53, 3"); a(f"s_add_u32 s{sRB}, s{sRB}, s54")
        a(f"s_bfe_u32 s{sTY}, s53, 0x10002")
        a(f"s_and_b32 s{sGR}, s52, 1"); a(f"s_lshl_b32 s{sGR}, s{sGR}, 2"); a("s_and_b32 s55, s53, 3"); a(f"s_add_u32 s{sGR}, s{sGR}, s55")
    else:
        a(f"s_lshr_b32 s{sRB}, s52, 1"); a(f"s_lshl_b32 s{sRB}, s{sRB}, 2"); a("s_and_b32 s54, s53, 3"); a(f"s_add_u32 s{sRB}, s{sRB}, s54")
        a(f"s_lshr_b32 s{sTY}, s53, 4"); a(f"s_xor_b32 s{sTY}, s{sTY}, 1")
        a(f"s_and_b32 s{sGR}, s52, 1"); a(f"s_lshl_b32 s{sGR}, s{sGR}, 2"); a("s_bfe_u32 s55, s53, 0x20002"); a(f"s_add_u32 s{sGR}, s{sGR}, s55")
        a("s_lshr_b32 s54, s53, 3")
    a(f"s_lshl_b32 s{sJ}, s{sTY}, 3"); a(f"s_add_u32 s{sJ}, s{sJ}, s{sGR}")
    a(f"s_lshl_b32 s{sRG}, s52, 2"); a(f"s_add_u32 s{sRG}, s{sRG}, s54"); a(f"s_and_b32 s{sCG}, s53, 7")
    a(f"s_mul_i32 s{sFS}, s{sGR}, 6"); a(f"s_mul_i32 s54, s{sGR}, 5"); a("s_add_u32 s54, s54, 3")
    a(f"s_cmp_lt_u32 s{sGR}, 3"); a(f"s_cselect_b32 s{sFS}, s{sFS}, s54"); a(f"s_cselect_b32 s{sNF}, 6, 5")
    a(f"s_lshl_b32 s{sR0}, s{sRB}, 7")
    a(f"s_mov_b32 s{sMASK}, 0xffff0000")
    a(f"s_and_b32 s{sH}, s{sWV}, 3")
    a("v_mov_b32 v6, 0"); a("v_mov_b32 v7, 0")
    a(f"s_cmp_lt_u32 s{sWV}, 4"); a("s_cbranch_scc1 L_compute")

def p0_stats(a):
    sX, sST, vL16, vP = sDD, sC, 7, 16
    a(f"v_lshlrev_b32 v{vL16}, 4, v0")
    a(f"s_lshl_b32 s52, s{sJ}, 3"); a(f"s_add_u32 s52, s52, s{sR0}"); a(f"s_lshl_b32 s53, s{sWV}, 1"); a("s_add_u32 s52, s52, s53")
    a("s_lshl_b32 s60, s52, 10"); a("s_lshl_b32 s61, s52, 4")
    a("s_waitcnt lgkmcnt(0)")
    srd(a, sX, pX, S*D*2)
    a(f"buffer_load_dwordx4 {vr(vP,4)}, v{vL16}, {sr(sX,4)}, s60 offen")
    a(f"buffer_load_dwordx4 {vr(vP+4,4)}, v{vL16}, {sr(sX,4)}, s60 offen offset:1024")
    a("s_lshr_b32 s53, s2, 3"); a(f"s_lshl_b32 s54, s{sWV}, 5"); a("s_add_u32 s53, s53, s54")
    a("s_lshl_b32 s53, s53, 10"); a("v_add_u32 v2, s53, v7")
    a("s_mov_b32 s54, L_code_end-L_pc-16"); a("v_min_u32 v2, s54, v2")
    a("global_load_dwordx4 v[248:251], v2, s[98:99]")
    if TOUCH:
        lst = [(pWO, 0), (pW2, 0), (pW2, 1048576), (pB1, 0), (pB2, 0), (pOUT, 0), (pOUT, 1048576), (pWS, 60416), (pWS, 34*61440+60416), (pWS, 68*61440+60416),
               (pWS, 102*61440+60416), (pWS, STATS_OFF + 0x8000), (pW1, 0), (pWQKV, 0)]
        for k, (p, off) in enumerate(lst):
            a(f"s_add_u32 s52, s{p}, {off}"); a(f"s_addc_u32 s53, s{p+1}, 0")
            a(f"v_writelane_b32 v2, s52, {k}"); a(f"v_writelane_b32 v3, s53, {k}")
        a(f"s_mov_b64 exec, {(1 << len(lst)) - 1}")
        a("global_load_dword v252, v[2:3], off")
        a("s_mov_b64 exec, -1")
    global NPF
    NPF = 2 if TOUCH else 1
    return vP

def p0_finish(a, vP, nwait):
    sST, vL16 = sC, 7
    a(f"s_waitcnt vmcnt({nwait})")
    sA_, qA, sB_, qB = 24, 25, 26, 27
    for r in range(24, 28): a(f"v_mov_b32 v{r}, 0")
    a("v_mov_b32 v28, 0x3f803f80")
    for d in range(4):
        a(f"v_dot2c_f32_bf16 v{sA_}, v{vP+d}, v28"); a(f"v_dot2c_f32_bf16 v{qA}, v{vP+d}, v{vP+d}")
        a(f"v_dot2c_f32_bf16 v{sB_}, v{vP+4+d}, v28"); a(f"v_dot2c_f32_bf16 v{qB}, v{vP+4+d}, v{vP+4+d}")
    a.nop(2)
    for rot in (8, 4, 2, 1):
        for x in (sA_, qA, sB_, qB): a(f"v_add_f32_dpp v{x}, v{x}, v{x} row_ror:{rot} row_mask:0xf bank_mask:0xf")
    xlane(a, "v_add_f32", [sA_, qA, sB_, qB], [28, 29, 30, 31])
    a("v_and_b32 v28, 1, v0"); a("v_cmp_eq_u32 vcc, 1, v28"); a.nop(2)
    sm, sq, t0, t1, t2, t3 = 24, 25, 33, 32, 34, 35
    a(f"v_cndmask_b32 v{sm}, v{sA_}, v{sB_}, vcc"); a(f"v_cndmask_b32 v{sq}, v{qA}, v{qB}, vcc")
    a(f"v_mul_f32 v{sm}, {hexf(1/512)}, v{sm}"); a(f"v_mul_f32 v{sq}, {hexf(1/512)}, v{sq}")
    a(f"v_fma_f32 v{sq}, -v{sm}, v{sm}, v{sq}"); a(f"v_max_f32 v{sq}, 0, v{sq}")
    bf16r(a, t0, sm); bf16r(a, t1, sq)
    a(f"v_add_f32 v{t1}, {hexf(1e-5)}, v{t1}"); bf16r(a, t1, t1)
    a(f"v_sqrt_f32 v{t1}, v{t1}"); a.nop(1); bf16r(a, t1, t1)
    a(f"v_rcp_f32 v{t1}, v{t1}"); a.nop(1)
    a(f"v_mul_f32 v{t2}, v{sq}, v{t1}"); a(f"v_mul_f32 v{t2}, v{t2}, v{t1}"); bf16r(a, t2, t2)
    a(f"v_add_f32 v{t2}, {hexf(1e-5)}, v{t2}"); bf16r(a, t2, t2)
    a(f"v_sqrt_f32 v{t2}, v{t2}"); a.nop(1); bf16r(a, t2, t2)
    a(f"v_rcp_f32 v{t2}, v{t2}"); a.nop(1)
    a(f"v_mul_f32 v{t2}, v{t2}, v{t1}"); a(f"v_mul_f32 v{t0}, v{t0}, v{t1}"); a(f"v_mul_f32 v{t3}, v{sm}, v{t2}")
    a(f"s_lshl_b32 s52, s{sWV}, 5"); a(f"s_add_u32 s52, s52, {PSX}"); a(f"v_add_u32 v28, s52, v{vL16}")
    a("s_mov_b64 exec, 3")
    a(f"ds_write_b128 v28, {vr(32,4)}")
    a("s_mov_b64 exec, -1")
    a("s_waitcnt lgkmcnt(0)")

vI, vG, vAX0, vAX1, vCX = 8, 9, 10, 11, 12
vONE = 244; cS = 232
sBASE, sRND = 56, 57

def lane_common(a):
    a(f"v_and_b32 v{vI}, 15, v0"); a(f"v_lshrrev_b32 v{vG}, 4, v0")
    a(f"v_lshrrev_b32 v2, 1, v{vI}"); a(f"v_xor_b32 v2, v2, v{vG}"); a("v_lshlrev_b32 v2, 4, v2")
    a(f"v_lshl_add_u32 v{vAX0}, v{vI}, 7, v2")
    a(f"v_lshrrev_b32 v2, 2, v{vI}"); a(f"v_lshl_add_u32 v2, v{vG}, 3, v2"); a("v_lshlrev_b32 v2, 7, v2")
    a(f"v_and_b32 v3, 3, v{vI}"); a("v_lshl_add_u32 v2, v3, 3, v2"); a(f"v_add_u32 v2, {WOFF}, v2")
    a(f"v_bfe_u32 v3, v{vI}, 3, 1"); a(f"v_and_b32 v1, 1, v{vG}"); a("v_lshl_add_u32 v3, v1, 1, v3"); a("v_lshlrev_b32 v3, 5, v3")
    for i in range(4): a(f"v_mov_b32 v{vONE+i}, 0x3f803f80")

def adv_base():
    return [f"s_add_u32 s{sBASE}, s{sBASE}, {RS}", f"s_cmp_eq_u32 s{sBASE}, {RS*NR}", f"s_cselect_b32 s{sBASE}, 0, s{sBASE}"]

def main_loop(a, tag, mfmas, reads, w0):
    a("s_barrier")
    if w0: stamp(a, 2)
    for o in reads(0, 0): a(o)
    a("s_waitcnt lgkmcnt(0)")
    a.lab(f"L_cloop{tag}")
    interleave(a, mfmas(0), reads(1, 1))
    a("s_waitcnt lgkmcnt(0)"); stamp_dyn(a, sRND, 16); a("s_barrier")
    stamp_dyn(a, sRND, 24)
    interleave(a, mfmas(1), adv_base() + reads(0, 0))
    a(f"s_add_u32 s{sRND}, s{sRND}, 1"); a(f"s_cmp_lt_u32 s{sRND}, 8")
    a("s_waitcnt lgkmcnt(0)")
    a(f"s_cbranch_scc1 L_cloop{tag}")
    stamp(a, 3)
    if PRIO: a(f"s_setprio {PRIO}")
    a("s_waitcnt vmcnt(0)")
    a.nop(8)

def lds_sync(a, addr_expr_sgpr, target, name):
    a(f"v_mov_b32 v2, s{addr_expr_sgpr}"); a("v_mov_b32 v3, 1")
    a("s_mov_b64 exec, 1"); a("ds_add_u32 v2, v3");
    a.lab(f"L_ls_{name}")
    a("ds_read_b32 v3, v2"); a("s_waitcnt lgkmcnt(0)"); a("v_readfirstlane_b32 s59, v3"); a.nop(2)
    a(f"s_cmp_lt_u32 s59, {target}"); a(f"s_cbranch_scc1 L_ls_{name}")
    a("s_mov_b64 exec, -1")

def conv(a, acc, dst, r, m, cs, layout_b, t=4):
    for h in range(2):
        tp = t + 2*h
        if not layout_b:
            a(f"v_pk_mul_f32 {vr(tp,2)}, {vr(cs+2*h,2)}, {vr(m & ~1,2)} op_sel:[0,{m&1}] op_sel_hi:[1,{m&1}]")
            a(f"v_pk_fma_f32 {vr(tp,2)}, {vr(acc+2*h,2)}, {vr(r & ~1,2)}, {vr(tp,2)} op_sel:[0,{r&1},0] op_sel_hi:[1,{r&1},1] neg_lo:[0,0,1] neg_hi:[0,0,1]")
        else:
            a(f"v_pk_mul_f32 {vr(tp,2)}, {vr(m+2*h,2)}, {vr(cs,2)} op_sel:[0,0] op_sel_hi:[1,0]")
            a(f"v_pk_fma_f32 {vr(tp,2)}, {vr(acc+2*h,2)}, {vr(r+2*h,2)}, {vr(tp,2)} neg_lo:[0,0,1] neg_hi:[0,0,1]")
    for h in range(2): a(f"v_cvt_pk_bf16_f32 v{dst+h}, v{t+2*h}, v{t+2*h+1}")

def compute_A(a):
    XA, WA = [32, 68], [104, 116]
    aQ, aK, aV = 128, 160, 196
    vAW, vCW = 13, 14
    sWS_ = sA
    a.lab("L_typeA")
    lane_common(a)
    a(f"v_xor_b32 v{vAX1}, 64, v{vAX0}")
    a(f"s_lshl_b32 s52, s{sWV}, 5"); a("v_xor_b32 v3, s52, v3"); a(f"v_add_u32 v{vAW}, v2, v3")
    for r in range(aQ, cS + 12): a(f"v_mov_b32 v{r}, 0")
    a(f"s_mov_b32 s{sBASE}, 0"); a(f"s_mov_b32 s{sRND}, 0")
    srd(a, sWS_, pWS, A2_BYTES)
    p0_finish(a, 16, NPF)
    bC, bP, bPF = 16, 20, 24
    Mc0, Mc1, Mp0, Mp1 = 28, 29, 30, 31
    tt = 84
    a(f"v_mov_b32 v{tt+3}, {hexf(BIG)}")
    for r in range(4):
        a(f"v_lshl_add_u32 v{tt}, v{vG}, 2, {r}"); a(f"v_sub_u32 v{tt}, v{vI}, v{tt}")
        a(f"v_and_b32 v{tt+1}, 1, v{tt}")
        a(f"v_cmp_eq_u32 vcc, 0, v{tt+1}"); a(f"v_cmp_le_i32 s[52:53], 0, v{tt}")
        hm = "0xffff0000" if (r & 1) else "0xffff"
        a(f"v_mov_b32 v{tt+2}, {hm}"); a.nop(1)
        a("s_and_b64 s[54:55], vcc, s[52:53]"); a("s_andn2_b64 s[58:59], vcc, s[52:53]")
        a(f"v_cndmask_b32 v{bC+r}, v{tt+3}, 0, s[54:55]"); a(f"v_cndmask_b32 v{bP+r}, v{tt+3}, 0, s[58:59]")
        mc, mp = (Mc0, Mp0) if r < 2 else (Mc1, Mp1)
        z = "0" if (r & 1) == 0 else None
        a(f"v_cndmask_b32 v{mc}, {z or 'v%d' % mc}, v{tt+2}, s[54:55]"); a(f"v_cndmask_b32 v{mp}, {z or 'v%d' % mp}, v{tt+2}, s[58:59]")
    a(f"s_cmp_eq_u32 s{sRB}, 0"); a("s_cselect_b64 vcc, -1, 0")
    for r in range(4): a(f"v_cndmask_b32 v{bPF+r}, v{bP+r}, v{tt+3}, vcc")
    def reads(buf, sub):
        o = [f"v_add_u32 v{vCX}, s{sBASE}, v{vAX1 if sub else vAX0}"]
        if sub == 0: o.append(f"v_add_u32 v{vCW}, s{sBASE}, v{vAW}")
        for p in range(3):
            o.append(f"ds_read_b64_tr_b16 {vr(WA[buf]+4*p,2)}, v{vCW} offset:{p*8192+sub*4096}")
            o.append(f"ds_read_b64_tr_b16 {vr(WA[buf]+4*p+2,2)}, v{vCW} offset:{p*8192+sub*4096+512}")
        for t in range(9): o.append(f"ds_read_b128 {vr(XA[buf]+4*t,4)}, v{vCX} offset:{t*2048}")
        return o
    def mfmas(buf):
        X, W = XA[buf], WA[buf]
        mf = []
        for t in range(9):
            mf.append(MF32(aK+4*t, W+4, X+4*t)); mf.append(MF32(aV+4*t, X+4*t, W+8))
            if t >= 1: mf.append(MF32(aQ+4*(t-1), W, X+4*t))
        mf += [MF32(cS, W, vONE), MF32(cS+4, W+4, vONE), MF32(cS+8, vONE, W+8)]
        return mf
    main_loop(a, "A", mfmas, reads, True)
    stamp(a, 4)
    vTA, vTB = 13, 14
    a(f"v_lshlrev_b32 v{vTA}, 2, v{vI}"); a(f"v_add_u32 v{vTA}, {TAB}, v{vTA}")
    a(f"v_lshlrev_b32 v{vTB}, 4, v{vG}"); a(f"v_add_u32 v{vTB}, {TAB}, v{vTB}")
    RA, MA = 32, 42
    RB_, MB_ = 52, 88
    for t in range(9): a(f"ds_read_b32 v{RA+t}, v{vTA} offset:{t*64}")
    for t in range(3): a(f"ds_read_b128 {vr(RB_+4*t,4)}, v{vTB} offset:{t*64}"); a(f"ds_read_b128 {vr(MB_+4*t,4)}, v{vTB} offset:{576+t*64}")
    a("s_waitcnt lgkmcnt(6)")
    for t in range(9): a(f"ds_read_b32 v{MA+t}, v{vTA} offset:{576+t*64}")
    a("s_waitcnt lgkmcnt(3)")
    for t in range(3, 9): a(f"ds_read_b128 {vr(RB_+4*t,4)}, v{vTB} offset:{t*64}"); a(f"ds_read_b128 {vr(MB_+4*t,4)}, v{vTB} offset:{576+t*64}")
    a("s_waitcnt lgkmcnt(12)")
    Kb, Vb, Qb = aK, aV, aQ
    for t in range(9):
        conv(a, aK+4*t, Kb+2*t, RA+t, MA+t, cS+4, False)
        if t >= 1: conv(a, aQ+4*(t-1), Qb+2*(t-1), RA+t, MA+t, cS, False)
    a("s_waitcnt lgkmcnt(0)")
    for t in range(9):
        conv(a, aV+4*t, Vb+2*t, RB_+4*t, MB_+4*t, cS+8, True)
    a(f"s_mov_b32 s54, {hexf(C_EXP)}")
    Sr, Tr, Pr, Or = 88, 144, 178, 214
    for b in range(2):
        U = range(4)
        for u in U:
            gu = 4*b + u; t = gu + 1
            bp = bPF if gu == 0 else bP
            a(f"v_mfma_f32_16x16x16_bf16 {vr(Sr+8*u,4)}, {vr(Kb+2*(t-1),2)}, {vr(Qb+2*gu,2)}, {vr(bp,4)}")
            a(f"v_mfma_f32_16x16x16_bf16 {vr(Sr+8*u+4,4)}, {vr(Kb+2*t,2)}, {vr(Qb+2*gu,2)}, {vr(bC,4)}")
        a.nop(4)
        for u in U:
            Sp, Sc, a0, a1 = Sr+8*u, Sr+8*u+4, Tr+4*u, Tr+4*u+1
            a(f"v_max3_f32 v{a0}, v{Sp}, v{Sp+1}, v{Sc}"); a(f"v_max3_f32 v{a1}, v{Sp+2}, v{Sp+3}, v{Sc+2}")
            a(f"v_max_f32 v{a0}, v{a0}, v{Sc+1}"); a(f"v_max_f32 v{a1}, v{a1}, v{Sc+3}")
            a(f"v_max_f32 v{Tr+4*u+2}, v{a0}, v{a1}")
        xlane(a, "v_max_f32", [Tr+4*u+2 for u in U], [Tr+4*u+3 for u in U])
        for u in U: a(f"v_mul_f32 v{Tr+4*u+2}, s54, v{Tr+4*u+2}")
        for u in U:
            for k in range(2): a(f"v_fma_f32 v{Tr+4*u+k}, v{Tr+4*u+k}, s54, -v{Tr+4*u+2}")
        for u in U:
            for k in range(2): a(f"v_exp_f32 v{Tr+4*u+k}, v{Tr+4*u+k}")
        for u in U:
            for k in range(2): a(f"v_cvt_pk_bf16_f32 v{Tr+4*u+k}, v{Tr+4*u+k}, v{Tr+4*u+k}")
        for u in U:
            P = Pr+4*u; a0, a1 = Tr+4*u, Tr+4*u+1
            a(f"v_and_b32 v{P}, v{a0}, v{Mp0}"); a(f"v_and_b32 v{P+1}, v{a1}, v{Mp1}")
            a(f"v_and_b32 v{P+2}, v{a0}, v{Mc0}"); a(f"v_and_b32 v{P+3}, v{a1}, v{Mc1}")
        a.nop(2)
        for u in U:
            t = 4*b + u + 1
            a(MF32(Sr+8*u, vONE, Pr+4*u, "0")); a(MF32(Sr+8*u+4, Vb+2*(t-1), Pr+4*u, "0"))
        a.nop(4)
        for u in U: a(f"v_rcp_f32 v{Sr+8*u}, v{Sr+8*u}")
        for u in U:
            for k in range(4): a(f"v_mul_f32 v{Sr+8*u+4+k}, v{Sr+8*u+4+k}, v{Sr+8*u}")
        for u in U:
            for k in range(2): a(f"v_cvt_pk_bf16_f32 v{Or+2*(4*b+u)+k}, v{Sr+8*u+4+2*k}, v{Sr+8*u+4+2*k+1}")
    stamp(a, 5)
    a(f"s_lshr_b32 s52, s{sWV}, 1"); a("s_lshl_b32 s52, s52, 13"); a(f"s_add_u32 s52, s52, {XB}")
    a(f"s_and_b32 s53, s{sWV}, 1"); a("s_lshl_b32 s54, s53, 3"); a("s_add_u32 s54, s54, s52")
    a("v_lshlrev_b32 v15, 4, v0"); a("v_add_u32 v2, s54, v15")
    for u in range(8): a(f"ds_write_b64 v2, {vr(Or+2*u,2)} offset:{u*1024}")
    a("s_lshl_b32 s54, s53, 12"); a("s_add_u32 s54, s54, s52")
    a(f"s_lshr_b32 s55, s{sWV}, 1"); a("s_lshl_b32 s55, s55, 2"); a(f"s_add_u32 s55, s55, {PCNT+4}")
    lds_sync(a, 55, 2, "xa")
    a("v_add_u32 v3, s54, v15")
    for u in range(4): a(f"ds_read_b128 {vr(88+4*u,4)}, v3 offset:{u*1024}")
    a(f"s_lshl_b32 s52, s{sRB}, 3"); a("s_lshl_b32 s54, s53, 2"); a("s_add_u32 s52, s52, s54"); a(f"s_mul_i32 s52, s52, {NSTEP2}")
    a(f"s_lshl_b32 s54, s{sGR}, 1"); a("s_add_u32 s52, s52, s54"); a(f"s_lshr_b32 s54, s{sWV}, 1"); a("s_add_u32 s52, s52, s54"); a("s_lshl_b32 s52, s52, 10")
    for u in range(4):
        a(f"s_waitcnt lgkmcnt({3-u})")
        a(f"buffer_store_dwordx4 {vr(88+4*u,4)}, v15, {sr(sWS_,4)}, s52 offen {SSC.replace('_',' ')}")
        if u < 3: a(f"s_add_u32 s52, s52, {NSTEP2*1024}")
    stamp(a, 6)
    a("s_branch L_p1done")

def compute_M(a):
    XM, WM = [32, 48], [64, 88]
    aF = 128
    vAW, vCW = 13, 112
    vAWb = 116
    vB1 = 16
    sWS_, sB1_ = sA, sB
    a.lab("L_typeM")
    lane_common(a)
    a(f"s_lshr_b32 s52, s{sWV}, 1"); a("s_lshl_b32 s52, s52, 13"); a("s_add_u32 s52, s52, 2048")
    a(f"v_add_u32 v{vAX0}, s52, v{vAX0}"); a(f"v_xor_b32 v{vAX1}, 64, v{vAX0}")
    for cb in range(4):
        a(f"v_xor_b32 v1, {cb*32}, v3"); a(f"v_add_u32 v{vAWb+cb}, v2, v1")
    for r in range(aF, cS + 12): a(f"v_mov_b32 v{r}, 0")
    a(f"s_mov_b32 s{sBASE}, 0"); a(f"s_mov_b32 s{sRND}, 0")
    srd(a, sWS_, pWS, A2_BYTES); srd(a, sB1_, pB1, F * 2)
    p0_finish(a, 16, NPF)
    a(f"s_and_b32 s52, s{sWV}, 1"); a("s_mul_i32 s52, s52, 3"); a(f"s_add_u32 s52, s52, s{sFS}"); a("s_lshl_b32 s52, s52, 6")
    a(f"v_lshlrev_b32 v2, 3, v{vG}")
    for k in range(6): a(f"buffer_load_dwordx2 {vr(vB1+2*k,2)}, v2, {sr(sB1_,4)}, s52 offen offset:{k*32}")
    for w in range(1, 4):
        a(f"s_cmp_eq_u32 s{sWV}, {w}"); a(f"s_cbranch_scc1 L_mv{w}")
    for w in range(4):
        ch, rh = w & 1, w >> 1
        a.lab(f"L_mv{w}")
        def reads(buf, sub):
            o = [f"v_add_u32 v{vCX}, s{sBASE}, v{vAX1 if sub else vAX0}"]
            cbs = sorted(set((6*ch + k) & 3 for k in range(6)))
            if sub == 0:
                for cb in cbs: o.append(f"v_add_u32 v{vCW+cb}, s{sBASE}, v{vAWb+cb}")
            for k in range(6):
                cg = 6*ch + k; q, cb = cg >> 2, cg & 3
                o.append(f"ds_read_b64_tr_b16 {vr(WM[buf]+4*k,2)}, v{vCW+cb} offset:{q*8192+sub*4096}")
                o.append(f"ds_read_b64_tr_b16 {vr(WM[buf]+4*k+2,2)}, v{vCW+cb} offset:{q*8192+sub*4096+512}")
            for t in range(4): o.append(f"ds_read_b128 {vr(XM[buf]+4*t,4)}, v{vCX} offset:{t*2048}")
            return o
        def mfmas(buf):
            X, W = XM[buf], WM[buf]
            mf = []
            for k in range(6):
                for t in range(4): mf.append(MF32(aF + ((k >> 1)*4 + t)*8 + 4*(k & 1), W+4*k, X+4*t))
            for e in range(3): mf.append(MF32(cS+4*e, W+4*(3*rh+e), vONE))
            return mf
        main_loop(a, f"M{w}", mfmas, reads, w == 0)
        a(f"v_lshlrev_b32 v2, 4, v{vG}"); a(f"v_add_u32 v2, {T_CS}, v2")
        a("s_mov_b32 exec_lo, 0x00010001"); a("s_mov_b32 exec_hi, 0x00010001")
        for e in range(3): a(f"ds_write_b128 v2, {vr(cS+4*e,4)} offset:{(6*ch+3*rh+e)*64}")
        a("s_mov_b64 exec, -1")
        if w < 3: a("s_branch L_mepi")
    a.lab("L_mepi")
    a("s_waitcnt lgkmcnt(0)"); a("s_barrier")
    stamp(a, 4)
    CS, B1, RR_, MR_ = 32, 56, 80, 84
    a(f"s_lshr_b32 s52, s{sWV}, 1"); a("s_lshl_b32 s52, s52, 8")
    a(f"v_lshl_add_u32 v2, v{vI}, 2, s52"); a(f"v_add_u32 v2, {TAB + 64}, v2")
    for t in range(4):
        a(f"ds_read_b32 v{RR_+t}, v2 offset:{1152+t*64}"); a(f"ds_read_b32 v{MR_+t}, v2 offset:{1728+t*64}")
    a(f"s_and_b32 s53, s{sWV}, 1"); a("s_mul_i32 s54, s53, 384"); a(f"v_lshl_add_u32 v3, v{vG}, 4, s54"); a(f"v_add_u32 v3, {T_CS}, v3")
    for k in range(6): a(f"ds_read_b128 {vr(CS+4*k,4)}, v3 offset:{k*64}")
    for k in range(12):
        a(f"v_lshlrev_b32 v{B1+2*k}, 16, v{vB1+k}"); a(f"v_and_b32 v{B1+2*k+1}, s{sMASK}, v{vB1+k}")
    sC2, kC1 = 60, 112
    a(f"s_mov_b32 s{sC2}, {hexf(G2)}"); a(f"s_mov_b32 s{sC2+1}, {hexf(G2)}")
    a(f"v_mov_b32 v{kC1}, {hexf(G1)}"); a(f"v_mov_b32 v{kC1+1}, {hexf(G1)}")
    a("v_lshlrev_b32 v15, 4, v0")
    a(f"s_lshr_b32 s52, s{sWV}, 1"); a("s_lshl_b32 s52, s52, 2"); a(f"s_lshl_b32 s54, s{sRB}, 3"); a("s_add_u32 s52, s52, s54"); a(f"s_mul_i32 s52, s52, {NSTEP2}")
    a("s_mul_i32 s54, s53, 3"); a("s_add_u32 s52, s52, s54"); a(f"s_add_u32 s52, s52, s{sFS}"); a("s_add_u32 s52, s52, 16"); a("s_lshl_b32 s52, s52, 10")
    a(f"s_sub_u32 s55, s{sNF}, s54")
    a("s_waitcnt lgkmcnt(0)")
    for sp in range(3):
        stamp(a, 50+sp)
        if sp == 2:
            a("s_cmp_lt_u32 s55, 3"); a("s_cbranch_scc1 L_gelu_done")
        for t in range(4):
            g = sp*4 + t
            o = 104 + 4*(g & 1)
            r, m = RR_+t, MR_+t
            cs, b1, acc = CS + 8*sp, B1 + 8*sp, aF + 8*g
            T = 88
            for p in range(4):
                u = T + 2*p
                a(f"v_pk_fma_f32 {vr(u,2)}, {vr(cs+2*p,2)}, {vr(m&~1,2)}, {vr(b1+2*p,2)} op_sel:[0,{m&1},0] op_sel_hi:[1,{m&1},1] neg_lo:[0,1,0] neg_hi:[0,1,0]")
            for p in range(4):
                u = T + 2*p
                a(f"v_pk_fma_f32 {vr(u,2)}, {vr(acc+2*p,2)}, {vr(r&~1,2)}, {vr(u,2)} op_sel:[0,{r&1},0] op_sel_hi:[1,{r&1},1]")
            for p in range(4): a(f"v_pk_mul_f32 {vr(T+8+2*p,2)}, {vr(T+2*p,2)}, {vr(T+2*p,2)}")
            for p in range(4): a(f"v_pk_fma_f32 {vr(T+8+2*p,2)}, {vr(T+8+2*p,2)}, {sr(sC2,2)}, {vr(kC1,2)}")
            for p in range(4): a(f"v_pk_mul_f32 {vr(T+8+2*p,2)}, {vr(T+8+2*p,2)}, {vr(T+2*p,2)}")
            for p in range(8): a(f"v_exp_f32 v{T+8+p}, v{T+8+p}")
            for p in range(4): a(f"v_pk_add_f32 {vr(T+8+2*p,2)}, {vr(T+8+2*p,2)}, 1.0 op_sel_hi:[1,0]")
            for p in range(8): a(f"v_rcp_f32 v{T+8+p}, v{T+8+p}")
            for p in range(4): a(f"v_pk_mul_f32 {vr(T+8+2*p,2)}, {vr(T+8+2*p,2)}, {vr(T+2*p,2)}")
            if DEFER: o = acc
            for p in range(4): a(f"v_cvt_pk_bf16_f32 v{o+p}, v{T+8+2*p}, v{T+8+2*p+1}")
            if not DEFER and not NOST:
                a(f"s_add_u32 s53, s52, {(t*NSTEP2+sp)*1024}")
                a(f"buffer_store_dwordx4 {vr(o,4)}, v15, {sr(sWS_,4)}, s53 offen {SSC.replace('_',' ')}")
        if DEFER and sp == 1:
            pass
    if DEFER:
        for t in range(4):
            a(f"s_add_u32 s53, s52, {(t*NSTEP2+2)*1024}")
            a(f"buffer_store_dwordx4 {vr(aF+8*(8+t),4)}, v15, {sr(sWS_,4)}, s53 offen {SSC.replace('_',' ')}")
    a.lab("L_gelu_done")
    if DEFER:
        for sp in range(2):
            for t in range(4):
                a(f"s_add_u32 s53, s52, {(t*NSTEP2+sp)*1024}")
                a(f"buffer_store_dwordx4 {vr(aF+8*(sp*4+t),4)}, v15, {sr(sWS_,4)}, s53 offen {SSC.replace('_',' ')}")
    stamp(a, 6)

def compute(a):
    p0_stats(a)
    a(f"s_cmp_eq_u32 s{sTY}, 1"); a("s_cbranch_scc1 L_typeM")
    compute_A(a)
    compute_M(a)
    a.lab("L_p1done")
    a("s_waitcnt vmcnt(0)"); stamp(a, 33)
    srd(a, sB, pWS, WS_BYTES)
    a(f"v_mov_b32 v2, {PCNT}"); a("v_mov_b32 v3, 1"); a(f"v_mov_b32 v4, {NSLOT}")
    a("s_mov_b64 exec, 1")
    a("ds_add_rtn_u32 v3, v2, v3"); a("ds_read_b32 v5, v4")
    a("s_waitcnt lgkmcnt(0)")
    a("s_mov_b64 exec, -1")
    a("v_readfirstlane_b32 s52, v3"); a.nop(2); a("s_cmp_lg_u32 s52, 3"); a("s_cbranch_scc1 L_nopub")
    if MBX:
        a("v_readfirstlane_b32 s53, v5"); a(f"s_lshl_b32 s52, s{sRB}, 4"); a("v_add_u32 v2, s52, v0"); a("v_lshlrev_b32 v2, 7, v2")
        a(f"s_lshl_b32 s52, s{sJ}, 2"); a(f"s_add_u32 s52, s52, {MBX_OFF}"); a("v_add_u32 v2, s52, v2"); a("v_mov_b32 v5, s53")
        a("s_mov_b64 exec, 0xffff")
        a(f"buffer_store_dword v5, v2, {sr(sB,4)}, 0 offen sc1")
        a("s_mov_b64 exec, -1")
    else:
        flag_store(a, 1, sB, 2, 5)
    a.lab("L_nopub")
    p2_addr(a)
    a(f"s_lshl_b32 s52, s{sWV}, 12"); a("v_add_u32 v6, s52, v6")
    for cb in range(4):
        a(f"v_xor_b32 v10, {cb*32}, v7"); a(f"v_add_u32 v{2+cb}, v6, v10")
    p2_main(a)

AF2 = [12, 28, 44]; ACC2 = 60; WF2 = 124
def p2_addr(a):
    a(f"v_lshrrev_b32 v6, 2, v{vI}"); a(f"v_lshl_add_u32 v6, v{vG}, 2, v6")
    a("v_lshrrev_b32 v7, 1, v6"); a("v_and_b32 v7, 3, v7"); a("v_lshlrev_b32 v7, 5, v7")
    a("v_lshlrev_b32 v6, 7, v6"); a(f"v_and_b32 v10, 3, v{vI}"); a("v_lshl_add_u32 v6, v10, 3, v6")
def w_frag_reads(a, i):
    for cb in range(4):
        d = WF2 + 16*i + 4*cb
        a(f"ds_read_b64_tr_b16 {vr(d,2)}, v{2+cb} offset:{(i % 4)*16384}"); a(f"ds_read_b64_tr_b16 {vr(d+2,2)}, v{2+cb} offset:{(i % 4)*16384+2048}")

def p2_main(a):
    a.lab("L_p2")
    vAo, sA2_, sAk, sOff = 1, sC, 56, 58
    srd(a, sA2_, pWS, WS_BYTES)
    a(f"v_lshlrev_b32 v{vAo}, 4, v0")
    a(f"s_lshl_b32 s{sAk}, s{sRG}, 2"); a(f"s_mul_i32 s{sAk}, s{sAk}, {NSTEP2}"); a(f"s_add_u32 s{sAk}, s{sAk}, s{sWV}"); a(f"s_lshl_b32 s{sAk}, s{sAk}, 10")
    a(f"s_add_u32 s57, s{sAk}, {7*8192}"); a(f"s_cmp_lt_u32 s{sWV}, 3"); a("s_cselect_b32 s57, s57, 0x80000000")
    if HPRIO:
        a(f"s_cmp_lt_u32 s{sWV}, 4"); a("s_cbranch_scc1 L_np"); a(f"s_setprio {HPRIO}"); a.lab("L_np")
    a("s_barrier")
    stamp(a, 8)
    free = list(AF2); buf = {}; issued = []
    def issue(i):
        b0 = free.pop(0); buf[i] = b0; issued.append(i)
        for b in range(4):
            if i == 7: a(f"s_add_u32 s{sOff}, s57, {b*NSTEP2*1024}")
            else: a(f"s_add_u32 s{sOff}, s{sAk}, {i*8192 + b*NSTEP2*1024}")
            a(f"buffer_load_dwordx4 {vr(b0+4*b,4)}, v{vAo}, {sr(sA2_,4)}, s{sOff} offen {ASC.replace('_',' ') if ASC != 'none' else ''}")
    a(f"s_cmp_lg_u32 s{sWV}, 4"); a("s_cbranch_scc1 L_nsn")
    a("s_mov_b64 exec, 0xffff"); a(f"buffer_load_dword v7, v6, {sr(sA2_,4)}, 0 offen sc1"); a("s_mov_b64 exec, -1")
    a.lab("L_nsn")
    issue(0); issue(1)
    def wreads():
        a(f"s_cmp_ge_u32 s{sWV}, 4"); a("s_cbranch_scc1 L_wrdy")
        for i in range(8):
            if i == 4:
                for cb in range(4): a(f"v_add_u32 v{2+cb}, 65536, v{2+cb}")
            w_frag_reads(a, i)
        a("s_waitcnt lgkmcnt(0)")
        a.lab("L_wrdy")
    if WRD: wreads()
    a(f"s_cmp_lg_u32 s{sWV}, 4"); a("s_cbranch_scc1 L_g2")
    a("s_waitcnt vmcnt(8)")
    a("s_mov_b32 s60, 0xff00")
    a("s_mov_b32 exec_lo, s60"); a("s_mov_b32 exec_hi, 0"); a("v_cmp_eq_u32 vcc, s97, v7"); a("s_mov_b64 exec, -1"); a.nop(1)
    a("s_cmp_eq_u32 vcc_lo, s60"); a("s_cbranch_scc1 L_g2")
    poll(a, 6, 97, 7, 60, sA2_, "p1m")
    a.lab("L_g2")
    a("s_barrier"); stamp(a, 59)
    issue(2); nxt = 3
    if not WRD: wreads()
    tail_issued = False; tb = None
    for i in range(8):
        newer = len(issued) - 1 - issued.index(i)
        a(f"s_waitcnt vmcnt({min(63, 4*newer + ((3 if ADDTID else 2) if tail_issued else 0))})")
        stamp(a, 40+i)
        if i == 7: a(f"s_cmp_ge_u32 s{sWV}, 3"); a("s_cbranch_scc1 L_s7skip")
        for b in range(4):
            for cb in range(4):
                if ADDTID: a(MF32(ACC2+(cb*4+b)*4, buf[i]+4*b, WF2+16*i+4*cb, "0" if i == 0 else None))
                else: a(MF32(ACC2+(cb*4+b)*4, WF2+16*i+4*cb, buf[i]+4*b, "0" if i == 0 else None))
        if i == HDROP: a("s_setprio 0")
        free.append(buf[i]); free.append(WF2 + 16*i)
        while free and nxt < 8 and nxt < i + 1 + WIN: issue(nxt); nxt += 1
        if nxt == 8 and not tail_issued and free:
            tail_issued = True; tb = free.pop(0); tail_loads(a, tb)
    a.lab("L_s7skip")
    stamp(a, 9)
    if ADDTID:
        a(f"s_lshl_b32 s52, s{sWV}, 14"); a(f"s_cmp_ge_u32 s{sWV}, 4"); a("s_cselect_b32 s53, 49216, 0"); a("s_sub_u32 s52, s52, s53"); a("s_mov_b32 m0, s52")
        a.nop(6)
        a(f"s_cmp_ge_u32 s{sWV}, 4"); a("s_cbranch_scc1 L_wrhi")
        for k in range(64): a(f"ds_write_addtid_b32 v{ACC2+k} offset:{k*256}")
        a("s_branch L_wrd")
        a.lab("L_wrhi")
        for k in range(64): a(f"ds_write_addtid_b32 v{ACC2+k} offset:{49216 + k*256}")
        a.lab("L_wrd")
    else:
        a.nop(8)
        a(f"s_mul_i32 s52, s{sWV}, 17408"); a(f"v_mul_u32_u24 v6, 272, v{vI}"); a(f"v_lshl_add_u32 v6, v{vG}, 4, v6"); a("v_add_u32 v6, s52, v6")
        for cb in range(4):
            for b in range(4):
                a(f"ds_write_b128 v6, {vr(ACC2+(cb*4+b)*4,4)} offset:{b*16*272 + cb*64}")
    move_tail(a, tb)
    a("s_waitcnt lgkmcnt(0)")

TB = 12
vXO, vRow, vCol, vXD, vB2 = TB, TB+1, TB+2, TB+8, TB+12
def tail_loads(a, tb):
    sXs, sB2_ = sB, sDD
    srd(a, sXs, pX, S*D*2); srd(a, sB2_, pB2, D*2)
    if ADDTID:
        a(f"v_bfe_u32 v{tb+1}, v0, 2, 2"); a(f"v_lshrrev_b32 v{tb+2}, 4, v0"); a(f"v_lshl_add_u32 v{tb+3}, v{tb+1}, 2, v{tb+2}")
        a(f"s_lshr_b32 s52, s{sWV}, 2"); a("s_lshl_b32 s52, s52, 5"); a(f"s_lshl_b32 s53, s{sRG}, 6"); a("s_add_u32 s52, s52, s53")
        a(f"v_add_u32 v{tb+3}, s52, v{tb+3}"); a(f"v_lshlrev_b32 v{tb+3}, 10, v{tb+3}")
        a(f"s_and_b32 s52, s{sWV}, 3"); a("s_lshl_b32 s52, s52, 5"); a(f"s_lshl_b32 s53, s{sCG}, 7"); a("s_add_u32 s52, s52, s53")
        a(f"v_and_b32 v{tb+4}, 3, v0"); a(f"v_lshl_add_u32 v{tb+4}, v{tb+4}, 3, s52")
        a(f"v_add_u32 v{tb}, v{tb+3}, v{tb+4}")
        a(f"buffer_load_dwordx2 {vr(tb+8,2)}, v{tb}, {sr(sXs,4)}, 0 offen")
        a(f"s_mov_b32 s52, 16384"); a(f"buffer_load_dwordx2 {vr(tb+10,2)}, v{tb}, {sr(sXs,4)}, s52 offen")
        a(f"buffer_load_dwordx2 {vr(tb+12,2)}, v{tb+4}, {sr(sB2_,4)}, 0 offen")
        return
    a(f"s_lshl_b32 s52, s{sWV}, 3"); a(f"v_lshrrev_b32 v{tb+1}, 3, v0"); a(f"v_add_u32 v{tb+1}, s52, v{tb+1}"); a(f"v_and_b32 v{tb+2}, 7, v0")
    a(f"s_lshl_b32 s52, s{sRG}, 6"); a(f"v_add_u32 v{tb+3}, s52, v{tb+1}"); a(f"v_lshlrev_b32 v{tb+3}, 10, v{tb+3}")
    a(f"s_lshl_b32 s53, s{sCG}, 7"); a(f"v_lshlrev_b32 v{tb+4}, 4, v{tb+2}"); a(f"v_add_u32 v{tb+4}, s53, v{tb+4}")
    a(f"v_add_u32 v{tb}, v{tb+3}, v{tb+4}")
    a(f"buffer_load_dwordx4 {vr(tb+8,4)}, v{tb}, {sr(sXs,4)}, 0 offen")
    a(f"buffer_load_dwordx4 {vr(tb+12,4)}, v{tb+4}, {sr(sB2_,4)}, 0 offen")
def move_tail(a, tb):
    if tb == TB: return
    a("s_waitcnt vmcnt(0)")
    for k in list(range(3)) + list(range(8, 16)): a(f"v_mov_b32 v{TB+k}, v{tb+k}")

def final(a, END):
    a.lab("L_final")
    if ADDTID:
        R = 28
        a("s_waitcnt vmcnt(0)")
        for bb in range(2):
            for h in range(2):
                d = R + 4*bb + 2*h
                a(f"v_lshlrev_b32 v{d}, 16, v{vXD+2*bb+h}"); a(f"v_and_b32 v{d+1}, s{sMASK}, v{vXD+2*bb+h}")
                a(f"v_lshlrev_b32 v36, 16, v{vB2+h}"); a(f"v_and_b32 v37, s{sMASK}, v{vB2+h}")
                a(f"v_pk_add_f32 {vr(d,2)}, {vr(d,2)}, {vr(36,2)}")
    a("s_barrier")
    stamp(a, 10)
    srd(a, sA, pOUT, S*D*2)
    if ADDTID:
        a(f"s_and_b32 s52, s{sWV}, 3"); a("s_lshl_b32 s52, s52, 12"); a(f"s_lshr_b32 s53, s{sWV}, 2"); a("s_lshl_b32 s53, s53, 11"); a("s_add_u32 s52, s52, s53")
        a(f"v_lshlrev_b32 v40, 8, v{vCol}"); a(f"v_lshl_add_u32 v40, v{vRow}, 6, v40"); a("v_and_b32 v41, 3, v0"); a("v_lshl_add_u32 v40, v41, 4, v40"); a("v_add_u32 v40, s52, v40")
        P = 128
        for w in range(8):
            if w == 4: a("v_add_u32 v40, 65536, v40")
            o = (w % 4)*16384
            a(f"ds_read_b128 {vr(P+8*w,4)}, v40 offset:{o}"); a(f"ds_read_b128 {vr(P+8*w+4,4)}, v40 offset:{o+1024}")
        R = 28
        for w in range(8):
            a(f"s_waitcnt lgkmcnt({min(15, 2*(7-w))})")
            for d in range(4):
                a(f"v_pk_add_f32 {vr(R+2*d,2)}, {vr(R+2*d,2)}, {vr(P+8*w+2*d,2)}")
        for d in range(4): a(f"v_cvt_pk_bf16_f32 v{76+d}, v{R+2*d}, v{R+2*d+1}")
        a(f"buffer_store_dwordx2 {vr(76,2)}, v{vXO}, {sr(sA,4)}, 0 offen {OSC.replace('_',' ')}")
        a("s_mov_b32 s52, 16384"); a(f"buffer_store_dwordx2 {vr(78,2)}, v{vXO}, {sr(sA,4)}, s52 offen {OSC.replace('_',' ')}")
    else:
        a(f"v_mul_u32_u24 v30, 272, v{vRow}"); a(f"v_lshl_add_u32 v30, v{vCol}, 5, v30")
        P = 128
        for w in range(8):
            if w == 3: a(f"v_add_u32 v31, {3*17408}, v30")
            if w == 6: a(f"v_add_u32 v31, {6*17408}, v30")
            ad = 30 if w < 3 else 31
            o = (w % 3)*17408
            a(f"ds_read_b128 {vr(P+8*w,4)}, v{ad} offset:{o}"); a(f"ds_read_b128 {vr(P+8*w+4,4)}, v{ad} offset:{o+16}")
        R = 64
        a("s_waitcnt vmcnt(0)")
        for d in range(4):
            a(f"v_lshlrev_b32 v{R+2*d}, 16, v{vXD+d}"); a(f"v_and_b32 v{R+2*d+1}, s{sMASK}, v{vXD+d}")
            a(f"v_lshlrev_b32 v72, 16, v{vB2+d}"); a(f"v_and_b32 v73, s{sMASK}, v{vB2+d}")
            a(f"v_pk_add_f32 {vr(R+2*d,2)}, {vr(R+2*d,2)}, {vr(72,2)}")
        for w in range(8):
            a(f"s_waitcnt lgkmcnt({min(15, 2*(7-w))})")
            for d in range(4):
                a(f"v_pk_add_f32 {vr(R+2*d,2)}, {vr(R+2*d,2)}, {vr(P+8*w+2*d,2)}")
        for d in range(4): a(f"v_cvt_pk_bf16_f32 v{76+d}, v{R+2*d}, v{R+2*d+1}")
        a(f"buffer_store_dwordx4 {vr(76,4)}, v{vXO}, {sr(sA,4)}, 0 offen {OSC.replace('_',' ')}")
    if PROF:
        a("s_waitcnt vmcnt(0)")
        stamp(a, 12); stamp_rt(a, 13)
        a(f"s_mov_b32 s96, s{pWS}"); a(f"s_and_b32 s97, s{pWS+1}, 0xffff"); a("s_mov_b32 s98, 0x10000000"); a("s_mov_b32 s99, 0x20000")
        a(f"s_lshl_b32 s94, s2, 3"); a(f"s_add_u32 s94, s94, s{sWV}"); a("s_lshl_b32 s94, s94, 8"); a(f"s_add_u32 s94, s94, {0x4000000}")
        a("v_lshlrev_b32 v250, 2, v0")
        a("buffer_store_dword v255, v250, s[96:99], s94 offen")
        a("s_waitcnt vmcnt(0)")

def helper(a):
    a.lab("L_helper")
    sX, sW, sST, sDB = sA, sB, sC, sDD
    sSLW, sKX, sKW, sKWs, sCST, sM0X, sM0W, sHM, sHMUL = 56, 57, 58, 59, 92, 93, 94, 95, 96
    vX0, vX1, vW0, vW1, vHo, vL16 = 3, 4, 8, 9, 5, 7
    a("v_lshrrev_b32 v1, 3, v0"); a("v_and_b32 v2, 7, v0"); a("v_lshrrev_b32 v6, 4, v0")
    a("v_xor_b32 v10, v2, v6"); a("v_lshlrev_b32 v10, 4, v10")
    a(f"s_lshl_b32 s52, s{sH}, 5"); a(f"s_add_u32 s52, s52, s{sR0}")
    a(f"v_add_u32 v{vX0}, s52, v1"); a(f"v_lshl_add_u32 v{vX0}, v{vX0}, 10, v10")
    a(f"v_xor_b32 v{vX1}, 64, v{vX0}"); a(f"v_add_u32 v{vX1}, 8192, v{vX1}")
    a(f"s_lshl_b32 s52, s{sH}, 3"); a(f"s_add_u32 s52, s52, s{sR0}"); a("s_sub_u32 s52, s52, 16")
    a(f"v_add_u32 v{vHo}, s52, v1"); a(f"v_lshl_add_u32 v{vHo}, v{vHo}, 10, v10")
    a(f"s_and_b32 s52, s{sH}, 1"); a("s_lshl_b32 s52, s52, 6"); a(f"v_xor_b32 v{vHo}, s52, v{vHo}")
    a(f"s_lshr_b32 s52, s{sH}, 1"); a(f"s_or_b32 s52, s52, s{sTY}")
    a("s_cmp_eq_u32 s52, 0"); a(f"s_cselect_b32 s{sHMUL}, 1, 0"); a(f"s_lshl_b32 s{sHM}, s{sH}, 10");
    a("s_cmp_eq_u32 s52, 0"); a(f"s_cselect_b32 s{sHM}, s{sHM}, {DUMMY}")
    a(f"s_cselect_b32 s53, 0, 0x80000000"); a(f"s_cmp_eq_u32 s{sRB}, 0"); a("s_cselect_b32 s53, 0x80000000, s53")
    a(f"v_or_b32 v{vHo}, s53, v{vHo}")
    a(f"s_cmp_eq_u32 s{sTY}, 0"); a("s_mov_b32 s53, 2752"); a("s_cselect_b32 s52, 3072, s53")
    a("s_mov_b32 s54, 128"); a(f"s_cselect_b32 s{sCST}, 1024, s54")
    a(f"s_lshl_b32 s{sKWs}, s52, 6")
    a("v_and_b32 v6, 1, v6"); a("v_lshlrev_b32 v6, 1, v6"); a("v_xor_b32 v6, v6, v2"); a("v_lshlrev_b32 v6, 4, v6")
    a(f"s_lshl_b32 s53, s{sH}, 4")
    a(f"v_add_u32 v{vW0}, s53, v1"); a(f"v_mul_u32_u24 v{vW0}, s52, v{vW0}")
    a("s_lshl_b32 s54, s52, 3"); a(f"v_add_u32 v{vW1}, s54, v{vW0}")
    a(f"v_add_u32 v{vW0}, v{vW0}, v6"); a("v_xor_b32 v6, 64, v6"); a(f"v_add_u32 v{vW1}, v{vW1}, v6")
    a(f"s_lshl_b32 s53, s{sGR}, 7"); a(f"s_lshl_b32 s54, s{sFS}, 6"); a(f"s_cmp_eq_u32 s{sTY}, 0"); a(f"s_cselect_b32 s{sKW}, s53, s54")
    a(f"s_lshl_b32 s{sM0X}, s{sH}, 12"); a(f"s_add_u32 s{sM0X}, s{sM0X}, 2048")
    a(f"s_lshl_b32 s{sM0W}, s{sH}, 11"); a(f"s_add_u32 s{sM0W}, s{sM0W}, {WOFF}")
    a(f"v_lshlrev_b32 v{vL16}, 4, v0")
    a(f"s_mov_b32 s{sSLW}, 0"); a(f"s_mov_b32 s{sKX}, 0")
    sROT, sCB = 100, 101
    if ROT:
        if ROTM == 8:
            a("s_lshr_b32 s52, s2, 6"); a("s_lshl_b32 s52, s52, 1"); a("s_lshr_b32 s53, s2, 3"); a("s_add_u32 s52, s52, s53"); a(f"s_and_b32 s{sROT}, s52, 7")
        elif ROTM == 4:
            a("s_lshr_b32 s52, s2, 6"); a("s_lshr_b32 s53, s2, 3"); a("s_add_u32 s52, s52, s53"); a("s_and_b32 s52, s52, 3"); a(f"s_lshl_b32 s{sROT}, s52, 1")
        elif ROTM == 2:
            a("s_lshr_b32 s52, s2, 6"); a("s_lshr_b32 s53, s2, 3"); a("s_add_u32 s52, s52, s53"); a("s_and_b32 s52, s52, 1"); a(f"s_lshl_b32 s{sROT}, s52, 2")
        elif ROTM == 40:
            a(f"s_and_b32 s52, s{sRB}, 3"); a(f"s_lshl_b32 s{sROT}, s52, 1")
        a(f"s_mov_b32 s{sCB}, s{sKW}")
        a(f"s_lshl_b32 s{sKX}, s{sROT}, 7"); a(f"s_mul_i32 s52, s{sROT}, s{sKWs}"); a(f"s_add_u32 s{sKW}, s{sCB}, s52")
    a("s_waitcnt lgkmcnt(0)")
    srd(a, sX, pX, S*D*2)
    a(f"s_cmp_eq_u32 s{sTY}, 0")
    a(f"s_cselect_b32 s{sW}, s{pWQKV}, s{pW1}"); a(f"s_cselect_b32 s{sW+1}, s{pWQKV+1}, s{pW1+1}")
    a(f"s_mov_b32 s52, {D*F*2}"); a(f"s_cselect_b32 s{sW+2}, {D*3*D*2}, s52")
    a(f"s_and_b32 s{sW+1}, s{sW+1}, 0xffff"); a(f"s_mov_b32 s{sW+3}, 0x20000")
    def dma_round():
        def ld(v, srdr, so): a(f"buffer_load_dwordx4 v{v}, {sr(srdr,4)}, s{so} offen lds")
        a(f"s_add_u32 m0, s{sSLW}, s{sM0W}"); a(f"s_add_u32 s53, s{sKW}, s{sCST}"); ld(vW0, sW, sKW)
        a("s_add_u32 m0, m0, 8192"); a(f"s_add_u32 s54, s53, s{sCST}"); ld(vW0, sW, 53)
        a("s_add_u32 m0, m0, 8192"); a.nop(1); ld(vW0, sW, 54)
        a(f"s_add_u32 m0, s{sSLW}, s{sM0X}"); a(f"s_add_u32 s55, s{sKX}, 16384"); ld(vX0, sX, sKX)
        a("s_add_u32 m0, m0, 1024"); a.nop(1); ld(vX1, sX, sKX)
        a(f"s_add_u32 m0, s{sSLW}, s{sM0W}"); a("s_add_u32 m0, m0, 1024"); a.nop(1); ld(vW1, sW, sKW)
        a("s_add_u32 m0, m0, 8192"); a.nop(1); ld(vW1, sW, 53)
        a("s_add_u32 m0, m0, 8192"); a.nop(1); ld(vW1, sW, 54)
        a(f"s_add_u32 m0, s{sSLW}, s{sM0X}"); a("s_add_u32 m0, m0, 2048"); a.nop(1); ld(vX0, sX, 55)
        a("s_add_u32 m0, m0, 1024"); a.nop(1); ld(vX1, sX, 55)
        a(f"s_mul_i32 s52, s{sSLW}, s{sHMUL}"); a(f"s_add_u32 m0, s52, s{sHM}"); a.nop(1); ld(vHo, sX, sKX)
        a(f"s_add_u32 s{sKX}, s{sKX}, 128"); a(f"s_add_u32 s{sKW}, s{sKW}, s{sKWs}")
        if ROT:
            a(f"s_cmp_eq_u32 s{sKX}, 1024"); a(f"s_cselect_b32 s{sKX}, 0, s{sKX}"); a(f"s_cselect_b32 s{sKW}, s{sCB}, s{sKW}")
        a(f"s_add_u32 s{sSLW}, s{sSLW}, {RS}"); a(f"s_cmp_eq_u32 s{sSLW}, {RS*NR}"); a(f"s_cselect_b32 s{sSLW}, 0, s{sSLW}")
    sNON, sEX = 97, 60
    srd(a, sST, pWS, WS_BYTES)
    a("v_mov_b32 v36, 0"); a("v_mov_b32 v37, 0"); a(f"s_mov_b32 s{sEX}, 1"); a(f"s_mov_b32 s{sNON}, 0")
    a(f"v_mov_b32 v38, {PCNT}"); a("v_mov_b32 v39, 0"); a("v_mov_b32 v40, 0"); a("v_mov_b32 v41, 0"); a("v_mov_b32 v42, 0"); a("v_mov_b32 v43, 0")
    a("ds_write_b128 v38, v[40:43]")
    a(f"s_or_b32 s52, s2, s{sH}"); a("s_cmp_lg_u32 s52, 0"); a("s_cbranch_scc1 L_nonon")
    a("s_memrealtime s[60:61]"); a("s_waitcnt lgkmcnt(0)"); a("s_or_b32 s60, s60, 1")
    a("v_mov_b32 v36, s60"); a("v_mov_b32 v37, 0"); a("s_mov_b64 exec, 1")
    a(f"global_store_dword v37, v36, s[{pDBG}:{pDBG+1}] sc1")
    a("s_mov_b64 exec, -1")
    a.lab("L_nonon")
    def pf1(r0):
        a(f"s_lshr_b32 s52, s{sKWs}, 6")
        a("v_lshrrev_b32 v12, 2, v0"); a("v_mul_u32_u24 v12, s52, v12"); a("v_and_b32 v13, 3, v0"); a(f"v_mul_u32_u24 v14, s{sCST}, v13"); a("v_add_u32 v12, v12, v14")
        a(f"s_cmp_eq_u32 s{sTY}, 0"); a("s_cselect_b32 s53, 3, 99"); a("v_cmp_eq_u32 vcc, s53, v13"); a("v_mov_b32 v14, 0x80000000"); a.nop(1); a("v_cndmask_b32 v12, v12, v14, vcc")
        a(f"s_lshl_b32 s55, s{sGR}, 7"); a(f"s_lshl_b32 s53, s{sFS}, 6"); a(f"s_cmp_eq_u32 s{sTY}, 0"); a("s_cselect_b32 s55, s55, s53")
        a("s_lshr_b32 s54, s2, 6"); a("s_lshl_b32 s54, s54, 4")
        a(f"s_add_u32 s53, s{sH}, {r0}"); a("s_lshl_b32 s53, s53, 6"); a("s_add_u32 s53, s53, s54"); a("s_mul_i32 s53, s53, s52"); a("s_add_u32 s53, s53, s55")
        a(f"buffer_load_dword v15, v12, {sr(sW,4)}, s53 offen")
        a("v_mul_u32_u24 v13, 57, v0"); a("v_lshrrev_b32 v13, 10, v13"); a("v_mul_u32_u24 v14, 18, v13"); a("v_sub_u32 v14, v0, v14")
        a("s_lshr_b32 s61, s2, 3"); a("s_and_b32 s61, s61, 7"); a("s_mul_i32 s61, s61, 18"); a(f"s_add_u32 s61, s61, s{sR0}"); a("s_sub_u32 s61, s61, 16")
        a("v_add_u32 v14, s61, v14"); a("v_lshlrev_b32 v14, 10, v14"); a("v_lshl_add_u32 v14, v13, 7, v14")
        a("v_cmp_lt_u32 vcc, 2, v13"); a("v_mov_b32 v13, 0x80000000"); a.nop(1); a("v_cndmask_b32 v14, v14, v13, vcc")
        if r0 == 0:
            a(f"s_mul_i32 s53, s{sH}, 384"); a(f"s_cmp_lt_u32 s{sH}, 3"); a("s_cselect_b32 s53, s53, 0x80000000")
        else:
            a("s_mov_b32 s53, 0x80000000"); a(f"s_cmp_eq_u32 s{sH}, 2"); a("s_cselect_b32 s53, 256, s53"); a(f"s_cmp_eq_u32 s{sH}, 3"); a("s_cselect_b32 s53, 640, s53")
        a(f"buffer_load_dword v15, v14, {sr(sX,4)}, s53 offen")
        a(f"s_add_u32 s53, s{sH}, {r0+4}"); a("s_lshl_b32 s53, s53, 6"); a("s_add_u32 s53, s53, s54"); a("s_mul_i32 s53, s53, s52"); a("s_add_u32 s53, s53, s55")
        if r0: a(f"s_cmp_lt_u32 s{sH}, 2"); a("s_cselect_b32 s53, s53, 0x80000000")
        a(f"buffer_load_dword v15, v12, {sr(sW,4)}, s53 offen")
    if PF1 and PFPOS == 'first': pf1(0)
    stamp(a, 14)
    dma_round()
    stamp(a, 15); dma_round(); stamp(a, 11)
    npf = (3 if PF1 and PFPOS == 'mid' else 0)
    if PF1 and PFPOS == 'mid': pf1(2)
    a(f"s_waitcnt vmcnt({11}+NPFX) lgkmcnt(0)".replace("11+NPFX", str(11+npf))); a("s_barrier")
    stamp(a, 2)
    dma_round()
    a(f"s_cmp_lg_u32 s{sH}, 0"); a("s_cbranch_scc1 L_nost")
    a(f"v_add_u32 v36, {PSX}, v{vL16}"); a("ds_read_b128 v[40:43], v36")
    a(f"s_lshl_b32 s52, s{sJ}, 3"); a(f"s_add_u32 s52, s52, s{sR0}"); a("s_lshl_b32 s52, s52, 4"); a(f"s_add_u32 s52, s52, {STATS_OFF}")
    a("s_waitcnt lgkmcnt(0)"); a("s_mov_b64 exec, 0xff")
    a(f"buffer_store_dwordx4 v[40:43], v{vL16}, {sr(sST,4)}, s52 offen sc1")
    a("s_mov_b64 exec, -1")
    a("v_mov_b32 v37, 0"); a(f"global_load_dword v38, v37, s[{pDBG}:{pDBG+1}]")
    a.lab("L_nost")
    def h0(name):
        a(f"s_cmp_lg_u32 s{sH}, 0"); a(f"s_cbranch_scc1 {name}")
    a(f"s_waitcnt vmcnt({11+npf})"); stamp(a, 16); a("s_barrier"); stamp(a, 24)
    dma_round(); stamp(a, 32)
    a(f"s_waitcnt vmcnt(11)"); stamp(a, 17); a("s_barrier"); stamp(a, 25)
    h0("L_h0b")
    a(f"v_readfirstlane_b32 s{sNON}, v38"); a.nop(2); a(f"s_cmp_lg_u32 s{sNON}, 0"); a("s_cbranch_scc1 L_non_ok")
    a(f"s_mov_b32 s{sT}, {SPIN_MAX}"); a("v_mov_b32 v37, 0")
    a.lab("L_non_poll")
    a(f"global_load_dword v38, v37, s[{pDBG}:{pDBG+1}] sc1"); a("s_waitcnt vmcnt(0)"); a(f"v_readfirstlane_b32 s{sNON}, v38"); a.nop(2)
    a(f"s_cmp_lg_u32 s{sNON}, 0"); a("s_cbranch_scc1 L_non_ok")
    a("s_sleep 2"); a(f"s_sub_u32 s{sT}, s{sT}, 1"); a(f"s_cmp_lg_u32 s{sT}, 0"); a("s_cbranch_scc1 L_non_poll")
    a.lab("L_non_ok")
    a(f"v_mov_b32 v39, s{sNON}")
    a("s_waitcnt vmcnt(0)")
    flag_store(a, 0, sST, 36, 39)
    a(f"v_mov_b32 v36, {NSLOT}"); a("ds_write_b32 v36, v39")
    a.lab("L_h0b")
    dma_round(); stamp(a, 33)
    a("s_waitcnt vmcnt(11)"); stamp(a, 18); a("s_barrier"); stamp(a, 26)
    dma_round(); stamp(a, 34)
    a("s_waitcnt vmcnt(11)"); stamp(a, 19); a("s_barrier"); stamp(a, 27)
    h0("L_h0c")
    a("v_subrev_u32 v36, 18, v0"); a("v_cmp_gt_u32 vcc, 16, v0"); a.nop(2); a("v_cndmask_b32 v36, v36, v0, vcc")
    a(f"s_lshl_b32 s52, s{sRB}, 4"); a("v_add_u32 v36, s52, v36"); a("v_lshlrev_b32 v36, 7, v36"); a(f"v_add_u32 v36, {FLG_OFF}, v36")
    a(f"s_cmp_eq_u32 s{sRB}, 0"); a(f"s_mov_b32 s{sEX}, 0x3ffff"); a(f"s_cselect_b32 s{sEX}, 0xffff, s{sEX}")
    a(f"s_mov_b32 exec_lo, s{sEX}"); a("s_mov_b32 exec_hi, 0")
    a(f"buffer_load_dword v38, v36, {sr(sST,4)}, 0 offen sc1")
    a("s_mov_b64 exec, -1")
    a.lab("L_h0c")
    dma_round(); stamp(a, 35)
    a("s_waitcnt vmcnt(11)"); stamp(a, 20); a("s_barrier"); stamp(a, 28)
    h0("L_h0d")
    a(f"s_mov_b32 exec_lo, s{sEX}"); a("s_mov_b32 exec_hi, 0")
    a(f"v_cmp_eq_u32 vcc, s{sNON}, v38"); a("s_mov_b64 exec, -1"); a.nop(1)
    a(f"s_cmp_eq_u32 vcc_lo, s{sEX}"); a("s_cbranch_scc1 L_p0ok")
    poll(a, 36, sNON, 38, sEX, sST, "p0")
    a.lab("L_p0ok")
    a(f"s_sub_u32 s52, s{sR0}, 16"); a("s_lshl_b32 s52, s52, 4"); a(f"s_add_u32 s52, s52, {STATS_OFF}")
    a(f"v_add_u32 v36, s52, v{vL16}")
    a(f"s_cmp_eq_u32 s{sRB}, 0"); a("s_cselect_b32 s53, 16, 0"); a("v_cmp_gt_u32 vcc, s53, v0"); a("v_mov_b32 v37, 0x80000000"); a.nop(1)
    a("v_cndmask_b32 v37, v36, v37, vcc")
    a(f"buffer_load_dwordx4 {vr(40,4)}, v37, {sr(sST,4)}, 0 offen sc1")
    a(f"buffer_load_dwordx4 {vr(44,4)}, v36, {sr(sST,4)}, 0 offen offset:1024 sc1")
    a("s_mov_b64 exec, 0xffff")
    a(f"buffer_load_dwordx4 {vr(48,4)}, v36, {sr(sST,4)}, 0 offen offset:2048 sc1")
    a("s_mov_b64 exec, -1")
    a.lab("L_h0d")
    dma_round(); stamp(a, 36)
    npf2 = 0
    if PF2:
        a(f"s_cmp_eq_u32 s{sH}, 0")
        a(f"s_cselect_b32 s{sDD}, s{pWO}, s{pW2}"); a(f"s_cselect_b32 s{sDD+1}, s{pWO+1}, s{pW2+1}")
        a(f"s_mov_b32 s53, {F*D*2}"); a(f"s_cselect_b32 s{sDD+2}, {D*D*2}, s53"); a(f"s_mov_b32 s{sDD+3}, 0x20000")
        a(f"s_and_b32 s{sDD+1}, s{sDD+1}, 0xffff")
        a("s_lshr_b32 s53, s2, 3"); a("s_lshl_b32 s54, s53, 14"); a("s_mul_i32 s53, s53, 44032")
        a(f"s_sub_u32 s55, s{sH}, 1"); a("s_lshl_b32 s55, s55, 14"); a("s_add_u32 s53, s53, s55")
        a(f"s_cmp_eq_u32 s{sH}, 0"); a("s_cselect_b32 s53, s54, s53")
        a("v_lshlrev_b32 v12, 7, v0")
        a(f"buffer_load_dword v13, v12, {sr(sDD,4)}, s53 offen"); a("s_add_u32 s53, s53, 8192")
        a(f"buffer_load_dword v14, v12, {sr(sDD,4)}, s53 offen")
        npf2 = 2
    a(f"s_waitcnt vmcnt({11+npf2})"); stamp(a, 21); a("s_barrier"); stamp(a, 29)
    h0("L_h0e")
    a("v_lshlrev_b32 v36, 2, v0"); a(f"v_add_u32 v36, {TAB}, v36")
    for q in range(3):
        if q == 2: a("s_mov_b64 exec, 0xffff")
        for k in range(4): a(f"ds_write_b32 v36, v{40+4*q+k} offset:{q*256 + k*576}")
    a("s_mov_b64 exec, -1")
    a.lab("L_h0e")
    a(f"s_waitcnt vmcnt({npf2}) lgkmcnt(0)"); stamp(a, 22); a("s_barrier")
    a("s_barrier")
    stamp(a, 3)
    a(f"s_cmp_eq_u32 s{sTY}, 0"); a("s_cbranch_scc1 L_e1a"); a("s_barrier"); a.lab("L_e1a")
    vWo, vAo = 10, 11
    a("v_lshrrev_b32 v6, 4, v0"); a("v_lshlrev_b32 v6, 1, v6"); a("v_and_b32 v8, 7, v0"); a("v_xor_b32 v6, v6, v8")
    a("v_lshlrev_b32 v6, 4, v6"); a("v_lshrrev_b32 v8, 3, v0"); a("v_lshl_add_u32 v6, v8, 10, v6")
    a(f"s_lshl_b32 s52, s{sCG}, 7"); a(f"v_add_u32 v{vWo}, s52, v6")
    a(f"v_lshlrev_b32 v{vAo}, 4, v0")
    sWO_, sW2_ = sA, sB
    srd(a, sWO_, pWO, D*D*2); srd(a, sW2_, pW2, F*D*2)
    sSL, sWk = 56, 57
    a(f"s_lshl_b32 s{sSL}, s{sH}, 12"); a(f"s_lshl_b32 s{sWk}, s{sH}, 15")
    def wdma(t0, place, pace=None):
        pace = WPACE if pace is None else pace
        for q in range(4):
            off = (t0 if t0 < 16 else t0 - 16)*32768 + q*8192
            a(f"s_add_u32 m0, s{sSL}, {place*16384 + q*1024}"); a(f"s_add_u32 s53, s{sWk}, {off}")
            a(f"buffer_load_dwordx4 v{vWo}, {sr(sWO_ if t0 < 16 else sW2_,4)}, s53 offen lds")
            if pace and (q & 1): a(f"s_sleep {pace}")
    if NOW2: a("s_branch L_now2")
    order = []
    def iss(kind, i):
        if kind == 'o': wdma(8*i + 4, i)
        else: wdma(8*i, i)
        order.append((kind, i))
    for i in range(min(WAHEAD, 7)): iss('o', i)
    a(f"v_and_b32 v{vI}, 15, v0"); a(f"v_lshrrev_b32 v{vG}, 4, v0")
    a("v_mov_b32 v12, v10")
    p2_addr(a)
    a(f"v_add_u32 v6, s{sSL}, v6")
    for cb in range(4):
        a(f"v_xor_b32 v1, {cb*32}, v7"); a(f"v_add_u32 v{2+cb}, v6, v1")
    vWo = 12
    for i in range(7):
        if i == 4:
            for cb in range(4): a(f"v_add_u32 v{2+cb}, 65536, v{2+cb}")
        newer = len(order) - 1 - order.index(('o', i))
        a(f"s_waitcnt vmcnt({4*newer})")
        w_frag_reads(a, i)
        if not STRICT and i + WAHEAD < 7: iss('o', i + WAHEAD)
        a("s_waitcnt lgkmcnt(0)")
        iss('e', i)
        if STRICT and i + WAHEAD < 7: iss('o', i + WAHEAD)
    iss('e', 7)
    for r in range(WF2+112, WF2+128): a(f"v_mov_b32 v{r}, 0")
    srd(a, sC, pWS, WS_BYTES)
    if MBX:
        a(f"s_lshl_b32 s52, s{sRG}, 3"); a(f"s_add_u32 s52, s52, s{sCG}"); a("s_lshl_b32 s52, s52, 7"); a(f"s_add_u32 s52, s52, {MBX_OFF}"); a("v_lshl_add_u32 v6, v0, 2, s52")
    else:
        a(f"s_lshr_b32 s52, s{sRG}, 1"); a("s_lshl_b32 s52, s52, 4"); a("v_add_u32 v6, s52, v0"); a("v_lshlrev_b32 v6, 7, v6"); a(f"v_add_u32 v6, {FLG_OFF+4}, v6")
    stamp(a, 62)
    a(f"s_cmp_lg_u32 s{sH}, 0"); a("s_cbranch_scc1 L_nef")
    a("s_mov_b64 exec, 0xffff")
    a(f"buffer_load_dword v7, v6, {sr(sC,4)}, 0 offen sc1")
    a("s_mov_b64 exec, -1")
    a("s_waitcnt vmcnt(0)")
    stamp(a, 61)
    a(f"s_mov_b32 s{sT}, {SPIN_MAX}")
    a.lab("L_pa")
    a("s_mov_b64 exec, 0xff"); a("v_cmp_eq_u32 vcc, s97, v7"); a("s_mov_b64 exec, -1"); a.nop(1)
    a("s_cmp_eq_u32 vcc_lo, 0xff"); a("s_cbranch_scc1 L_nef")
    a("s_mov_b64 exec, 0xffff")
    a(f"buffer_load_dword v7, v6, {sr(sC,4)}, 0 offen sc1")
    a("s_mov_b64 exec, -1")
    a("s_waitcnt vmcnt(0)")
    a(f"s_sub_u32 s{sT}, s{sT}, 1"); a(f"s_cmp_lg_u32 s{sT}, 0"); a("s_cbranch_scc1 L_pa")
    a.lab("L_nef")
    a("s_waitcnt vmcnt(0)")
    stamp(a, 56)
    a("s_branch L_p2")

def build():
    a = A()
    a(f"; @launch grid=(256,1,1) block=(512,1,1) lds={LDS}")
    a('.amdgcn_target "amdgcn-amd-amdhsa--gfx950"')
    a(".text"); a(f".globl {KN}"); a(".p2align 8"); a(f".type {KN},@function"); a.lab(KN)
    END = "L_end"
    prologue(a, END)
    helper(a)
    a.lab("L_compute")
    compute(a)
    final(a, END)
    a.lab(END); a("s_endpgm")
    a.lab("L_code_end")
    a('.section .rodata,"a"'); a(".p2align 6")
    t = a.text()
    t += f""".amdhsa_kernel {KN}
  .amdhsa_next_free_vgpr 256
  .amdhsa_next_free_sgpr 102
  .amdhsa_accum_offset 256
  .amdhsa_group_segment_fixed_size 0
  .amdhsa_kernarg_size 88
  .amdhsa_user_sgpr_count 2
  .amdhsa_user_sgpr_kernarg_segment_ptr 1
  .amdhsa_system_sgpr_workgroup_id_x 1
.end_amdhsa_kernel
"""
    return t

if __name__ == "__main__":
    out = sys.argv[1] if len(sys.argv) > 1 else "v38.s"
    PROF = len(sys.argv) > 2 and sys.argv[2] == "p"
    for arg in sys.argv[3:]:
        k, v = arg.split("=")
        globals()[k] = {"True": True, "False": False}.get(v, int(v) if v.isdigit() else v)
    open(out, "w").write(build())
```

```python
import sys, math, struct
NAME = "parallel_sum__sliding_local_dilated__mixer_channel_mlp__prompt"
KN = NAME + "_kernel"
def f2u(x): return struct.unpack("<I", struct.pack("<f", x))[0]
def hexf(x): return "0x%08x" % f2u(x)

class A:
    def __init__(s): s.l = []; s.uid = 0
    def __call__(s, t): s.l.append(t)
    def lab(s, n): s.l.append(n + ":")
    def nop(s, n):
        while n > 0:
            k = min(n, 16); s.l.append(f"s_nop {k-1}"); n -= k
    def u(s): s.uid += 1; return s.uid
    def text(s): return "\n".join(s.l) + "\n"

PROF = False
PF1 = False; PF2 = True; PRIO = 0; ASC = 'sc1'; SSC = 'sc1'; PFA = 'sc1'; DEFER = False; NOW2 = False; NOST = False; PFPOS = 'mid'; ROT = True; WIN = 2; HPRIO = 1; ROTM = 40; OSC = ''; LIGHT = False; EARLYF = True; MBX = False; WRD = 1; PSL = 2; SPREAD = 99; MAP = 0; ADDTID = True; HDROP = 3; WPACE = 0; WPACE2 = 0; WAHEAD = 1; STRICT = False; TOUCH = True; MERGE = True; MWIN3 = True
def stamp(a, i):
    if PROF and not (LIGHT and i not in (1,2,3,4,5,6,8,9,10,12,33,59,50,51,52,56,61,62,22)): a("s_memtime s[90:91]"); a("s_waitcnt lgkmcnt(0)"); a(f"v_writelane_b32 v255, s90, {i}")
def stamp_dyn(a, sreg, base):
    if PROF and not LIGHT:
        a("s_memtime s[90:91]"); a(f"s_add_u32 s89, s{sreg}, {base}"); a("s_mov_b32 m0, s89"); a("s_waitcnt lgkmcnt(0)"); a("v_writelane_b32 v255, s90, m0")
def stamp_rt(a, i):
    if PROF: a("s_memrealtime s[90:91]"); a("s_waitcnt lgkmcnt(0)"); a(f"v_writelane_b32 v255, s90, {i}")

def vr(b, n=1): return f"v{b}" if n == 1 else f"v[{b}:{b+n-1}]"
def sr(b, n=1): return f"s{b}" if n == 1 else f"s[{b}:{b+n-1}]"
def srd(a, d, lo, size):
    a(f"s_mov_b32 s{d}, s{lo}"); a(f"s_and_b32 s{d+1}, s{lo+1}, 0xffff")
    a(f"s_mov_b32 s{d+2}, {size}"); a(f"s_mov_b32 s{d+3}, 0x20000")

S, D, F = 2048, 512, 1376
NSTEP2 = 60
A2_BYTES = 128 * NSTEP2 * 1024
STATS_OFF = 0x800000
FLG_OFF = 0x810000
MBX_OFF = FLG_OFF + 256 * 128
WS_BYTES = MBX_OFF + 256 * 128
NSLOT = 151552
PCNT = 151552 + 256
PSX = 151552 + 64
RS = 43008; NR = 3; WOFF = 18432
TAB = 131072
T_CS = TAB + 2304
DUMMY = TAB + 3072
XB = TAB + 4096
LDS = 163840
BIG = -1e30
C_EXP = 0.25 * math.log2(math.e)
G1 = -2.0 * math.sqrt(2.0 / math.pi) * math.log2(math.e)
G2 = G1 * 0.044715
SPIN_MAX = 1 << 16

pX, pWQKV, pWO, pW1, pB1, pW2, pB2, pOUT, pDBG, pWS = 4, 6, 8, 12, 14, 16, 18, 20, 22, 24
sWV, sRB, sJ, sFS, sNF, sR0, sRG, sCG, sH = 26, 27, 28, 29, 30, 31, 32, 33, 34
sMASK = 35
sTY, sGR = 62, 63
sA, sB, sC, sDD = 36, 40, 44, 48
sT = 52

def MF32(d, a_, b_, c_=None):
    c_ = vr(d, 4) if c_ is None else c_
    return f"v_mfma_f32_16x16x32_bf16 {vr(d,4)}, {vr(a_,4)}, {vr(b_,4)}, {c_}"
def bf16r(a, dst, src):
    a(f"v_cvt_pk_bf16_f32 v{dst}, v{src}, v{src}"); a(f"v_and_b32 v{dst}, s{sMASK}, v{dst}")
def xlane(a, op, xs, ts):
    for sw in ("v_permlane16_swap_b32", "v_permlane32_swap_b32"):
        for x, t in zip(xs, ts): a(f"v_mov_b32 v{t}, v{x}")
        a.nop(max(0, 2 - (len(xs) - 1)))
        for x, t in zip(xs, ts): a(f"{sw} v{x}, v{t}")
        a.nop(max(0, 2 - (len(xs) - 1)))
        for x, t in zip(xs, ts): a(f"{op} v{x}, v{x}, v{t}")
def interleave(a, mf, fill, per=1):
    if SPREAD > 50:
        fi = 0
        for m in mf:
            a(m)
            for _ in range(per):
                if fi < len(fill): a(fill[fi]); fi += 1
        while fi < len(fill): a(fill[fi]); fi += 1
        return
    n = len(mf) - SPREAD
    cheap = [f for f in fill if not f.startswith("ds_")]
    reads = [f for f in fill if f.startswith("ds_")]
    slots = [[] for _ in mf]
    for k, f in enumerate(cheap): slots[min(k // 2, len(mf) - 1)].append(f)
    first = (len(cheap) + 1) // 2
    for k, f in enumerate(reads):
        slots[min(first + (k * (n - first)) // len(reads), len(mf) - 1)].append(f)
    for m, sl in zip(mf, slots):
        a(m)
        for f in sl: a(f)

def poll(a, vOff, sExp, vD, sExec, srdreg, name):
    a(f"s_mov_b32 exec_lo, s{sExec}"); a("s_mov_b32 exec_hi, 0")
    a(f"s_mov_b32 s{sT}, {SPIN_MAX}")
    a.lab(f"L_poll_{name}")
    a(f"buffer_load_dword v{vD}, v{vOff}, {sr(srdreg,4)}, 0 offen sc1")
    a("s_waitcnt vmcnt(0)")
    a(f"v_cmp_eq_u32 vcc, s{sExp}, v{vD}")
    a.nop(2)
    a(f"s_cmp_eq_u32 vcc_lo, s{sExec}")
    a(f"s_cbranch_scc1 L_polld_{name}")
    if PSL: a(f"s_sleep {PSL}")
    a(f"s_sub_u32 s{sT}, s{sT}, 1"); a(f"s_cmp_lg_u32 s{sT}, 0")
    a(f"s_cbranch_scc1 L_poll_{name}")
    a.lab(f"L_polld_{name}")
    a("s_mov_b64 exec, -1")

def flag_store(a, which, srdreg, vT, vN):
    a(f"s_lshl_b32 s{sT}, s{sRB}, 4"); a(f"s_add_u32 s{sT}, s{sT}, s{sJ}"); a(f"s_lshl_b32 s{sT}, s{sT}, 7"); a(f"s_add_u32 s{sT}, s{sT}, {FLG_OFF + 4*which}")
    a(f"v_mov_b32 v{vT}, s{sT}")
    a("s_mov_b64 exec, 1")
    a(f"buffer_store_dword v{vN}, v{vT}, {sr(srdreg,4)}, 0 offen sc1")
    a("s_mov_b64 exec, -1")

def prologue(a, END):
    a("s_cmp_ge_u32 s2, 256"); a(f"s_cbranch_scc1 {END}")
    stamp_rt(a, 0); stamp(a, 1)
    a("s_load_dwordx16 s[4:19], s[0:1], 0")
    a("s_load_dwordx4 s[20:23], s[0:1], 64")
    a("s_load_dwordx2 s[24:25], s[0:1], 80")
    a("s_getpc_b64 s[98:99]")
    a.lab("L_pc")
    a("v_lshrrev_b32 v1, 6, v0"); a("v_and_b32 v0, 63, v0")
    a(f"v_readfirstlane_b32 s{sWV}, v1")
    a("s_and_b32 s52, s2, 7"); a("s_lshr_b32 s53, s2, 3")
    if MAP == 0:
        a(f"s_lshr_b32 s{sRB}, s52, 1"); a(f"s_lshl_b32 s{sRB}, s{sRB}, 2"); a("s_lshr_b32 s54, s53, 3"); a(f"s_add_u32 s{sRB}, s{sRB}, s54")
        a(f"s_bfe_u32 s{sTY}, s53, 0x10002")
        a(f"s_and_b32 s{sGR}, s52, 1"); a(f"s_lshl_b32 s{sGR}, s{sGR}, 2"); a("s_and_b32 s55, s53, 3"); a(f"s_add_u32 s{sGR}, s{sGR}, s55")
    else:
        a(f"s_lshr_b32 s{sRB}, s52, 1"); a(f"s_lshl_b32 s{sRB}, s{sRB}, 2"); a("s_and_b32 s54, s53, 3"); a(f"s_add_u32 s{sRB}, s{sRB}, s54")
        a(f"s_lshr_b32 s{sTY}, s53, 4"); a(f"s_xor_b32 s{sTY}, s{sTY}, 1")
        a(f"s_and_b32 s{sGR}, s52, 1"); a(f"s_lshl_b32 s{sGR}, s{sGR}, 2"); a("s_bfe_u32 s55, s53, 0x20002"); a(f"s_add_u32 s{sGR}, s{sGR}, s55")
        a("s_lshr_b32 s54, s53, 3")
    a(f"s_lshl_b32 s{sJ}, s{sTY}, 3"); a(f"s_add_u32 s{sJ}, s{sJ}, s{sGR}")
    a(f"s_lshl_b32 s{sRG}, s52, 2"); a(f"s_add_u32 s{sRG}, s{sRG}, s54"); a(f"s_and_b32 s{sCG}, s53, 7")
    a(f"s_mul_i32 s{sFS}, s{sGR}, 6"); a(f"s_mul_i32 s54, s{sGR}, 5"); a("s_add_u32 s54, s54, 3")
    a(f"s_cmp_lt_u32 s{sGR}, 3"); a(f"s_cselect_b32 s{sFS}, s{sFS}, s54"); a(f"s_cselect_b32 s{sNF}, 6, 5")
    a(f"s_lshl_b32 s{sR0}, s{sRB}, 7")
    a(f"s_mov_b32 s{sMASK}, 0xffff0000")
    a(f"s_and_b32 s{sH}, s{sWV}, 3")
    a("v_mov_b32 v6, 0"); a("v_mov_b32 v7, 0")
    a(f"s_cmp_lt_u32 s{sWV}, 4"); a("s_cbranch_scc1 L_compute")

def p0_stats(a):
    sX, sST, vL16, vP = sDD, sC, 7, 16
    a(f"v_lshlrev_b32 v{vL16}, 4, v0")
    a(f"s_lshl_b32 s52, s{sJ}, 3"); a(f"s_add_u32 s52, s52, s{sR0}"); a(f"s_lshl_b32 s53, s{sWV}, 1"); a("s_add_u32 s52, s52, s53")
    a("s_lshl_b32 s60, s52, 10"); a("s_lshl_b32 s61, s52, 4")
    a("s_waitcnt lgkmcnt(0)")
    srd(a, sX, pX, S*D*2)
    a(f"buffer_load_dwordx4 {vr(vP,4)}, v{vL16}, {sr(sX,4)}, s60 offen")
    a(f"buffer_load_dwordx4 {vr(vP+4,4)}, v{vL16}, {sr(sX,4)}, s60 offen offset:1024")
    a("s_lshr_b32 s53, s2, 3"); a(f"s_lshl_b32 s54, s{sWV}, 5"); a("s_add_u32 s53, s53, s54")
    a("s_lshl_b32 s53, s53, 10"); a("v_add_u32 v2, s53, v7")
    a("s_mov_b32 s54, L_code_end-L_pc-16"); a("v_min_u32 v2, s54, v2")
    a("global_load_dwordx4 v[248:251], v2, s[98:99]")
    if TOUCH:
        lst = [(pWO, 0), (pW2, 0), (pW2, 1048576), (pB1, 0), (pB2, 0), (pOUT, 0), (pOUT, 1048576), (pWS, 60416), (pWS, 34*61440+60416), (pWS, 68*61440+60416),
               (pWS, 102*61440+60416), (pWS, STATS_OFF + 0x8000), (pDBG, 128)]
        a(f"v_mov_b32 v2, s{pWO}"); a(f"v_mov_b32 v3, s{pWO+1}")
        for k, (p, off) in enumerate(lst):
            a(f"s_add_u32 s52, s{p}, {off}"); a(f"s_addc_u32 s53, s{p+1}, 0")
            a(f"v_writelane_b32 v2, s52, {k}"); a(f"v_writelane_b32 v3, s53, {k}")
        a(f"s_mov_b64 exec, {(1 << len(lst)) - 1}")
        a("global_load_dword v252, v[2:3], off")
        a("s_mov_b64 exec, -1")
    global NPF
    NPF = 2 if TOUCH else 1
    return vP

def p0_finish(a, vP, nwait):
    sST, vL16 = sC, 7
    a(f"s_waitcnt vmcnt({nwait})")
    sA_, qA, sB_, qB = 24, 25, 26, 27
    for r in range(24, 28): a(f"v_mov_b32 v{r}, 0")
    a("v_mov_b32 v28, 0x3f803f80")
    for d in range(4):
        a(f"v_dot2c_f32_bf16 v{sA_}, v{vP+d}, v28"); a(f"v_dot2c_f32_bf16 v{qA}, v{vP+d}, v{vP+d}")
        a(f"v_dot2c_f32_bf16 v{sB_}, v{vP+4+d}, v28"); a(f"v_dot2c_f32_bf16 v{qB}, v{vP+4+d}, v{vP+4+d}")
    a.nop(2)
    for rot in (8, 4, 2, 1):
        for x in (sA_, qA, sB_, qB): a(f"v_add_f32_dpp v{x}, v{x}, v{x} row_ror:{rot} row_mask:0xf bank_mask:0xf")
    xlane(a, "v_add_f32", [sA_, qA, sB_, qB], [28, 29, 30, 31])
    a("v_and_b32 v28, 1, v0"); a("v_cmp_eq_u32 vcc, 1, v28"); a.nop(2)
    sm, sq, t0, t1, t2, t3 = 24, 25, 33, 32, 34, 35
    a(f"v_cndmask_b32 v{sm}, v{sA_}, v{sB_}, vcc"); a(f"v_cndmask_b32 v{sq}, v{qA}, v{qB}, vcc")
    a(f"v_mul_f32 v{sm}, {hexf(1/512)}, v{sm}"); a(f"v_mul_f32 v{sq}, {hexf(1/512)}, v{sq}")
    a(f"v_fma_f32 v{sq}, -v{sm}, v{sm}, v{sq}"); a(f"v_max_f32 v{sq}, 0, v{sq}")
    bf16r(a, t0, sm); bf16r(a, t1, sq)
    a(f"v_add_f32 v{t1}, {hexf(1e-5)}, v{t1}"); bf16r(a, t1, t1)
    a(f"v_sqrt_f32 v{t1}, v{t1}"); a.nop(1); bf16r(a, t1, t1)
    a(f"v_rcp_f32 v{t1}, v{t1}"); a.nop(1)
    a(f"v_mul_f32 v{t2}, v{sq}, v{t1}"); a(f"v_mul_f32 v{t2}, v{t2}, v{t1}"); bf16r(a, t2, t2)
    a(f"v_add_f32 v{t2}, {hexf(1e-5)}, v{t2}"); bf16r(a, t2, t2)
    a(f"v_sqrt_f32 v{t2}, v{t2}"); a.nop(1); bf16r(a, t2, t2)
    a(f"v_rcp_f32 v{t2}, v{t2}"); a.nop(1)
    a(f"v_mul_f32 v{t2}, v{t2}, v{t1}"); a(f"v_mul_f32 v{t0}, v{t0}, v{t1}"); a(f"v_mul_f32 v{t3}, v{sm}, v{t2}")
    a(f"s_lshl_b32 s52, s{sWV}, 5"); a(f"s_add_u32 s52, s52, {PSX}"); a(f"v_add_u32 v28, s52, v{vL16}")
    a("s_mov_b64 exec, 3")
    a(f"ds_write_b128 v28, {vr(32,4)}")
    a("s_mov_b64 exec, -1")
    a("s_waitcnt lgkmcnt(0)")

vI, vG, vAX0, vAX1, vCX = 8, 9, 10, 11, 12
vONE = 244; cS = 232
sBASE, sRND = 56, 57

def lane_common(a):
    a(f"v_and_b32 v{vI}, 15, v0"); a(f"v_lshrrev_b32 v{vG}, 4, v0")
    a(f"v_lshrrev_b32 v2, 1, v{vI}"); a(f"v_xor_b32 v2, v2, v{vG}"); a("v_lshlrev_b32 v2, 4, v2")
    a(f"v_lshl_add_u32 v{vAX0}, v{vI}, 7, v2")
    a(f"v_lshrrev_b32 v2, 2, v{vI}"); a(f"v_lshl_add_u32 v2, v{vG}, 3, v2"); a("v_lshlrev_b32 v2, 7, v2")
    a(f"v_and_b32 v3, 3, v{vI}"); a("v_lshl_add_u32 v2, v3, 3, v2"); a(f"v_add_u32 v2, {WOFF}, v2")
    a(f"v_bfe_u32 v3, v{vI}, 3, 1"); a(f"v_and_b32 v1, 1, v{vG}"); a("v_lshl_add_u32 v3, v1, 1, v3"); a("v_lshlrev_b32 v3, 5, v3")
    for i in range(4): a(f"v_mov_b32 v{vONE+i}, 0x3f803f80")

def adv_base():
    return [f"s_add_u32 s{sBASE}, s{sBASE}, {RS}", f"s_cmp_eq_u32 s{sBASE}, {RS*NR}", f"s_cselect_b32 s{sBASE}, 0, s{sBASE}"]

def main_loop(a, tag, mfmas, reads, w0):
    a("s_barrier")
    if w0: stamp(a, 2)
    for o in reads(0, 0): a(o)
    a("s_waitcnt lgkmcnt(0)")
    a.lab(f"L_cloop{tag}")
    interleave(a, mfmas(0), reads(1, 1))
    a("s_waitcnt lgkmcnt(0)"); stamp_dyn(a, sRND, 16); a("s_barrier")
    stamp_dyn(a, sRND, 24)
    interleave(a, mfmas(1), adv_base() + reads(0, 0))
    a(f"s_add_u32 s{sRND}, s{sRND}, 1"); a(f"s_cmp_lt_u32 s{sRND}, 8")
    a("s_waitcnt lgkmcnt(0)")
    a(f"s_cbranch_scc1 L_cloop{tag}")
    stamp(a, 3)
    if PRIO: a(f"s_setprio {PRIO}")
    a("s_waitcnt vmcnt(0)")
    a.nop(8)

def lds_sync(a, addr_expr_sgpr, target, name):
    a(f"v_mov_b32 v2, s{addr_expr_sgpr}"); a("v_mov_b32 v3, 1")
    a("s_mov_b64 exec, 1"); a("ds_add_u32 v2, v3");
    a.lab(f"L_ls_{name}")
    a("ds_read_b32 v3, v2"); a("s_waitcnt lgkmcnt(0)"); a("v_readfirstlane_b32 s59, v3"); a.nop(2)
    a(f"s_cmp_lt_u32 s59, {target}"); a(f"s_cbranch_scc1 L_ls_{name}")
    a("s_mov_b64 exec, -1")

def conv(a, acc, dst, r, m, cs, layout_b, t=4):
    for h in range(2):
        tp = t + 2*h
        if not layout_b:
            a(f"v_pk_mul_f32 {vr(tp,2)}, {vr(cs+2*h,2)}, {vr(m & ~1,2)} op_sel:[0,{m&1}] op_sel_hi:[1,{m&1}]")
            a(f"v_pk_fma_f32 {vr(tp,2)}, {vr(acc+2*h,2)}, {vr(r & ~1,2)}, {vr(tp,2)} op_sel:[0,{r&1},0] op_sel_hi:[1,{r&1},1] neg_lo:[0,0,1] neg_hi:[0,0,1]")
        else:
            a(f"v_pk_mul_f32 {vr(tp,2)}, {vr(m+2*h,2)}, {vr(cs,2)} op_sel:[0,0] op_sel_hi:[1,0]")
            a(f"v_pk_fma_f32 {vr(tp,2)}, {vr(acc+2*h,2)}, {vr(r+2*h,2)}, {vr(tp,2)} neg_lo:[0,0,1] neg_hi:[0,0,1]")
    for h in range(2): a(f"v_cvt_pk_bf16_f32 v{dst+h}, v{t+2*h}, v{t+2*h+1}")

def compute_A(a):
    XA, WA = [32, 68], [104, 116]
    aQ, aK, aV = 128, 160, 196
    vAW, vCW = 13, 14
    sWS_ = sA
    a.lab("L_typeA")
    lane_common(a)
    a(f"v_xor_b32 v{vAX1}, 64, v{vAX0}")
    a(f"s_lshl_b32 s52, s{sWV}, 5"); a("v_xor_b32 v3, s52, v3"); a(f"v_add_u32 v{vAW}, v2, v3")
    for r in range(aQ, cS + 12): a(f"v_mov_b32 v{r}, 0")
    a(f"s_mov_b32 s{sBASE}, 0"); a(f"s_mov_b32 s{sRND}, 0")
    srd(a, sWS_, pWS, A2_BYTES)
    p0_finish(a, 16, NPF)
    bC, bP, bPF = 16, 20, 24
    Mc0, Mc1, Mp0, Mp1 = 28, 29, 30, 31
    tt = 84
    a(f"v_mov_b32 v{tt+3}, {hexf(BIG)}")
    for r in range(4):
        a(f"v_lshl_add_u32 v{tt}, v{vG}, 2, {r}"); a(f"v_sub_u32 v{tt}, v{vI}, v{tt}")
        a(f"v_and_b32 v{tt+1}, 1, v{tt}")
        a(f"v_cmp_eq_u32 vcc, 0, v{tt+1}"); a(f"v_cmp_le_i32 s[52:53], 0, v{tt}")
        hm = "0xffff0000" if (r & 1) else "0xffff"
        a(f"v_mov_b32 v{tt+2}, {hm}"); a.nop(1)
        a("s_and_b64 s[54:55], vcc, s[52:53]"); a("s_andn2_b64 s[58:59], vcc, s[52:53]")
        a(f"v_cndmask_b32 v{bC+r}, v{tt+3}, 0, s[54:55]"); a(f"v_cndmask_b32 v{bP+r}, v{tt+3}, 0, s[58:59]")
        mc, mp = (Mc0, Mp0) if r < 2 else (Mc1, Mp1)
        z = "0" if (r & 1) == 0 else None
        a(f"v_cndmask_b32 v{mc}, {z or 'v%d' % mc}, v{tt+2}, s[54:55]"); a(f"v_cndmask_b32 v{mp}, {z or 'v%d' % mp}, v{tt+2}, s[58:59]")
    a(f"s_cmp_eq_u32 s{sRB}, 0"); a("s_cselect_b64 vcc, -1, 0")
    for r in range(4): a(f"v_cndmask_b32 v{bPF+r}, v{bP+r}, v{tt+3}, vcc")
    def reads(buf, sub):
        o = [f"v_add_u32 v{vCX}, s{sBASE}, v{vAX1 if sub else vAX0}"]
        if sub == 0: o.append(f"v_add_u32 v{vCW}, s{sBASE}, v{vAW}")
        for p in range(3):
            o.append(f"ds_read_b64_tr_b16 {vr(WA[buf]+4*p,2)}, v{vCW} offset:{p*8192+sub*4096}")
            o.append(f"ds_read_b64_tr_b16 {vr(WA[buf]+4*p+2,2)}, v{vCW} offset:{p*8192+sub*4096+512}")
        for t in range(9): o.append(f"ds_read_b128 {vr(XA[buf]+4*t,4)}, v{vCX} offset:{t*2048}")
        return o
    def mfmas(buf):
        X, W = XA[buf], WA[buf]
        mf = []
        for t in range(9):
            mf.append(MF32(aK+4*t, W+4, X+4*t)); mf.append(MF32(aV+4*t, X+4*t, W+8))
            if t >= 1: mf.append(MF32(aQ+4*(t-1), W, X+4*t))
        mf += [MF32(cS, W, vONE), MF32(cS+4, W+4, vONE), MF32(cS+8, vONE, W+8)]
        return mf
    main_loop(a, "A", mfmas, reads, True)
    stamp(a, 4)
    vTA, vTB = 13, 14
    a(f"v_lshlrev_b32 v{vTA}, 2, v{vI}"); a(f"v_add_u32 v{vTA}, {TAB}, v{vTA}")
    a(f"v_lshlrev_b32 v{vTB}, 4, v{vG}"); a(f"v_add_u32 v{vTB}, {TAB}, v{vTB}")
    RA, MA = 32, 42
    RB_, MB_ = 52, 88
    for t in range(9): a(f"ds_read_b32 v{RA+t}, v{vTA} offset:{t*64}")
    for t in range(3): a(f"ds_read_b128 {vr(RB_+4*t,4)}, v{vTB} offset:{t*64}"); a(f"ds_read_b128 {vr(MB_+4*t,4)}, v{vTB} offset:{576+t*64}")
    a("s_waitcnt lgkmcnt(6)")
    for t in range(9): a(f"ds_read_b32 v{MA+t}, v{vTA} offset:{576+t*64}")
    a("s_waitcnt lgkmcnt(3)")
    for t in range(3, 9): a(f"ds_read_b128 {vr(RB_+4*t,4)}, v{vTB} offset:{t*64}"); a(f"ds_read_b128 {vr(MB_+4*t,4)}, v{vTB} offset:{576+t*64}")
    a("s_waitcnt lgkmcnt(12)")
    Kb, Vb, Qb = aK, aV, aQ
    for t in range(9):
        conv(a, aK+4*t, Kb+2*t, RA+t, MA+t, cS+4, False)
        if t >= 1: conv(a, aQ+4*(t-1), Qb+2*(t-1), RA+t, MA+t, cS, False)
    a("s_waitcnt lgkmcnt(0)")
    for t in range(9):
        conv(a, aV+4*t, Vb+2*t, RB_+4*t, MB_+4*t, cS+8, True)
    a(f"s_mov_b32 s54, {hexf(C_EXP)}")
    Sr, Tr, Pr, Or = 88, 144, 178, 214
    for b in range(2):
        U = range(4)
        for u in U:
            gu = 4*b + u; t = gu + 1
            bp = bPF if gu == 0 else bP
            a(f"v_mfma_f32_16x16x16_bf16 {vr(Sr+8*u,4)}, {vr(Kb+2*(t-1),2)}, {vr(Qb+2*gu,2)}, {vr(bp,4)}")
            a(f"v_mfma_f32_16x16x16_bf16 {vr(Sr+8*u+4,4)}, {vr(Kb+2*t,2)}, {vr(Qb+2*gu,2)}, {vr(bC,4)}")
        a.nop(4)
        for u in U:
            Sp, Sc, a0, a1 = Sr+8*u, Sr+8*u+4, Tr+4*u, Tr+4*u+1
            a(f"v_max3_f32 v{a0}, v{Sp}, v{Sp+1}, v{Sc}"); a(f"v_max3_f32 v{a1}, v{Sp+2}, v{Sp+3}, v{Sc+2}")
            a(f"v_max_f32 v{a0}, v{a0}, v{Sc+1}"); a(f"v_max_f32 v{a1}, v{a1}, v{Sc+3}")
            a(f"v_max_f32 v{Tr+4*u+2}, v{a0}, v{a1}")
        xlane(a, "v_max_f32", [Tr+4*u+2 for u in U], [Tr+4*u+3 for u in U])
        for u in U: a(f"v_mul_f32 v{Tr+4*u+2}, s54, v{Tr+4*u+2}")
        for u in U:
            for k in range(2): a(f"v_fma_f32 v{Tr+4*u+k}, v{Tr+4*u+k}, s54, -v{Tr+4*u+2}")
        for u in U:
            for k in range(2): a(f"v_exp_f32 v{Tr+4*u+k}, v{Tr+4*u+k}")
        for u in U:
            for k in range(2): a(f"v_cvt_pk_bf16_f32 v{Tr+4*u+k}, v{Tr+4*u+k}, v{Tr+4*u+k}")
        for u in U:
            P = Pr+4*u; a0, a1 = Tr+4*u, Tr+4*u+1
            a(f"v_and_b32 v{P}, v{a0}, v{Mp0}"); a(f"v_and_b32 v{P+1}, v{a1}, v{Mp1}")
            a(f"v_and_b32 v{P+2}, v{a0}, v{Mc0}"); a(f"v_and_b32 v{P+3}, v{a1}, v{Mc1}")
        a.nop(2)
        for u in U:
            t = 4*b + u + 1
            a(MF32(Sr+8*u, vONE, Pr+4*u, "0")); a(MF32(Sr+8*u+4, Vb+2*(t-1), Pr+4*u, "0"))
        a.nop(4)
        for u in U: a(f"v_rcp_f32 v{Sr+8*u}, v{Sr+8*u}")
        for u in U:
            for k in range(4): a(f"v_mul_f32 v{Sr+8*u+4+k}, v{Sr+8*u+4+k}, v{Sr+8*u}")
        for u in U:
            for k in range(2): a(f"v_cvt_pk_bf16_f32 v{Or+2*(4*b+u)+k}, v{Sr+8*u+4+2*k}, v{Sr+8*u+4+2*k+1}")
    stamp(a, 5)
    a(f"s_lshr_b32 s52, s{sWV}, 1"); a("s_lshl_b32 s52, s52, 13"); a(f"s_add_u32 s52, s52, {XB}")
    a(f"s_and_b32 s53, s{sWV}, 1"); a("s_lshl_b32 s54, s53, 3"); a("s_add_u32 s54, s54, s52")
    a("v_lshlrev_b32 v15, 4, v0"); a("v_add_u32 v2, s54, v15")
    for u in range(8): a(f"ds_write_b64 v2, {vr(Or+2*u,2)} offset:{u*1024}")
    a("s_lshl_b32 s54, s53, 12"); a("s_add_u32 s54, s54, s52")
    a(f"s_lshr_b32 s55, s{sWV}, 1"); a("s_lshl_b32 s55, s55, 2"); a(f"s_add_u32 s55, s55, {PCNT+4}")
    lds_sync(a, 55, 2, "xa")
    a("v_add_u32 v3, s54, v15")
    for u in range(4): a(f"ds_read_b128 {vr(88+4*u,4)}, v3 offset:{u*1024}")
    a(f"s_lshl_b32 s52, s{sRB}, 3"); a("s_lshl_b32 s54, s53, 2"); a("s_add_u32 s52, s52, s54"); a(f"s_mul_i32 s52, s52, {NSTEP2}")
    a(f"s_lshl_b32 s54, s{sGR}, 1"); a("s_add_u32 s52, s52, s54"); a(f"s_lshr_b32 s54, s{sWV}, 1"); a("s_add_u32 s52, s52, s54"); a("s_lshl_b32 s52, s52, 10")
    for u in range(4):
        a(f"s_waitcnt lgkmcnt({3-u})")
        a(f"buffer_store_dwordx4 {vr(88+4*u,4)}, v15, {sr(sWS_,4)}, s52 offen {SSC.replace('_',' ')}")
        if u < 3: a(f"s_add_u32 s52, s52, {NSTEP2*1024}")
    stamp(a, 6)
    a("s_branch L_p1done")

def compute_M(a):
    XM, WM = [32, 48], [64, 88]
    aF = 128
    vAW, vCW = 13, 112
    vAWb = 116
    vB1 = 16
    sWS_, sB1_ = sA, sB
    a.lab("L_typeM")
    lane_common(a)
    a(f"s_lshr_b32 s52, s{sWV}, 1"); a("s_lshl_b32 s52, s52, 13"); a("s_add_u32 s52, s52, 2048")
    a(f"v_add_u32 v{vAX0}, s52, v{vAX0}"); a(f"v_xor_b32 v{vAX1}, 64, v{vAX0}")
    for cb in range(4):
        a(f"v_xor_b32 v1, {cb*32}, v3"); a(f"v_add_u32 v{vAWb+cb}, v2, v1")
    for r in range(aF, cS + 12): a(f"v_mov_b32 v{r}, 0")
    a(f"s_mov_b32 s{sBASE}, 0"); a(f"s_mov_b32 s{sRND}, 0")
    srd(a, sWS_, pWS, A2_BYTES); srd(a, sB1_, pB1, F * 2)
    p0_finish(a, 16, NPF)
    a(f"s_and_b32 s52, s{sWV}, 1"); a("s_mul_i32 s52, s52, 3"); a(f"s_add_u32 s52, s52, s{sFS}"); a("s_lshl_b32 s52, s52, 6")
    a(f"v_lshlrev_b32 v2, 3, v{vG}")
    for k in range(6): a(f"buffer_load_dwordx2 {vr(vB1+2*k,2)}, v2, {sr(sB1_,4)}, s52 offen offset:{k*32}")
    for w in range(1, 4):
        a(f"s_cmp_eq_u32 s{sWV}, {w}"); a(f"s_cbranch_scc1 L_mv{w}")
    for w in range(4):
        ch, rh = w & 1, w >> 1
        a.lab(f"L_mv{w}")
        def reads(buf, sub):
            o = [f"v_add_u32 v{vCX}, s{sBASE}, v{vAX1 if sub else vAX0}"]
            cbs = sorted(set((6*ch + k) & 3 for k in range(6)))
            if sub == 0:
                for cb in cbs: o.append(f"v_add_u32 v{vCW+cb}, s{sBASE}, v{vAWb+cb}")
            for k in range(6):
                cg = 6*ch + k; q, cb = cg >> 2, cg & 3
                o.append(f"ds_read_b64_tr_b16 {vr(WM[buf]+4*k,2)}, v{vCW+cb} offset:{q*8192+sub*4096}")
                o.append(f"ds_read_b64_tr_b16 {vr(WM[buf]+4*k+2,2)}, v{vCW+cb} offset:{q*8192+sub*4096+512}")
            for t in range(4): o.append(f"ds_read_b128 {vr(XM[buf]+4*t,4)}, v{vCX} offset:{t*2048}")
            return o
        def mfmas(buf):
            X, W = XM[buf], WM[buf]
            mf = []
            for k in range(6):
                for t in range(4): mf.append(MF32(aF + ((k >> 1)*4 + t)*8 + 4*(k & 1), W+4*k, X+4*t))
            for e in range(3): mf.append(MF32(cS+4*e, W+4*(3*rh+e), vONE))
            return mf
        main_loop(a, f"M{w}", mfmas, reads, w == 0)
        a(f"v_lshlrev_b32 v2, 4, v{vG}"); a(f"v_add_u32 v2, {T_CS}, v2")
        a("s_mov_b32 exec_lo, 0x00010001"); a("s_mov_b32 exec_hi, 0x00010001")
        for e in range(3): a(f"ds_write_b128 v2, {vr(cS+4*e,4)} offset:{(6*ch+3*rh+e)*64}")
        a("s_mov_b64 exec, -1")
        if w < 3: a("s_branch L_mepi")
    a.lab("L_mepi")
    a("s_waitcnt lgkmcnt(0)"); a("s_barrier")
    stamp(a, 4)
    CS, B1, RR_, MR_ = 32, 56, 80, 84
    a(f"s_lshr_b32 s52, s{sWV}, 1"); a("s_lshl_b32 s52, s52, 8")
    a(f"v_lshl_add_u32 v2, v{vI}, 2, s52"); a(f"v_add_u32 v2, {TAB + 64}, v2")
    for t in range(4):
        a(f"ds_read_b32 v{RR_+t}, v2 offset:{1152+t*64}"); a(f"ds_read_b32 v{MR_+t}, v2 offset:{1728+t*64}")
    a(f"s_and_b32 s53, s{sWV}, 1"); a("s_mul_i32 s54, s53, 384"); a(f"v_lshl_add_u32 v3, v{vG}, 4, s54"); a(f"v_add_u32 v3, {T_CS}, v3")
    for k in range(6): a(f"ds_read_b128 {vr(CS+4*k,4)}, v3 offset:{k*64}")
    for k in range(12):
        a(f"v_lshlrev_b32 v{B1+2*k}, 16, v{vB1+k}"); a(f"v_and_b32 v{B1+2*k+1}, s{sMASK}, v{vB1+k}")
    sC2, kC1 = 60, 112
    a(f"s_mov_b32 s{sC2}, {hexf(G2)}"); a(f"s_mov_b32 s{sC2+1}, {hexf(G2)}")
    a(f"v_mov_b32 v{kC1}, {hexf(G1)}"); a(f"v_mov_b32 v{kC1+1}, {hexf(G1)}")
    a("v_lshlrev_b32 v15, 4, v0")
    a(f"s_lshr_b32 s52, s{sWV}, 1"); a("s_lshl_b32 s52, s52, 2"); a(f"s_lshl_b32 s54, s{sRB}, 3"); a("s_add_u32 s52, s52, s54"); a(f"s_mul_i32 s52, s52, {NSTEP2}")
    a("s_mul_i32 s54, s53, 3"); a("s_add_u32 s52, s52, s54"); a(f"s_add_u32 s52, s52, s{sFS}"); a("s_add_u32 s52, s52, 16"); a("s_lshl_b32 s52, s52, 10")
    a(f"s_sub_u32 s55, s{sNF}, s54")
    a("s_waitcnt lgkmcnt(0)")
    for sp in range(3):
        stamp(a, 50+sp)
        if sp == 2:
            a("s_cmp_lt_u32 s55, 3"); a("s_cbranch_scc1 L_gelu_done")
        for t in range(4):
            g = sp*4 + t
            o = 104 + 4*(g & 1)
            r, m = RR_+t, MR_+t
            cs, b1, acc = CS + 8*sp, B1 + 8*sp, aF + 8*g
            T = 88
            for p in range(4):
                u = T + 2*p
                a(f"v_pk_fma_f32 {vr(u,2)}, {vr(cs+2*p,2)}, {vr(m&~1,2)}, {vr(b1+2*p,2)} op_sel:[0,{m&1},0] op_sel_hi:[1,{m&1},1] neg_lo:[0,1,0] neg_hi:[0,1,0]")
            for p in range(4):
                u = T + 2*p
                a(f"v_pk_fma_f32 {vr(u,2)}, {vr(acc+2*p,2)}, {vr(r&~1,2)}, {vr(u,2)} op_sel:[0,{r&1},0] op_sel_hi:[1,{r&1},1]")
            for p in range(4): a(f"v_pk_mul_f32 {vr(T+8+2*p,2)}, {vr(T+2*p,2)}, {vr(T+2*p,2)}")
            for p in range(4): a(f"v_pk_fma_f32 {vr(T+8+2*p,2)}, {vr(T+8+2*p,2)}, {sr(sC2,2)}, {vr(kC1,2)}")
            for p in range(4): a(f"v_pk_mul_f32 {vr(T+8+2*p,2)}, {vr(T+8+2*p,2)}, {vr(T+2*p,2)}")
            for p in range(8): a(f"v_exp_f32 v{T+8+p}, v{T+8+p}")
            for p in range(4): a(f"v_pk_add_f32 {vr(T+8+2*p,2)}, {vr(T+8+2*p,2)}, 1.0 op_sel_hi:[1,0]")
            for p in range(8): a(f"v_rcp_f32 v{T+8+p}, v{T+8+p}")
            for p in range(4): a(f"v_pk_mul_f32 {vr(T+8+2*p,2)}, {vr(T+8+2*p,2)}, {vr(T+2*p,2)}")
            if DEFER: o = acc
            for p in range(4): a(f"v_cvt_pk_bf16_f32 v{o+p}, v{T+8+2*p}, v{T+8+2*p+1}")
            if not DEFER and not NOST:
                a(f"s_add_u32 s53, s52, {(t*NSTEP2+sp)*1024}")
                a(f"buffer_store_dwordx4 {vr(o,4)}, v15, {sr(sWS_,4)}, s53 offen {SSC.replace('_',' ')}")
        if DEFER and sp == 1:
            pass
    if DEFER:
        for t in range(4):
            a(f"s_add_u32 s53, s52, {(t*NSTEP2+2)*1024}")
            a(f"buffer_store_dwordx4 {vr(aF+8*(8+t),4)}, v15, {sr(sWS_,4)}, s53 offen {SSC.replace('_',' ')}")
    a.lab("L_gelu_done")
    if DEFER:
        for sp in range(2):
            for t in range(4):
                a(f"s_add_u32 s53, s52, {(t*NSTEP2+sp)*1024}")
                a(f"buffer_store_dwordx4 {vr(aF+8*(sp*4+t),4)}, v15, {sr(sWS_,4)}, s53 offen {SSC.replace('_',' ')}")
    stamp(a, 6)

def compute(a):
    p0_stats(a)
    a(f"s_cmp_eq_u32 s{sTY}, 1"); a("s_cbranch_scc1 L_typeM")
    compute_A(a)
    compute_M(a)
    a.lab("L_p1done")
    a("s_waitcnt vmcnt(0)"); stamp(a, 33)
    srd(a, sB, pWS, WS_BYTES)
    a(f"v_mov_b32 v2, {PCNT}"); a("v_mov_b32 v3, 1"); a(f"v_mov_b32 v4, {NSLOT}")
    a("s_mov_b64 exec, 1")
    a("ds_add_rtn_u32 v3, v2, v3"); a("ds_read_b32 v5, v4")
    a("s_waitcnt lgkmcnt(0)")
    a("s_mov_b64 exec, -1")
    a("v_readfirstlane_b32 s52, v3"); a.nop(2); a("s_cmp_lg_u32 s52, 3"); a("s_cbranch_scc1 L_nopub")
    if MBX:
        a("v_readfirstlane_b32 s53, v5"); a(f"s_lshl_b32 s52, s{sRB}, 4"); a("v_add_u32 v2, s52, v0"); a("v_lshlrev_b32 v2, 7, v2")
        a(f"s_lshl_b32 s52, s{sJ}, 2"); a(f"s_add_u32 s52, s52, {MBX_OFF}"); a("v_add_u32 v2, s52, v2"); a("v_mov_b32 v5, s53")
        a("s_mov_b64 exec, 0xffff")
        a(f"buffer_store_dword v5, v2, {sr(sB,4)}, 0 offen sc1")
        a("s_mov_b64 exec, -1")
    else:
        flag_store(a, 1, sB, 2, 5)
    a.lab("L_nopub")
    p2_addr(a)
    a(f"s_lshl_b32 s52, s{sWV}, 12"); a("v_add_u32 v6, s52, v6")
    for cb in range(4):
        a(f"v_xor_b32 v10, {cb*32}, v7"); a(f"v_add_u32 v{2+cb}, v6, v10")
    p2_main(a)

AF2 = [12, 28, 44]; ACC2 = 60; WF2 = 124
def p2_addr(a):
    a(f"v_lshrrev_b32 v6, 2, v{vI}"); a(f"v_lshl_add_u32 v6, v{vG}, 2, v6")
    a("v_lshrrev_b32 v7, 1, v6"); a("v_and_b32 v7, 3, v7"); a("v_lshlrev_b32 v7, 5, v7")
    a("v_lshlrev_b32 v6, 7, v6"); a(f"v_and_b32 v10, 3, v{vI}"); a("v_lshl_add_u32 v6, v10, 3, v6")
def w_frag_reads(a, i):
    for cb in range(4):
        d = WF2 + 16*i + 4*cb
        a(f"ds_read_b64_tr_b16 {vr(d,2)}, v{2+cb} offset:{(i % 4)*16384}"); a(f"ds_read_b64_tr_b16 {vr(d+2,2)}, v{2+cb} offset:{(i % 4)*16384+2048}")

def p2_main(a):
    a.lab("L_p2")
    vAo, sA2_, sAk, sOff = 1, sC, 56, 58
    srd(a, sA2_, pWS, WS_BYTES)
    a(f"v_lshlrev_b32 v{vAo}, 4, v0")
    a(f"s_lshl_b32 s{sAk}, s{sRG}, 2"); a(f"s_mul_i32 s{sAk}, s{sAk}, {NSTEP2}"); a(f"s_add_u32 s{sAk}, s{sAk}, s{sWV}"); a(f"s_lshl_b32 s{sAk}, s{sAk}, 10")
    a(f"s_add_u32 s57, s{sAk}, {7*8192}"); a(f"s_cmp_lt_u32 s{sWV}, 3"); a("s_cselect_b32 s57, s57, 0x80000000")
    if HPRIO:
        a(f"s_cmp_lt_u32 s{sWV}, 4"); a("s_cbranch_scc1 L_np"); a(f"s_setprio {HPRIO}"); a.lab("L_np")
    a("s_barrier")
    stamp(a, 8)
    free = list(AF2); buf = {}; issued = []
    def issue(i):
        b0 = free.pop(0); buf[i] = b0; issued.append(i)
        for b in range(4):
            if i == 7: a(f"s_add_u32 s{sOff}, s57, {b*NSTEP2*1024}")
            else: a(f"s_add_u32 s{sOff}, s{sAk}, {i*8192 + b*NSTEP2*1024}")
            a(f"buffer_load_dwordx4 {vr(b0+4*b,4)}, v{vAo}, {sr(sA2_,4)}, s{sOff} offen {ASC.replace('_',' ') if ASC != 'none' else ''}")
    if MERGE:
        issue(0); issue(1); nxt = 2
        a(f"s_cmp_ge_u32 s{sWV}, 4"); a("s_cbranch_scc1 L_wrdy")
        for i in range(8):
            if i == 4:
                for cb in range(4): a(f"v_add_u32 v{2+cb}, 65536, v{2+cb}")
            w_frag_reads(a, i)
        a("s_waitcnt lgkmcnt(0)")
        a.lab("L_wrdy")
        if MWIN3: issue(2); nxt = 3
    else:
        a(f"s_cmp_lg_u32 s{sWV}, 4"); a("s_cbranch_scc1 L_nsn")
        a("s_mov_b64 exec, 0xffff"); a(f"buffer_load_dword v7, v6, {sr(sA2_,4)}, 0 offen sc1"); a("s_mov_b64 exec, -1")
        a.lab("L_nsn")
        issue(0); issue(1)
        def wreads():
            a(f"s_cmp_ge_u32 s{sWV}, 4"); a("s_cbranch_scc1 L_wrdy")
            for i in range(8):
                if i == 4:
                    for cb in range(4): a(f"v_add_u32 v{2+cb}, 65536, v{2+cb}")
                w_frag_reads(a, i)
            a("s_waitcnt lgkmcnt(0)")
            a.lab("L_wrdy")
        if WRD: wreads()
        a(f"s_cmp_lg_u32 s{sWV}, 4"); a("s_cbranch_scc1 L_g2")
        a("s_waitcnt vmcnt(8)")
        a("s_mov_b32 s60, 0xff00")
        a("s_mov_b32 exec_lo, s60"); a("s_mov_b32 exec_hi, 0"); a("v_cmp_eq_u32 vcc, s97, v7"); a("s_mov_b64 exec, -1"); a.nop(1)
        a("s_cmp_eq_u32 vcc_lo, s60"); a("s_cbranch_scc1 L_g2")
        poll(a, 6, 97, 7, 60, sA2_, "p1m")
        a.lab("L_g2")
        a("s_barrier"); stamp(a, 59)
        issue(2); nxt = 3
        if not WRD: wreads()
    tail_issued = False; tb = None
    for i in range(8):
        newer = len(issued) - 1 - issued.index(i)
        a(f"s_waitcnt vmcnt({min(63, 4*newer + ((3 if ADDTID else 2) if tail_issued else 0))})")
        stamp(a, 40+i)
        if i == 7: a(f"s_cmp_ge_u32 s{sWV}, 3"); a("s_cbranch_scc1 L_s7skip")
        for b in range(4):
            for cb in range(4):
                if ADDTID: a(MF32(ACC2+(cb*4+b)*4, buf[i]+4*b, WF2+16*i+4*cb, "0" if i == 0 else None))
                else: a(MF32(ACC2+(cb*4+b)*4, WF2+16*i+4*cb, buf[i]+4*b, "0" if i == 0 else None))
        if i == HDROP: a("s_setprio 0")
        free.append(buf[i]); free.append(WF2 + 16*i)
        while free and nxt < 8 and nxt < i + 1 + WIN: issue(nxt); nxt += 1
        if nxt == 8 and not tail_issued and free:
            tail_issued = True; tb = free.pop(0); tail_loads(a, tb)
    a.lab("L_s7skip")
    stamp(a, 9)
    if ADDTID:
        a(f"s_lshl_b32 s52, s{sWV}, 14"); a(f"s_cmp_ge_u32 s{sWV}, 4"); a("s_cselect_b32 s53, 49216, 0"); a("s_sub_u32 s52, s52, s53"); a("s_mov_b32 m0, s52")
        a.nop(6)
        a(f"s_cmp_ge_u32 s{sWV}, 4"); a("s_cbranch_scc1 L_wrhi")
        for k in range(64): a(f"ds_write_addtid_b32 v{ACC2+k} offset:{k*256}")
        a("s_branch L_wrd")
        a.lab("L_wrhi")
        for k in range(64): a(f"ds_write_addtid_b32 v{ACC2+k} offset:{49216 + k*256}")
        a.lab("L_wrd")
    else:
        a.nop(8)
        a(f"s_mul_i32 s52, s{sWV}, 17408"); a(f"v_mul_u32_u24 v6, 272, v{vI}"); a(f"v_lshl_add_u32 v6, v{vG}, 4, v6"); a("v_add_u32 v6, s52, v6")
        for cb in range(4):
            for b in range(4):
                a(f"ds_write_b128 v6, {vr(ACC2+(cb*4+b)*4,4)} offset:{b*16*272 + cb*64}")
    move_tail(a, tb)
    a("s_waitcnt lgkmcnt(0)")

TB = 12
vXO, vRow, vCol, vXD, vB2 = TB, TB+1, TB+2, TB+8, TB+12
def tail_loads(a, tb):
    sXs, sB2_ = sB, sDD
    srd(a, sXs, pX, S*D*2); srd(a, sB2_, pB2, D*2)
    if ADDTID:
        a(f"v_bfe_u32 v{tb+1}, v0, 2, 2"); a(f"v_lshrrev_b32 v{tb+2}, 4, v0"); a(f"v_lshl_add_u32 v{tb+3}, v{tb+1}, 2, v{tb+2}")
        a(f"s_lshr_b32 s52, s{sWV}, 2"); a("s_lshl_b32 s52, s52, 5"); a(f"s_lshl_b32 s53, s{sRG}, 6"); a("s_add_u32 s52, s52, s53")
        a(f"v_add_u32 v{tb+3}, s52, v{tb+3}"); a(f"v_lshlrev_b32 v{tb+3}, 10, v{tb+3}")
        a(f"s_and_b32 s52, s{sWV}, 3"); a("s_lshl_b32 s52, s52, 5"); a(f"s_lshl_b32 s53, s{sCG}, 7"); a("s_add_u32 s52, s52, s53")
        a(f"v_and_b32 v{tb+4}, 3, v0"); a(f"v_lshl_add_u32 v{tb+4}, v{tb+4}, 3, s52")
        a(f"v_add_u32 v{tb}, v{tb+3}, v{tb+4}")
        a(f"buffer_load_dwordx2 {vr(tb+8,2)}, v{tb}, {sr(sXs,4)}, 0 offen")
        a(f"s_mov_b32 s52, 16384"); a(f"buffer_load_dwordx2 {vr(tb+10,2)}, v{tb}, {sr(sXs,4)}, s52 offen")
        a(f"buffer_load_dwordx2 {vr(tb+12,2)}, v{tb+4}, {sr(sB2_,4)}, 0 offen")
        return
    a(f"s_lshl_b32 s52, s{sWV}, 3"); a(f"v_lshrrev_b32 v{tb+1}, 3, v0"); a(f"v_add_u32 v{tb+1}, s52, v{tb+1}"); a(f"v_and_b32 v{tb+2}, 7, v0")
    a(f"s_lshl_b32 s52, s{sRG}, 6"); a(f"v_add_u32 v{tb+3}, s52, v{tb+1}"); a(f"v_lshlrev_b32 v{tb+3}, 10, v{tb+3}")
    a(f"s_lshl_b32 s53, s{sCG}, 7"); a(f"v_lshlrev_b32 v{tb+4}, 4, v{tb+2}"); a(f"v_add_u32 v{tb+4}, s53, v{tb+4}")
    a(f"v_add_u32 v{tb}, v{tb+3}, v{tb+4}")
    a(f"buffer_load_dwordx4 {vr(tb+8,4)}, v{tb}, {sr(sXs,4)}, 0 offen")
    a(f"buffer_load_dwordx4 {vr(tb+12,4)}, v{tb+4}, {sr(sB2_,4)}, 0 offen")
def move_tail(a, tb):
    if tb == TB: return
    a("s_waitcnt vmcnt(0)")
    for k in list(range(3)) + list(range(8, 16)): a(f"v_mov_b32 v{TB+k}, v{tb+k}")

def final(a, END):
    a.lab("L_final")
    if ADDTID:
        R = 28
        a("s_waitcnt vmcnt(0)")
        for bb in range(2):
            for h in range(2):
                d = R + 4*bb + 2*h
                a(f"v_lshlrev_b32 v{d}, 16, v{vXD+2*bb+h}"); a(f"v_and_b32 v{d+1}, s{sMASK}, v{vXD+2*bb+h}")
                a(f"v_lshlrev_b32 v36, 16, v{vB2+h}"); a(f"v_and_b32 v37, s{sMASK}, v{vB2+h}")
                a(f"v_pk_add_f32 {vr(d,2)}, {vr(d,2)}, {vr(36,2)}")
    a("s_barrier")
    stamp(a, 10)
    srd(a, sA, pOUT, S*D*2)
    if ADDTID:
        a(f"s_and_b32 s52, s{sWV}, 3"); a("s_lshl_b32 s52, s52, 12"); a(f"s_lshr_b32 s53, s{sWV}, 2"); a("s_lshl_b32 s53, s53, 11"); a("s_add_u32 s52, s52, s53")
        a(f"v_lshlrev_b32 v40, 8, v{vCol}"); a(f"v_lshl_add_u32 v40, v{vRow}, 6, v40"); a("v_and_b32 v41, 3, v0"); a("v_lshl_add_u32 v40, v41, 4, v40"); a("v_add_u32 v40, s52, v40")
        P = 128
        for w in range(8):
            if w == 4: a("v_add_u32 v40, 65536, v40")
            o = (w % 4)*16384
            a(f"ds_read_b128 {vr(P+8*w,4)}, v40 offset:{o}"); a(f"ds_read_b128 {vr(P+8*w+4,4)}, v40 offset:{o+1024}")
        R = 28
        for w in range(8):
            a(f"s_waitcnt lgkmcnt({min(15, 2*(7-w))})")
            for d in range(4):
                a(f"v_pk_add_f32 {vr(R+2*d,2)}, {vr(R+2*d,2)}, {vr(P+8*w+2*d,2)}")
        for d in range(4): a(f"v_cvt_pk_bf16_f32 v{76+d}, v{R+2*d}, v{R+2*d+1}")
        a(f"buffer_store_dwordx2 {vr(76,2)}, v{vXO}, {sr(sA,4)}, 0 offen {OSC.replace('_',' ')}")
        a("s_mov_b32 s52, 16384"); a(f"buffer_store_dwordx2 {vr(78,2)}, v{vXO}, {sr(sA,4)}, s52 offen {OSC.replace('_',' ')}")
    else:
        a(f"v_mul_u32_u24 v30, 272, v{vRow}"); a(f"v_lshl_add_u32 v30, v{vCol}, 5, v30")
        P = 128
        for w in range(8):
            if w == 3: a(f"v_add_u32 v31, {3*17408}, v30")
            if w == 6: a(f"v_add_u32 v31, {6*17408}, v30")
            ad = 30 if w < 3 else 31
            o = (w % 3)*17408
            a(f"ds_read_b128 {vr(P+8*w,4)}, v{ad} offset:{o}"); a(f"ds_read_b128 {vr(P+8*w+4,4)}, v{ad} offset:{o+16}")
        R = 64
        a("s_waitcnt vmcnt(0)")
        for d in range(4):
            a(f"v_lshlrev_b32 v{R+2*d}, 16, v{vXD+d}"); a(f"v_and_b32 v{R+2*d+1}, s{sMASK}, v{vXD+d}")
            a(f"v_lshlrev_b32 v72, 16, v{vB2+d}"); a(f"v_and_b32 v73, s{sMASK}, v{vB2+d}")
            a(f"v_pk_add_f32 {vr(R+2*d,2)}, {vr(R+2*d,2)}, {vr(72,2)}")
        for w in range(8):
            a(f"s_waitcnt lgkmcnt({min(15, 2*(7-w))})")
            for d in range(4):
                a(f"v_pk_add_f32 {vr(R+2*d,2)}, {vr(R+2*d,2)}, {vr(P+8*w+2*d,2)}")
        for d in range(4): a(f"v_cvt_pk_bf16_f32 v{76+d}, v{R+2*d}, v{R+2*d+1}")
        a(f"buffer_store_dwordx4 {vr(76,4)}, v{vXO}, {sr(sA,4)}, 0 offen {OSC.replace('_',' ')}")
    if PROF:
        a("s_waitcnt vmcnt(0)")
        stamp(a, 12); stamp_rt(a, 13)
        a(f"s_mov_b32 s96, s{pWS}"); a(f"s_and_b32 s97, s{pWS+1}, 0xffff"); a("s_mov_b32 s98, 0x10000000"); a("s_mov_b32 s99, 0x20000")
        a(f"s_lshl_b32 s94, s2, 3"); a(f"s_add_u32 s94, s94, s{sWV}"); a("s_lshl_b32 s94, s94, 8"); a(f"s_add_u32 s94, s94, {0x4000000}")
        a("v_lshlrev_b32 v250, 2, v0")
        a("buffer_store_dword v255, v250, s[96:99], s94 offen")
        a("s_waitcnt vmcnt(0)")

def helper(a):
    a.lab("L_helper")
    sX, sW, sST, sDB = sA, sB, sC, sDD
    sSLW, sKX, sKW, sKWs, sCST, sM0X, sM0W, sHM, sHMUL = 56, 57, 58, 59, 92, 93, 94, 95, 96
    vX0, vX1, vW0, vW1, vHo, vL16 = 3, 4, 8, 9, 5, 7
    a("v_lshrrev_b32 v1, 3, v0"); a("v_and_b32 v2, 7, v0"); a("v_lshrrev_b32 v6, 4, v0")
    a("v_xor_b32 v10, v2, v6"); a("v_lshlrev_b32 v10, 4, v10")
    a(f"s_lshl_b32 s52, s{sH}, 5"); a(f"s_add_u32 s52, s52, s{sR0}")
    a(f"v_add_u32 v{vX0}, s52, v1"); a(f"v_lshl_add_u32 v{vX0}, v{vX0}, 10, v10")
    a(f"v_xor_b32 v{vX1}, 64, v{vX0}"); a(f"v_add_u32 v{vX1}, 8192, v{vX1}")
    a(f"s_lshl_b32 s52, s{sH}, 3"); a(f"s_add_u32 s52, s52, s{sR0}"); a("s_sub_u32 s52, s52, 16")
    a(f"v_add_u32 v{vHo}, s52, v1"); a(f"v_lshl_add_u32 v{vHo}, v{vHo}, 10, v10")
    a(f"s_and_b32 s52, s{sH}, 1"); a("s_lshl_b32 s52, s52, 6"); a(f"v_xor_b32 v{vHo}, s52, v{vHo}")
    a(f"s_lshr_b32 s52, s{sH}, 1"); a(f"s_or_b32 s52, s52, s{sTY}")
    a("s_cmp_eq_u32 s52, 0"); a(f"s_cselect_b32 s{sHMUL}, 1, 0"); a(f"s_lshl_b32 s{sHM}, s{sH}, 10");
    a("s_cmp_eq_u32 s52, 0"); a(f"s_cselect_b32 s{sHM}, s{sHM}, {DUMMY}")
    a(f"s_cselect_b32 s53, 0, 0x80000000"); a(f"s_cmp_eq_u32 s{sRB}, 0"); a("s_cselect_b32 s53, 0x80000000, s53")
    a(f"v_or_b32 v{vHo}, s53, v{vHo}")
    a(f"s_cmp_eq_u32 s{sTY}, 0"); a("s_mov_b32 s53, 2752"); a("s_cselect_b32 s52, 3072, s53")
    a("s_mov_b32 s54, 128"); a(f"s_cselect_b32 s{sCST}, 1024, s54")
    a(f"s_lshl_b32 s{sKWs}, s52, 6")
    a("v_and_b32 v6, 1, v6"); a("v_lshlrev_b32 v6, 1, v6"); a("v_xor_b32 v6, v6, v2"); a("v_lshlrev_b32 v6, 4, v6")
    a(f"s_lshl_b32 s53, s{sH}, 4")
    a(f"v_add_u32 v{vW0}, s53, v1"); a(f"v_mul_u32_u24 v{vW0}, s52, v{vW0}")
    a("s_lshl_b32 s54, s52, 3"); a(f"v_add_u32 v{vW1}, s54, v{vW0}")
    a(f"v_add_u32 v{vW0}, v{vW0}, v6"); a("v_xor_b32 v6, 64, v6"); a(f"v_add_u32 v{vW1}, v{vW1}, v6")
    a(f"s_lshl_b32 s53, s{sGR}, 7"); a(f"s_lshl_b32 s54, s{sFS}, 6"); a(f"s_cmp_eq_u32 s{sTY}, 0"); a(f"s_cselect_b32 s{sKW}, s53, s54")
    a(f"s_lshl_b32 s{sM0X}, s{sH}, 12"); a(f"s_add_u32 s{sM0X}, s{sM0X}, 2048")
    a(f"s_lshl_b32 s{sM0W}, s{sH}, 11"); a(f"s_add_u32 s{sM0W}, s{sM0W}, {WOFF}")
    a(f"v_lshlrev_b32 v{vL16}, 4, v0")
    a(f"s_mov_b32 s{sSLW}, 0"); a(f"s_mov_b32 s{sKX}, 0")
    sROT, sCB = 100, 101
    if ROT:
        if ROTM == 8:
            a("s_lshr_b32 s52, s2, 6"); a("s_lshl_b32 s52, s52, 1"); a("s_lshr_b32 s53, s2, 3"); a("s_add_u32 s52, s52, s53"); a(f"s_and_b32 s{sROT}, s52, 7")
        elif ROTM == 4:
            a("s_lshr_b32 s52, s2, 6"); a("s_lshr_b32 s53, s2, 3"); a("s_add_u32 s52, s52, s53"); a("s_and_b32 s52, s52, 3"); a(f"s_lshl_b32 s{sROT}, s52, 1")
        elif ROTM == 2:
            a("s_lshr_b32 s52, s2, 6"); a("s_lshr_b32 s53, s2, 3"); a("s_add_u32 s52, s52, s53"); a("s_and_b32 s52, s52, 1"); a(f"s_lshl_b32 s{sROT}, s52, 2")
        elif ROTM == 40:
            a(f"s_and_b32 s52, s{sRB}, 3"); a(f"s_lshl_b32 s{sROT}, s52, 1")
        a(f"s_mov_b32 s{sCB}, s{sKW}")
        a(f"s_lshl_b32 s{sKX}, s{sROT}, 7"); a(f"s_mul_i32 s52, s{sROT}, s{sKWs}"); a(f"s_add_u32 s{sKW}, s{sCB}, s52")
    a("s_waitcnt lgkmcnt(0)")
    srd(a, sX, pX, S*D*2)
    a(f"s_cmp_eq_u32 s{sTY}, 0")
    a(f"s_cselect_b32 s{sW}, s{pWQKV}, s{pW1}"); a(f"s_cselect_b32 s{sW+1}, s{pWQKV+1}, s{pW1+1}")
    a(f"s_mov_b32 s52, {D*F*2}"); a(f"s_cselect_b32 s{sW+2}, {D*3*D*2}, s52")
    a(f"s_and_b32 s{sW+1}, s{sW+1}, 0xffff"); a(f"s_mov_b32 s{sW+3}, 0x20000")
    def dma_round():
        def ld(v, srdr, so): a(f"buffer_load_dwordx4 v{v}, {sr(srdr,4)}, s{so} offen lds")
        a(f"s_add_u32 m0, s{sSLW}, s{sM0W}"); a(f"s_add_u32 s53, s{sKW}, s{sCST}"); ld(vW0, sW, sKW)
        a("s_add_u32 m0, m0, 8192"); a(f"s_add_u32 s54, s53, s{sCST}"); ld(vW0, sW, 53)
        a("s_add_u32 m0, m0, 8192"); a.nop(1); ld(vW0, sW, 54)
        a(f"s_add_u32 m0, s{sSLW}, s{sM0X}"); a(f"s_add_u32 s55, s{sKX}, 16384"); ld(vX0, sX, sKX)
        a("s_add_u32 m0, m0, 1024"); a.nop(1); ld(vX1, sX, sKX)
        a(f"s_add_u32 m0, s{sSLW}, s{sM0W}"); a("s_add_u32 m0, m0, 1024"); a.nop(1); ld(vW1, sW, sKW)
        a("s_add_u32 m0, m0, 8192"); a.nop(1); ld(vW1, sW, 53)
        a("s_add_u32 m0, m0, 8192"); a.nop(1); ld(vW1, sW, 54)
        a(f"s_add_u32 m0, s{sSLW}, s{sM0X}"); a("s_add_u32 m0, m0, 2048"); a.nop(1); ld(vX0, sX, 55)
        a("s_add_u32 m0, m0, 1024"); a.nop(1); ld(vX1, sX, 55)
        a(f"s_mul_i32 s52, s{sSLW}, s{sHMUL}"); a(f"s_add_u32 m0, s52, s{sHM}"); a.nop(1); ld(vHo, sX, sKX)
        a(f"s_add_u32 s{sKX}, s{sKX}, 128"); a(f"s_add_u32 s{sKW}, s{sKW}, s{sKWs}")
        if ROT:
            a(f"s_cmp_eq_u32 s{sKX}, 1024"); a(f"s_cselect_b32 s{sKX}, 0, s{sKX}"); a(f"s_cselect_b32 s{sKW}, s{sCB}, s{sKW}")
        a(f"s_add_u32 s{sSLW}, s{sSLW}, {RS}"); a(f"s_cmp_eq_u32 s{sSLW}, {RS*NR}"); a(f"s_cselect_b32 s{sSLW}, 0, s{sSLW}")
    sNON, sEX = 97, 60
    srd(a, sST, pWS, WS_BYTES)
    a("v_mov_b32 v36, 0"); a("v_mov_b32 v37, 0"); a(f"s_mov_b32 s{sEX}, 1"); a(f"s_mov_b32 s{sNON}, 0")
    a(f"v_mov_b32 v38, {PCNT}"); a("v_mov_b32 v39, 0"); a("v_mov_b32 v40, 0"); a("v_mov_b32 v41, 0"); a("v_mov_b32 v42, 0"); a("v_mov_b32 v43, 0")
    a("ds_write_b128 v38, v[40:43]")
    a(f"s_or_b32 s52, s2, s{sH}"); a("s_cmp_lg_u32 s52, 0"); a("s_cbranch_scc1 L_nonon")
    a("s_memrealtime s[60:61]"); a("s_waitcnt lgkmcnt(0)"); a("s_or_b32 s60, s60, 1")
    a("v_mov_b32 v36, s60"); a("v_mov_b32 v37, 0"); a("s_mov_b64 exec, 1")
    a(f"global_store_dword v37, v36, s[{pDBG}:{pDBG+1}] sc1")
    a("s_mov_b64 exec, -1")
    a.lab("L_nonon")
    def pf1(r0):
        a(f"s_lshr_b32 s52, s{sKWs}, 6")
        a("v_lshrrev_b32 v12, 2, v0"); a("v_mul_u32_u24 v12, s52, v12"); a("v_and_b32 v13, 3, v0"); a(f"v_mul_u32_u24 v14, s{sCST}, v13"); a("v_add_u32 v12, v12, v14")
        a(f"s_cmp_eq_u32 s{sTY}, 0"); a("s_cselect_b32 s53, 3, 99"); a("v_cmp_eq_u32 vcc, s53, v13"); a("v_mov_b32 v14, 0x80000000"); a.nop(1); a("v_cndmask_b32 v12, v12, v14, vcc")
        a(f"s_lshl_b32 s55, s{sGR}, 7"); a(f"s_lshl_b32 s53, s{sFS}, 6"); a(f"s_cmp_eq_u32 s{sTY}, 0"); a("s_cselect_b32 s55, s55, s53")
        a("s_lshr_b32 s54, s2, 6"); a("s_lshl_b32 s54, s54, 4")
        a(f"s_add_u32 s53, s{sH}, {r0}"); a("s_lshl_b32 s53, s53, 6"); a("s_add_u32 s53, s53, s54"); a("s_mul_i32 s53, s53, s52"); a("s_add_u32 s53, s53, s55")
        a(f"buffer_load_dword v15, v12, {sr(sW,4)}, s53 offen")
        a("v_mul_u32_u24 v13, 57, v0"); a("v_lshrrev_b32 v13, 10, v13"); a("v_mul_u32_u24 v14, 18, v13"); a("v_sub_u32 v14, v0, v14")
        a("s_lshr_b32 s61, s2, 3"); a("s_and_b32 s61, s61, 7"); a("s_mul_i32 s61, s61, 18"); a(f"s_add_u32 s61, s61, s{sR0}"); a("s_sub_u32 s61, s61, 16")
        a("v_add_u32 v14, s61, v14"); a("v_lshlrev_b32 v14, 10, v14"); a("v_lshl_add_u32 v14, v13, 7, v14")
        a("v_cmp_lt_u32 vcc, 2, v13"); a("v_mov_b32 v13, 0x80000000"); a.nop(1); a("v_cndmask_b32 v14, v14, v13, vcc")
        if r0 == 0:
            a(f"s_mul_i32 s53, s{sH}, 384"); a(f"s_cmp_lt_u32 s{sH}, 3"); a("s_cselect_b32 s53, s53, 0x80000000")
        else:
            a("s_mov_b32 s53, 0x80000000"); a(f"s_cmp_eq_u32 s{sH}, 2"); a("s_cselect_b32 s53, 256, s53"); a(f"s_cmp_eq_u32 s{sH}, 3"); a("s_cselect_b32 s53, 640, s53")
        a(f"buffer_load_dword v15, v14, {sr(sX,4)}, s53 offen")
        a(f"s_add_u32 s53, s{sH}, {r0+4}"); a("s_lshl_b32 s53, s53, 6"); a("s_add_u32 s53, s53, s54"); a("s_mul_i32 s53, s53, s52"); a("s_add_u32 s53, s53, s55")
        if r0: a(f"s_cmp_lt_u32 s{sH}, 2"); a("s_cselect_b32 s53, s53, 0x80000000")
        a(f"buffer_load_dword v15, v12, {sr(sW,4)}, s53 offen")
    if PF1 and PFPOS == 'first': pf1(0)
    stamp(a, 14)
    dma_round()
    stamp(a, 15); dma_round(); stamp(a, 11)
    npf = (3 if PF1 and PFPOS == 'mid' else 0)
    if PF1 and PFPOS == 'mid': pf1(2)
    a(f"s_waitcnt vmcnt({11}+NPFX) lgkmcnt(0)".replace("11+NPFX", str(11+npf))); a("s_barrier")
    stamp(a, 2)
    dma_round()
    a(f"s_cmp_lg_u32 s{sH}, 0"); a("s_cbranch_scc1 L_nost")
    a(f"v_add_u32 v36, {PSX}, v{vL16}"); a("ds_read_b128 v[40:43], v36")
    a(f"s_lshl_b32 s52, s{sJ}, 3"); a(f"s_add_u32 s52, s52, s{sR0}"); a("s_lshl_b32 s52, s52, 4"); a(f"s_add_u32 s52, s52, {STATS_OFF}")
    a("s_waitcnt lgkmcnt(0)"); a("s_mov_b64 exec, 0xff")
    a(f"buffer_store_dwordx4 v[40:43], v{vL16}, {sr(sST,4)}, s52 offen sc1")
    a("s_mov_b64 exec, -1")
    a("v_mov_b32 v37, 0"); a(f"global_load_dword v38, v37, s[{pDBG}:{pDBG+1}]")
    a.lab("L_nost")
    def h0(name):
        a(f"s_cmp_lg_u32 s{sH}, 0"); a(f"s_cbranch_scc1 {name}")
    a(f"s_waitcnt vmcnt({11+npf})"); stamp(a, 16); a("s_barrier"); stamp(a, 24)
    dma_round(); stamp(a, 32)
    a(f"s_waitcnt vmcnt(11)"); stamp(a, 17); a("s_barrier"); stamp(a, 25)
    h0("L_h0b")
    a(f"v_readfirstlane_b32 s{sNON}, v38"); a.nop(2); a(f"s_cmp_lg_u32 s{sNON}, 0"); a("s_cbranch_scc1 L_non_ok")
    a(f"s_mov_b32 s{sT}, {SPIN_MAX}"); a("v_mov_b32 v37, 0")
    a.lab("L_non_poll")
    a(f"global_load_dword v38, v37, s[{pDBG}:{pDBG+1}] sc1"); a("s_waitcnt vmcnt(0)"); a(f"v_readfirstlane_b32 s{sNON}, v38"); a.nop(2)
    a(f"s_cmp_lg_u32 s{sNON}, 0"); a("s_cbranch_scc1 L_non_ok")
    a("s_sleep 2"); a(f"s_sub_u32 s{sT}, s{sT}, 1"); a(f"s_cmp_lg_u32 s{sT}, 0"); a("s_cbranch_scc1 L_non_poll")
    a.lab("L_non_ok")
    a(f"v_mov_b32 v39, s{sNON}")
    a("s_waitcnt vmcnt(0)")
    flag_store(a, 0, sST, 36, 39)
    a(f"v_mov_b32 v36, {NSLOT}"); a("ds_write_b32 v36, v39")
    a.lab("L_h0b")
    dma_round(); stamp(a, 33)
    a("s_waitcnt vmcnt(11)"); stamp(a, 18); a("s_barrier"); stamp(a, 26)
    dma_round(); stamp(a, 34)
    a("s_waitcnt vmcnt(11)"); stamp(a, 19); a("s_barrier"); stamp(a, 27)
    h0("L_h0c")
    a("v_subrev_u32 v36, 18, v0"); a("v_cmp_gt_u32 vcc, 16, v0"); a.nop(2); a("v_cndmask_b32 v36, v36, v0, vcc")
    a(f"s_lshl_b32 s52, s{sRB}, 4"); a("v_add_u32 v36, s52, v36"); a("v_lshlrev_b32 v36, 7, v36"); a(f"v_add_u32 v36, {FLG_OFF}, v36")
    a(f"s_cmp_eq_u32 s{sRB}, 0"); a(f"s_mov_b32 s{sEX}, 0x3ffff"); a(f"s_cselect_b32 s{sEX}, 0xffff, s{sEX}")
    a(f"s_mov_b32 exec_lo, s{sEX}"); a("s_mov_b32 exec_hi, 0")
    a(f"buffer_load_dword v38, v36, {sr(sST,4)}, 0 offen sc1")
    a("s_mov_b64 exec, -1")
    a.lab("L_h0c")
    dma_round(); stamp(a, 35)
    a("s_waitcnt vmcnt(11)"); stamp(a, 20); a("s_barrier"); stamp(a, 28)
    h0("L_h0d")
    a(f"s_mov_b32 exec_lo, s{sEX}"); a("s_mov_b32 exec_hi, 0")
    a(f"v_cmp_eq_u32 vcc, s{sNON}, v38"); a("s_mov_b64 exec, -1"); a.nop(1)
    a(f"s_cmp_eq_u32 vcc_lo, s{sEX}"); a("s_cbranch_scc1 L_p0ok")
    poll(a, 36, sNON, 38, sEX, sST, "p0")
    a.lab("L_p0ok")
    a(f"s_sub_u32 s52, s{sR0}, 16"); a("s_lshl_b32 s52, s52, 4"); a(f"s_add_u32 s52, s52, {STATS_OFF}")
    a(f"v_add_u32 v36, s52, v{vL16}")
    a(f"s_cmp_eq_u32 s{sRB}, 0"); a("s_cselect_b32 s53, 16, 0"); a("v_cmp_gt_u32 vcc, s53, v0"); a("v_mov_b32 v37, 0x80000000"); a.nop(1)
    a("v_cndmask_b32 v37, v36, v37, vcc")
    a(f"buffer_load_dwordx4 {vr(40,4)}, v37, {sr(sST,4)}, 0 offen sc1")
    a(f"buffer_load_dwordx4 {vr(44,4)}, v36, {sr(sST,4)}, 0 offen offset:1024 sc1")
    a("s_mov_b64 exec, 0xffff")
    a(f"buffer_load_dwordx4 {vr(48,4)}, v36, {sr(sST,4)}, 0 offen offset:2048 sc1")
    a("s_mov_b64 exec, -1")
    a.lab("L_h0d")
    dma_round(); stamp(a, 36)
    npf2 = 0
    if PF2:
        a(f"s_cmp_eq_u32 s{sH}, 0")
        a(f"s_cselect_b32 s{sDD}, s{pWO}, s{pW2}"); a(f"s_cselect_b32 s{sDD+1}, s{pWO+1}, s{pW2+1}")
        a(f"s_mov_b32 s53, {F*D*2}"); a(f"s_cselect_b32 s{sDD+2}, {D*D*2}, s53"); a(f"s_mov_b32 s{sDD+3}, 0x20000")
        a(f"s_and_b32 s{sDD+1}, s{sDD+1}, 0xffff")
        a("s_lshr_b32 s53, s2, 3"); a("s_lshl_b32 s54, s53, 14"); a("s_mul_i32 s53, s53, 44032")
        a(f"s_sub_u32 s55, s{sH}, 1"); a("s_lshl_b32 s55, s55, 14"); a("s_add_u32 s53, s53, s55")
        a(f"s_cmp_eq_u32 s{sH}, 0"); a("s_cselect_b32 s53, s54, s53")
        a("v_lshlrev_b32 v12, 7, v0")
        a(f"buffer_load_dword v13, v12, {sr(sDD,4)}, s53 offen"); a("s_add_u32 s53, s53, 8192")
        a(f"buffer_load_dword v14, v12, {sr(sDD,4)}, s53 offen")
        npf2 = 2
    a(f"s_waitcnt vmcnt({11+npf2})"); stamp(a, 21); a("s_barrier"); stamp(a, 29)
    h0("L_h0e")
    a("v_lshlrev_b32 v36, 2, v0"); a(f"v_add_u32 v36, {TAB}, v36")
    for q in range(3):
        if q == 2: a("s_mov_b64 exec, 0xffff")
        for k in range(4): a(f"ds_write_b32 v36, v{40+4*q+k} offset:{q*256 + k*576}")
    a("s_mov_b64 exec, -1")
    a.lab("L_h0e")
    a(f"s_waitcnt vmcnt({npf2}) lgkmcnt(0)"); stamp(a, 22); a("s_barrier")
    a("s_barrier")
    stamp(a, 3)
    a(f"s_cmp_eq_u32 s{sTY}, 0"); a("s_cbranch_scc1 L_e1a"); a("s_barrier"); a.lab("L_e1a")
    vWo, vAo = 10, 11
    a("v_lshrrev_b32 v6, 4, v0"); a("v_lshlrev_b32 v6, 1, v6"); a("v_and_b32 v8, 7, v0"); a("v_xor_b32 v6, v6, v8")
    a("v_lshlrev_b32 v6, 4, v6"); a("v_lshrrev_b32 v8, 3, v0"); a("v_lshl_add_u32 v6, v8, 10, v6")
    a(f"s_lshl_b32 s52, s{sCG}, 7"); a(f"v_add_u32 v{vWo}, s52, v6")
    a(f"v_lshlrev_b32 v{vAo}, 4, v0")
    sWO_, sW2_ = sA, sB
    srd(a, sWO_, pWO, D*D*2); srd(a, sW2_, pW2, F*D*2)
    sSL, sWk = 56, 57
    a(f"s_lshl_b32 s{sSL}, s{sH}, 12"); a(f"s_lshl_b32 s{sWk}, s{sH}, 15")
    def wdma(t0, place, pace=None):
        pace = WPACE if pace is None else pace
        for q in range(4):
            off = (t0 if t0 < 16 else t0 - 16)*32768 + q*8192
            a(f"s_add_u32 m0, s{sSL}, {place*16384 + q*1024}"); a(f"s_add_u32 s53, s{sWk}, {off}")
            a(f"buffer_load_dwordx4 v{vWo}, {sr(sWO_ if t0 < 16 else sW2_,4)}, s53 offen lds")
            if pace and (q & 1): a(f"s_sleep {pace}")
    if NOW2: a("s_branch L_now2")
    order = []
    def iss(kind, i):
        if kind == 'o': wdma(8*i + 4, i)
        else: wdma(8*i, i)
        order.append((kind, i))
    for i in range(min(WAHEAD, 7)): iss('o', i)
    a(f"v_and_b32 v{vI}, 15, v0"); a(f"v_lshrrev_b32 v{vG}, 4, v0")
    a("v_mov_b32 v12, v10")
    p2_addr(a)
    a(f"v_add_u32 v6, s{sSL}, v6")
    for cb in range(4):
        a(f"v_xor_b32 v1, {cb*32}, v7"); a(f"v_add_u32 v{2+cb}, v6, v1")
    vWo = 12
    for i in range(7):
        if i == 4:
            for cb in range(4): a(f"v_add_u32 v{2+cb}, 65536, v{2+cb}")
        newer = len(order) - 1 - order.index(('o', i))
        a(f"s_waitcnt vmcnt({4*newer})")
        w_frag_reads(a, i)
        if not STRICT and i + WAHEAD < 7: iss('o', i + WAHEAD)
        a("s_waitcnt lgkmcnt(0)")
        iss('e', i)
        if STRICT and i + WAHEAD < 7: iss('o', i + WAHEAD)
    iss('e', 7)
    for r in range(WF2+112, WF2+128): a(f"v_mov_b32 v{r}, 0")
    srd(a, sC, pWS, WS_BYTES)
    if MBX:
        a(f"s_lshl_b32 s52, s{sRG}, 3"); a(f"s_add_u32 s52, s52, s{sCG}"); a("s_lshl_b32 s52, s52, 7"); a(f"s_add_u32 s52, s52, {MBX_OFF}"); a("v_lshl_add_u32 v6, v0, 2, s52")
    else:
        a(f"s_lshr_b32 s52, s{sRG}, 1"); a("s_lshl_b32 s52, s52, 4"); a("v_add_u32 v6, s52, v0"); a("v_lshlrev_b32 v6, 7, v6"); a(f"v_add_u32 v6, {FLG_OFF+4}, v6")
    stamp(a, 62)
    a(f"s_cmp_lg_u32 s{sH}, 0"); a("s_cbranch_scc1 L_nef")
    a("s_mov_b64 exec, 0xffff")
    a(f"buffer_load_dword v7, v6, {sr(sC,4)}, 0 offen sc1")
    a("s_mov_b64 exec, -1")
    a("s_waitcnt vmcnt(0)")
    stamp(a, 61)
    a(f"s_mov_b32 s{sT}, {SPIN_MAX}")
    a.lab("L_pa")
    need = "0xffff" if MERGE else "0xff"
    a(f"s_mov_b64 exec, {need}"); a("v_cmp_eq_u32 vcc, s97, v7"); a("s_mov_b64 exec, -1"); a.nop(1)
    a(f"s_cmp_eq_u32 vcc_lo, {need}"); a("s_cbranch_scc1 L_nef")
    a("s_mov_b64 exec, 0xffff")
    a(f"buffer_load_dword v7, v6, {sr(sC,4)}, 0 offen sc1")
    a("s_mov_b64 exec, -1")
    a("s_waitcnt vmcnt(0)")
    a(f"s_sub_u32 s{sT}, s{sT}, 1"); a(f"s_cmp_lg_u32 s{sT}, 0"); a("s_cbranch_scc1 L_pa")
    a.lab("L_nef")
    a("s_waitcnt vmcnt(0)")
    stamp(a, 56)
    a("s_branch L_p2")

def build():
    a = A()
    for l in """; parallel_sum( sliding-window dilated attention , mixer channel MLP ) : out = x + A(LN(x)) + B(LN(LN(x)))
; Kernarg (88 bytes): A_x@0 A_wqkv@8 A_wo@16 B_x@24 B_w1@32 B_b1@40 B_w2@48 B_b2@56 out@64 debug@72 ws@80
; One persistent launch, 256 workgroups (one per CU), 8 waves: 4 compute waves + 4 loader ("helper") waves.
;  phase 0: every workgroup computes the LayerNorm statistics of 8 rows and shares them through the workspace.
;  phase 1: x @ [wqkv | w1] on raw x (LayerNorm folded into the epilogue: row scale, mean * column-sum correction);
;           A-type workgroups (128 rows x 4 heads) finish the windowed attention in registers, M-type workgroups
;           (128 rows x 5-6 x 32 hidden columns) apply bias + tanh-GELU.  Both publish MFMA-ready bf16 fragments.
;  phase 2: 64x64 output tiles, K = 512 + 1376 split over the 8 waves, reduced through LDS, + x + b2.
; Hand-offs use write-through (sc1) stores, vmcnt(0), then a flag word holding a per-launch nonce (from d_debug).""".split("\n"): a(l)
    a(f"; @launch grid=(256,1,1) block=(512,1,1) lds={LDS}")
    a('.amdgcn_target "amdgcn-amd-amdhsa--gfx950"')
    a(".text"); a(f".globl {KN}"); a(".p2align 8"); a(f".type {KN},@function"); a.lab(KN)
    END = "L_end"
    prologue(a, END)
    helper(a)
    a.lab("L_compute")
    compute(a)
    final(a, END)
    a.lab(END); a("s_endpgm")
    a.lab("L_code_end")
    a('.section .rodata,"a"'); a(".p2align 6")
    t = a.text()
    t += f""".amdhsa_kernel {KN}
  .amdhsa_next_free_vgpr 256
  .amdhsa_next_free_sgpr 102
  .amdhsa_accum_offset 256
  .amdhsa_group_segment_fixed_size 0
  .amdhsa_kernarg_size 88
  .amdhsa_user_sgpr_count 2
  .amdhsa_user_sgpr_kernarg_segment_ptr 1
  .amdhsa_system_sgpr_workgroup_id_x 1
.end_amdhsa_kernel
"""
    return t

if __name__ == "__main__":
    out = sys.argv[1] if len(sys.argv) > 1 else "v38.s"
    PROF = len(sys.argv) > 2 and sys.argv[2] == "p"
    for arg in sys.argv[3:]:
        k, v = arg.split("=")
        globals()[k] = {"True": True, "False": False}.get(v, int(v) if v.isdigit() else v)
    open(out, "w").write(build())
```

```python
import sys, math, struct
NAME = "parallel_sum__sliding_local_dilated__mixer_channel_mlp__prompt"
KN = NAME + "_kernel"
def f2u(x): return struct.unpack("<I", struct.pack("<f", x))[0]
def hexf(x): return "0x%08x" % f2u(x)

class A:
    def __init__(s): s.l = []; s.uid = 0
    def __call__(s, t): s.l.append(t)
    def lab(s, n): s.l.append(n + ":")
    def nop(s, n):
        while n > 0:
            k = min(n, 16); s.l.append(f"s_nop {k-1}"); n -= k
    def u(s): s.uid += 1; return s.uid
    def text(s): return "\n".join(s.l) + "\n"

PROF = False
PF1 = False; PF2 = True; PRIO = 0; ASC = 'sc1'; SSC = 'sc1'; PFA = 'sc1'; DEFER = False; NOW2 = False; NOST = False; PFPOS = 'mid'; ROT = True; WIN = 3; HPRIO = 1; ROTM = 40; OSC = ''; LIGHT = False; EARLYF = True; MBX = False; WRD = 1; PSL = 2; SPREAD = 99; MAP = 0; ADDTID = True; HDROP = 3; WPACE = 0; WPACE2 = 0; WAHEAD = 1; STRICT = False; TOUCH = True; MERGE = True; MWIN3 = True; FINE = True; PMAP = True; WFIRST = True
MSK = 151552 + 256 + 12
def stamp(a, i):
    if PROF and not (LIGHT and i not in (1,2,3,4,5,6,8,9,10,12,33,59,50,51,52,56,61,62,22)): a("s_memtime s[90:91]"); a("s_waitcnt lgkmcnt(0)"); a(f"v_writelane_b32 v255, s90, {i}")
def stamp_dyn(a, sreg, base):
    if PROF and not LIGHT:
        a("s_memtime s[90:91]"); a(f"s_add_u32 s89, s{sreg}, {base}"); a("s_mov_b32 m0, s89"); a("s_waitcnt lgkmcnt(0)"); a("v_writelane_b32 v255, s90, m0")
def stamp_rt(a, i):
    if PROF: a("s_memrealtime s[90:91]"); a("s_waitcnt lgkmcnt(0)"); a(f"v_writelane_b32 v255, s90, {i}")

def vr(b, n=1): return f"v{b}" if n == 1 else f"v[{b}:{b+n-1}]"
def sr(b, n=1): return f"s{b}" if n == 1 else f"s[{b}:{b+n-1}]"
def srd(a, d, lo, size):
    a(f"s_mov_b32 s{d}, s{lo}"); a(f"s_and_b32 s{d+1}, s{lo+1}, 0xffff")
    a(f"s_mov_b32 s{d+2}, {size}"); a(f"s_mov_b32 s{d+3}, 0x20000")

S, D, F = 2048, 512, 1376
NSTEP2 = 60
A2_BYTES = 128 * NSTEP2 * 1024
STATS_OFF = 0x800000
FLG_OFF = 0x810000
MBX_OFF = FLG_OFF + 256 * 128
WS_BYTES = MBX_OFF + 256 * 128
NSLOT = 151552
PCNT = 151552 + 256
PSX = 151552 + 64
RS = 43008; NR = 3; WOFF = 18432
TAB = 131072
T_CS = TAB + 2304
DUMMY = TAB + 3072
XB = TAB + 4096
LDS = 163840
BIG = -1e30
C_EXP = 0.25 * math.log2(math.e)
G1 = -2.0 * math.sqrt(2.0 / math.pi) * math.log2(math.e)
G2 = G1 * 0.044715
SPIN_MAX = 1 << 16

pX, pWQKV, pWO, pW1, pB1, pW2, pB2, pOUT, pDBG, pWS = 4, 6, 8, 12, 14, 16, 18, 20, 22, 24
sWV, sRB, sJ, sFS, sNF, sR0, sRG, sCG, sH = 26, 27, 28, 29, 30, 31, 32, 33, 34
sMASK = 35
sTY, sGR = 62, 63
sA, sB, sC, sDD = 36, 40, 44, 48
sT = 52

def MF32(d, a_, b_, c_=None):
    c_ = vr(d, 4) if c_ is None else c_
    return f"v_mfma_f32_16x16x32_bf16 {vr(d,4)}, {vr(a_,4)}, {vr(b_,4)}, {c_}"
def bf16r(a, dst, src):
    a(f"v_cvt_pk_bf16_f32 v{dst}, v{src}, v{src}"); a(f"v_and_b32 v{dst}, s{sMASK}, v{dst}")
def xlane(a, op, xs, ts):
    for sw in ("v_permlane16_swap_b32", "v_permlane32_swap_b32"):
        for x, t in zip(xs, ts): a(f"v_mov_b32 v{t}, v{x}")
        a.nop(max(0, 2 - (len(xs) - 1)))
        for x, t in zip(xs, ts): a(f"{sw} v{x}, v{t}")
        a.nop(max(0, 2 - (len(xs) - 1)))
        for x, t in zip(xs, ts): a(f"{op} v{x}, v{x}, v{t}")
def interleave(a, mf, fill, per=1):
    if SPREAD > 50:
        fi = 0
        for m in mf:
            a(m)
            for _ in range(per):
                if fi < len(fill): a(fill[fi]); fi += 1
        while fi < len(fill): a(fill[fi]); fi += 1
        return
    n = len(mf) - SPREAD
    cheap = [f for f in fill if not f.startswith("ds_")]
    reads = [f for f in fill if f.startswith("ds_")]
    slots = [[] for _ in mf]
    for k, f in enumerate(cheap): slots[min(k // 2, len(mf) - 1)].append(f)
    first = (len(cheap) + 1) // 2
    for k, f in enumerate(reads):
        slots[min(first + (k * (n - first)) // len(reads), len(mf) - 1)].append(f)
    for m, sl in zip(mf, slots):
        a(m)
        for f in sl: a(f)

def poll(a, vOff, sExp, vD, sExec, srdreg, name):
    a(f"s_mov_b32 exec_lo, s{sExec}"); a("s_mov_b32 exec_hi, 0")
    a(f"s_mov_b32 s{sT}, {SPIN_MAX}")
    a.lab(f"L_poll_{name}")
    a(f"buffer_load_dword v{vD}, v{vOff}, {sr(srdreg,4)}, 0 offen sc1")
    a("s_waitcnt vmcnt(0)")
    a(f"v_cmp_eq_u32 vcc, s{sExp}, v{vD}")
    a.nop(2)
    a(f"s_cmp_eq_u32 vcc_lo, s{sExec}")
    a(f"s_cbranch_scc1 L_polld_{name}")
    if PSL: a(f"s_sleep {PSL}")
    a(f"s_sub_u32 s{sT}, s{sT}, 1"); a(f"s_cmp_lg_u32 s{sT}, 0")
    a(f"s_cbranch_scc1 L_poll_{name}")
    a.lab(f"L_polld_{name}")
    a("s_mov_b64 exec, -1")

def flag_store(a, which, srdreg, vT, vN):
    a(f"s_lshl_b32 s{sT}, s{sRB}, 4"); a(f"s_add_u32 s{sT}, s{sT}, s{sJ}"); a(f"s_lshl_b32 s{sT}, s{sT}, 7"); a(f"s_add_u32 s{sT}, s{sT}, {FLG_OFF + 4*which}")
    a(f"v_mov_b32 v{vT}, s{sT}")
    a("s_mov_b64 exec, 1")
    a(f"buffer_store_dword v{vN}, v{vT}, {sr(srdreg,4)}, 0 offen sc1")
    a("s_mov_b64 exec, -1")

def prologue(a, END):
    a("s_cmp_ge_u32 s2, 256"); a(f"s_cbranch_scc1 {END}")
    stamp_rt(a, 0); stamp(a, 1)
    a("s_load_dwordx16 s[4:19], s[0:1], 0")
    a("s_load_dwordx4 s[20:23], s[0:1], 64")
    a("s_load_dwordx2 s[24:25], s[0:1], 80")
    a("s_getpc_b64 s[98:99]")
    a.lab("L_pc")
    a("v_lshrrev_b32 v1, 6, v0"); a("v_and_b32 v0, 63, v0")
    a(f"v_readfirstlane_b32 s{sWV}, v1")
    a("s_and_b32 s52, s2, 7"); a("s_lshr_b32 s53, s2, 3")
    if MAP == 0:
        a(f"s_lshr_b32 s{sRB}, s52, 1"); a(f"s_lshl_b32 s{sRB}, s{sRB}, 2"); a("s_lshr_b32 s54, s53, 3"); a(f"s_add_u32 s{sRB}, s{sRB}, s54")
        a(f"s_bfe_u32 s{sTY}, s53, 0x10002")
        a(f"s_and_b32 s{sGR}, s52, 1"); a(f"s_lshl_b32 s{sGR}, s{sGR}, 2"); a("s_and_b32 s55, s53, 3"); a(f"s_add_u32 s{sGR}, s{sGR}, s55")
    else:
        a(f"s_lshr_b32 s{sRB}, s52, 1"); a(f"s_lshl_b32 s{sRB}, s{sRB}, 2"); a("s_and_b32 s54, s53, 3"); a(f"s_add_u32 s{sRB}, s{sRB}, s54")
        a(f"s_lshr_b32 s{sTY}, s53, 4"); a(f"s_xor_b32 s{sTY}, s{sTY}, 1")
        a(f"s_and_b32 s{sGR}, s52, 1"); a(f"s_lshl_b32 s{sGR}, s{sGR}, 2"); a("s_bfe_u32 s55, s53, 0x20002"); a(f"s_add_u32 s{sGR}, s{sGR}, s55")
        a("s_lshr_b32 s54, s53, 3")
    a(f"s_lshl_b32 s{sJ}, s{sTY}, 3"); a(f"s_add_u32 s{sJ}, s{sJ}, s{sGR}")
    a(f"s_lshl_b32 s{sRG}, s52, 2"); a(f"s_add_u32 s{sRG}, s{sRG}, s54"); a(f"s_and_b32 s{sCG}, s53, 7")
    a(f"s_mul_i32 s{sFS}, s{sGR}, 6"); a(f"s_mul_i32 s54, s{sGR}, 5"); a("s_add_u32 s54, s54, 3")
    a(f"s_cmp_lt_u32 s{sGR}, 3"); a(f"s_cselect_b32 s{sFS}, s{sFS}, s54"); a(f"s_cselect_b32 s{sNF}, 6, 5")
    a(f"s_lshl_b32 s{sR0}, s{sRB}, 7")
    a(f"s_mov_b32 s{sMASK}, 0xffff0000")
    a(f"s_and_b32 s{sH}, s{sWV}, 3")
    a("v_mov_b32 v6, 0"); a("v_mov_b32 v7, 0")
    a(f"s_cmp_lt_u32 s{sWV}, 4"); a("s_cbranch_scc1 L_compute")

def p0_stats(a):
    sX, sST, vL16, vP = sDD, sC, 7, 16
    a(f"v_lshlrev_b32 v{vL16}, 4, v0")
    a(f"s_lshl_b32 s52, s{sJ}, 3"); a(f"s_add_u32 s52, s52, s{sR0}"); a(f"s_lshl_b32 s53, s{sWV}, 1"); a("s_add_u32 s52, s52, s53")
    a("s_lshl_b32 s60, s52, 10"); a("s_lshl_b32 s61, s52, 4")
    a("s_waitcnt lgkmcnt(0)")
    srd(a, sX, pX, S*D*2)
    a(f"buffer_load_dwordx4 {vr(vP,4)}, v{vL16}, {sr(sX,4)}, s60 offen")
    a(f"buffer_load_dwordx4 {vr(vP+4,4)}, v{vL16}, {sr(sX,4)}, s60 offen offset:1024")
    a("s_lshr_b32 s53, s2, 3"); a(f"s_lshl_b32 s54, s{sWV}, 5"); a("s_add_u32 s53, s53, s54")
    a("s_lshl_b32 s53, s53, 10"); a("v_add_u32 v2, s53, v7")
    a("s_mov_b32 s54, L_code_end-L_pc-16"); a("v_min_u32 v2, s54, v2")
    a("global_load_dwordx4 v[248:251], v2, s[98:99]")
    if TOUCH:
        lst = [(pWO, 0), (pW2, 0), (pW2, 1048576), (pB1, 0), (pB2, 0), (pOUT, 0), (pOUT, 1048576), (pWS, 60416), (pWS, 34*61440+60416), (pWS, 68*61440+60416),
               (pWS, 102*61440+60416), (pWS, STATS_OFF + 0x8000), (pDBG, 128)]
        a(f"v_mov_b32 v2, s{pWO}"); a(f"v_mov_b32 v3, s{pWO+1}")
        for k, (p, off) in enumerate(lst):
            a(f"s_add_u32 s52, s{p}, {off}"); a(f"s_addc_u32 s53, s{p+1}, 0")
            a(f"v_writelane_b32 v2, s52, {k}"); a(f"v_writelane_b32 v3, s53, {k}")
        a(f"s_mov_b64 exec, {(1 << len(lst)) - 1}")
        a("global_load_dword v252, v[2:3], off")
        a("s_mov_b64 exec, -1")
    global NPF
    NPF = 2 if TOUCH else 1
    return vP

def p0_finish(a, vP, nwait):
    sST, vL16 = sC, 7
    a(f"s_waitcnt vmcnt({nwait})")
    sA_, qA, sB_, qB = 24, 25, 26, 27
    for r in range(24, 28): a(f"v_mov_b32 v{r}, 0")
    a("v_mov_b32 v28, 0x3f803f80")
    for d in range(4):
        a(f"v_dot2c_f32_bf16 v{sA_}, v{vP+d}, v28"); a(f"v_dot2c_f32_bf16 v{qA}, v{vP+d}, v{vP+d}")
        a(f"v_dot2c_f32_bf16 v{sB_}, v{vP+4+d}, v28"); a(f"v_dot2c_f32_bf16 v{qB}, v{vP+4+d}, v{vP+4+d}")
    a.nop(2)
    for rot in (8, 4, 2, 1):
        for x in (sA_, qA, sB_, qB): a(f"v_add_f32_dpp v{x}, v{x}, v{x} row_ror:{rot} row_mask:0xf bank_mask:0xf")
    xlane(a, "v_add_f32", [sA_, qA, sB_, qB], [28, 29, 30, 31])
    a("v_and_b32 v28, 1, v0"); a("v_cmp_eq_u32 vcc, 1, v28"); a.nop(2)
    sm, sq, t0, t1, t2, t3 = 24, 25, 33, 32, 34, 35
    a(f"v_cndmask_b32 v{sm}, v{sA_}, v{sB_}, vcc"); a(f"v_cndmask_b32 v{sq}, v{qA}, v{qB}, vcc")
    a(f"v_mul_f32 v{sm}, {hexf(1/512)}, v{sm}"); a(f"v_mul_f32 v{sq}, {hexf(1/512)}, v{sq}")
    a(f"v_fma_f32 v{sq}, -v{sm}, v{sm}, v{sq}"); a(f"v_max_f32 v{sq}, 0, v{sq}")
    bf16r(a, t0, sm); bf16r(a, t1, sq)
    a(f"v_add_f32 v{t1}, {hexf(1e-5)}, v{t1}"); bf16r(a, t1, t1)
    a(f"v_sqrt_f32 v{t1}, v{t1}"); a.nop(1); bf16r(a, t1, t1)
    a(f"v_rcp_f32 v{t1}, v{t1}"); a.nop(1)
    a(f"v_mul_f32 v{t2}, v{sq}, v{t1}"); a(f"v_mul_f32 v{t2}, v{t2}, v{t1}"); bf16r(a, t2, t2)
    a(f"v_add_f32 v{t2}, {hexf(1e-5)}, v{t2}"); bf16r(a, t2, t2)
    a(f"v_sqrt_f32 v{t2}, v{t2}"); a.nop(1); bf16r(a, t2, t2)
    a(f"v_rcp_f32 v{t2}, v{t2}"); a.nop(1)
    a(f"v_mul_f32 v{t2}, v{t2}, v{t1}"); a(f"v_mul_f32 v{t0}, v{t0}, v{t1}"); a(f"v_mul_f32 v{t3}, v{sm}, v{t2}")
    a(f"s_lshl_b32 s52, s{sWV}, 5"); a(f"s_add_u32 s52, s52, {PSX}"); a(f"v_add_u32 v28, s52, v{vL16}")
    a("s_mov_b64 exec, 3")
    a(f"ds_write_b128 v28, {vr(32,4)}")
    a("s_mov_b64 exec, -1")
    a("s_waitcnt lgkmcnt(0)")

vI, vG, vAX0, vAX1, vCX = 8, 9, 10, 11, 12
vONE = 244; cS = 232
sBASE, sRND = 56, 57

def lane_common(a):
    a(f"v_and_b32 v{vI}, 15, v0"); a(f"v_lshrrev_b32 v{vG}, 4, v0")
    a(f"v_lshrrev_b32 v2, 1, v{vI}"); a(f"v_xor_b32 v2, v2, v{vG}"); a("v_lshlrev_b32 v2, 4, v2")
    a(f"v_lshl_add_u32 v{vAX0}, v{vI}, 7, v2")
    a(f"v_lshrrev_b32 v2, 2, v{vI}"); a(f"v_lshl_add_u32 v2, v{vG}, 3, v2"); a("v_lshlrev_b32 v2, 7, v2")
    a(f"v_and_b32 v3, 3, v{vI}"); a("v_lshl_add_u32 v2, v3, 3, v2"); a(f"v_add_u32 v2, {WOFF}, v2")
    a(f"v_bfe_u32 v3, v{vI}, 3, 1"); a(f"v_and_b32 v1, 1, v{vG}"); a("v_lshl_add_u32 v3, v1, 1, v3"); a("v_lshlrev_b32 v3, 5, v3")
    for i in range(4): a(f"v_mov_b32 v{vONE+i}, 0x3f803f80")

def adv_base():
    return [f"s_add_u32 s{sBASE}, s{sBASE}, {RS}", f"s_cmp_eq_u32 s{sBASE}, {RS*NR}", f"s_cselect_b32 s{sBASE}, 0, s{sBASE}"]

def main_loop(a, tag, mfmas, reads, w0):
    a("s_barrier")
    if w0: stamp(a, 2)
    for o in reads(0, 0): a(o)
    a("s_waitcnt lgkmcnt(0)")
    a.lab(f"L_cloop{tag}")
    interleave(a, mfmas(0), reads(1, 1))
    a("s_waitcnt lgkmcnt(0)"); stamp_dyn(a, sRND, 16); a("s_barrier")
    stamp_dyn(a, sRND, 24)
    interleave(a, mfmas(1), adv_base() + reads(0, 0))
    a(f"s_add_u32 s{sRND}, s{sRND}, 1"); a(f"s_cmp_lt_u32 s{sRND}, 8")
    a("s_waitcnt lgkmcnt(0)")
    a(f"s_cbranch_scc1 L_cloop{tag}")
    stamp(a, 3)
    if PRIO: a(f"s_setprio {PRIO}")
    a("s_waitcnt vmcnt(0)")
    a.nop(8)

def lds_sync(a, addr_expr_sgpr, target, name):
    a(f"v_mov_b32 v2, s{addr_expr_sgpr}"); a("v_mov_b32 v3, 1")
    a("s_mov_b64 exec, 1"); a("ds_add_u32 v2, v3");
    a.lab(f"L_ls_{name}")
    a("ds_read_b32 v3, v2"); a("s_waitcnt lgkmcnt(0)"); a("v_readfirstlane_b32 s59, v3"); a.nop(2)
    a(f"s_cmp_lt_u32 s59, {target}"); a(f"s_cbranch_scc1 L_ls_{name}")
    a("s_mov_b64 exec, -1")

def conv(a, acc, dst, r, m, cs, layout_b, t=4):
    for h in range(2):
        tp = t + 2*h
        if not layout_b:
            a(f"v_pk_mul_f32 {vr(tp,2)}, {vr(cs+2*h,2)}, {vr(m & ~1,2)} op_sel:[0,{m&1}] op_sel_hi:[1,{m&1}]")
            a(f"v_pk_fma_f32 {vr(tp,2)}, {vr(acc+2*h,2)}, {vr(r & ~1,2)}, {vr(tp,2)} op_sel:[0,{r&1},0] op_sel_hi:[1,{r&1},1] neg_lo:[0,0,1] neg_hi:[0,0,1]")
        else:
            a(f"v_pk_mul_f32 {vr(tp,2)}, {vr(m+2*h,2)}, {vr(cs,2)} op_sel:[0,0] op_sel_hi:[1,0]")
            a(f"v_pk_fma_f32 {vr(tp,2)}, {vr(acc+2*h,2)}, {vr(r+2*h,2)}, {vr(tp,2)} neg_lo:[0,0,1] neg_hi:[0,0,1]")
    for h in range(2): a(f"v_cvt_pk_bf16_f32 v{dst+h}, v{t+2*h}, v{t+2*h+1}")

def compute_A(a):
    XA, WA = [32, 68], [104, 116]
    aQ, aK, aV = 128, 160, 196
    vAW, vCW = 13, 14
    sWS_ = sA
    a.lab("L_typeA")
    lane_common(a)
    a(f"v_xor_b32 v{vAX1}, 64, v{vAX0}")
    a(f"s_lshl_b32 s52, s{sWV}, 5"); a("v_xor_b32 v3, s52, v3"); a(f"v_add_u32 v{vAW}, v2, v3")
    for r in range(aQ, cS + 12): a(f"v_mov_b32 v{r}, 0")
    a(f"s_mov_b32 s{sBASE}, 0"); a(f"s_mov_b32 s{sRND}, 0")
    srd(a, sWS_, pWS, A2_BYTES)
    p0_finish(a, 16, NPF)
    bC, bP, bPF = 16, 20, 24
    Mc0, Mc1, Mp0, Mp1 = 28, 29, 30, 31
    tt = 84
    a(f"v_mov_b32 v{tt+3}, {hexf(BIG)}")
    for r in range(4):
        a(f"v_lshl_add_u32 v{tt}, v{vG}, 2, {r}"); a(f"v_sub_u32 v{tt}, v{vI}, v{tt}")
        a(f"v_and_b32 v{tt+1}, 1, v{tt}")
        a(f"v_cmp_eq_u32 vcc, 0, v{tt+1}"); a(f"v_cmp_le_i32 s[52:53], 0, v{tt}")
        hm = "0xffff0000" if (r & 1) else "0xffff"
        a(f"v_mov_b32 v{tt+2}, {hm}"); a.nop(1)
        a("s_and_b64 s[54:55], vcc, s[52:53]"); a("s_andn2_b64 s[58:59], vcc, s[52:53]")
        a(f"v_cndmask_b32 v{bC+r}, v{tt+3}, 0, s[54:55]"); a(f"v_cndmask_b32 v{bP+r}, v{tt+3}, 0, s[58:59]")
        mc, mp = (Mc0, Mp0) if r < 2 else (Mc1, Mp1)
        z = "0" if (r & 1) == 0 else None
        a(f"v_cndmask_b32 v{mc}, {z or 'v%d' % mc}, v{tt+2}, s[54:55]"); a(f"v_cndmask_b32 v{mp}, {z or 'v%d' % mp}, v{tt+2}, s[58:59]")
    a(f"s_cmp_eq_u32 s{sRB}, 0"); a("s_cselect_b64 vcc, -1, 0")
    for r in range(4): a(f"v_cndmask_b32 v{bPF+r}, v{bP+r}, v{tt+3}, vcc")
    def reads(buf, sub):
        o = [f"v_add_u32 v{vCX}, s{sBASE}, v{vAX1 if sub else vAX0}"]
        if sub == 0: o.append(f"v_add_u32 v{vCW}, s{sBASE}, v{vAW}")
        for p in range(3):
            o.append(f"ds_read_b64_tr_b16 {vr(WA[buf]+4*p,2)}, v{vCW} offset:{p*8192+sub*4096}")
            o.append(f"ds_read_b64_tr_b16 {vr(WA[buf]+4*p+2,2)}, v{vCW} offset:{p*8192+sub*4096+512}")
        for t in range(9): o.append(f"ds_read_b128 {vr(XA[buf]+4*t,4)}, v{vCX} offset:{t*2048}")
        return o
    def mfmas(buf):
        X, W = XA[buf], WA[buf]
        mf = []
        for t in range(9):
            mf.append(MF32(aK+4*t, W+4, X+4*t)); mf.append(MF32(aV+4*t, X+4*t, W+8))
            if t >= 1: mf.append(MF32(aQ+4*(t-1), W, X+4*t))
        mf += [MF32(cS, W, vONE), MF32(cS+4, W+4, vONE), MF32(cS+8, vONE, W+8)]
        return mf
    main_loop(a, "A", mfmas, reads, True)
    stamp(a, 4)
    vTA, vTB = 13, 14
    a(f"v_lshlrev_b32 v{vTA}, 2, v{vI}"); a(f"v_add_u32 v{vTA}, {TAB}, v{vTA}")
    a(f"v_lshlrev_b32 v{vTB}, 4, v{vG}"); a(f"v_add_u32 v{vTB}, {TAB}, v{vTB}")
    RA, MA = 32, 42
    RB_, MB_ = 52, 88
    for t in range(9): a(f"ds_read_b32 v{RA+t}, v{vTA} offset:{t*64}")
    for t in range(3): a(f"ds_read_b128 {vr(RB_+4*t,4)}, v{vTB} offset:{t*64}"); a(f"ds_read_b128 {vr(MB_+4*t,4)}, v{vTB} offset:{576+t*64}")
    a("s_waitcnt lgkmcnt(6)")
    for t in range(9): a(f"ds_read_b32 v{MA+t}, v{vTA} offset:{576+t*64}")
    a("s_waitcnt lgkmcnt(3)")
    for t in range(3, 9): a(f"ds_read_b128 {vr(RB_+4*t,4)}, v{vTB} offset:{t*64}"); a(f"ds_read_b128 {vr(MB_+4*t,4)}, v{vTB} offset:{576+t*64}")
    a("s_waitcnt lgkmcnt(12)")
    Kb, Vb, Qb = aK, aV, aQ
    for t in range(9):
        conv(a, aK+4*t, Kb+2*t, RA+t, MA+t, cS+4, False)
        if t >= 1: conv(a, aQ+4*(t-1), Qb+2*(t-1), RA+t, MA+t, cS, False)
    a("s_waitcnt lgkmcnt(0)")
    for t in range(9):
        conv(a, aV+4*t, Vb+2*t, RB_+4*t, MB_+4*t, cS+8, True)
    a(f"s_mov_b32 s54, {hexf(C_EXP)}")
    Sr, Tr, Pr, Or = 88, 144, 178, 214
    for b in range(2):
        U = range(4)
        for u in U:
            gu = 4*b + u; t = gu + 1
            bp = bPF if gu == 0 else bP
            a(f"v_mfma_f32_16x16x16_bf16 {vr(Sr+8*u,4)}, {vr(Kb+2*(t-1),2)}, {vr(Qb+2*gu,2)}, {vr(bp,4)}")
            a(f"v_mfma_f32_16x16x16_bf16 {vr(Sr+8*u+4,4)}, {vr(Kb+2*t,2)}, {vr(Qb+2*gu,2)}, {vr(bC,4)}")
        a.nop(4)
        for u in U:
            Sp, Sc, a0, a1 = Sr+8*u, Sr+8*u+4, Tr+4*u, Tr+4*u+1
            a(f"v_max3_f32 v{a0}, v{Sp}, v{Sp+1}, v{Sc}"); a(f"v_max3_f32 v{a1}, v{Sp+2}, v{Sp+3}, v{Sc+2}")
            a(f"v_max_f32 v{a0}, v{a0}, v{Sc+1}"); a(f"v_max_f32 v{a1}, v{a1}, v{Sc+3}")
            a(f"v_max_f32 v{Tr+4*u+2}, v{a0}, v{a1}")
        xlane(a, "v_max_f32", [Tr+4*u+2 for u in U], [Tr+4*u+3 for u in U])
        for u in U: a(f"v_mul_f32 v{Tr+4*u+2}, s54, v{Tr+4*u+2}")
        for u in U:
            for k in range(2): a(f"v_fma_f32 v{Tr+4*u+k}, v{Tr+4*u+k}, s54, -v{Tr+4*u+2}")
        for u in U:
            for k in range(2): a(f"v_exp_f32 v{Tr+4*u+k}, v{Tr+4*u+k}")
        for u in U:
            for k in range(2): a(f"v_cvt_pk_bf16_f32 v{Tr+4*u+k}, v{Tr+4*u+k}, v{Tr+4*u+k}")
        for u in U:
            P = Pr+4*u; a0, a1 = Tr+4*u, Tr+4*u+1
            a(f"v_and_b32 v{P}, v{a0}, v{Mp0}"); a(f"v_and_b32 v{P+1}, v{a1}, v{Mp1}")
            a(f"v_and_b32 v{P+2}, v{a0}, v{Mc0}"); a(f"v_and_b32 v{P+3}, v{a1}, v{Mc1}")
        a.nop(2)
        for u in U:
            t = 4*b + u + 1
            a(MF32(Sr+8*u, vONE, Pr+4*u, "0")); a(MF32(Sr+8*u+4, Vb+2*(t-1), Pr+4*u, "0"))
        a.nop(4)
        for u in U: a(f"v_rcp_f32 v{Sr+8*u}, v{Sr+8*u}")
        for u in U:
            for k in range(4): a(f"v_mul_f32 v{Sr+8*u+4+k}, v{Sr+8*u+4+k}, v{Sr+8*u}")
        for u in U:
            for k in range(2): a(f"v_cvt_pk_bf16_f32 v{Or+2*(4*b+u)+k}, v{Sr+8*u+4+2*k}, v{Sr+8*u+4+2*k+1}")
    stamp(a, 5)
    a(f"s_lshr_b32 s52, s{sWV}, 1"); a("s_lshl_b32 s52, s52, 13"); a(f"s_add_u32 s52, s52, {XB}")
    a(f"s_and_b32 s53, s{sWV}, 1"); a("s_lshl_b32 s54, s53, 3"); a("s_add_u32 s54, s54, s52")
    a("v_lshlrev_b32 v15, 4, v0"); a("v_add_u32 v2, s54, v15")
    for u in range(8): a(f"ds_write_b64 v2, {vr(Or+2*u,2)} offset:{u*1024}")
    a("s_lshl_b32 s54, s53, 12"); a("s_add_u32 s54, s54, s52")
    a(f"s_lshr_b32 s55, s{sWV}, 1"); a("s_lshl_b32 s55, s55, 2"); a(f"s_add_u32 s55, s55, {PCNT+4}")
    lds_sync(a, 55, 2, "xa")
    a("v_add_u32 v3, s54, v15")
    for u in range(4): a(f"ds_read_b128 {vr(88+4*u,4)}, v3 offset:{u*1024}")
    a(f"s_lshl_b32 s52, s{sRB}, 3"); a("s_lshl_b32 s54, s53, 2"); a("s_add_u32 s52, s52, s54"); a(f"s_mul_i32 s52, s52, {NSTEP2}")
    a(f"s_lshl_b32 s54, s{sGR}, 1"); a("s_add_u32 s52, s52, s54"); a(f"s_lshr_b32 s54, s{sWV}, 1"); a("s_add_u32 s52, s52, s54"); a("s_lshl_b32 s52, s52, 10")
    for u in range(4):
        a(f"s_waitcnt lgkmcnt({3-u})")
        a(f"buffer_store_dwordx4 {vr(88+4*u,4)}, v15, {sr(sWS_,4)}, s52 offen {SSC.replace('_',' ')}")
        if u < 3: a(f"s_add_u32 s52, s52, {NSTEP2*1024}")
    stamp(a, 6)
    a("s_branch L_p1done")

def compute_M(a):
    XM, WM = [32, 48], [64, 88]
    aF = 128
    vAW, vCW = 13, 112
    vAWb = 116
    vB1 = 16
    sWS_, sB1_ = sA, sB
    a.lab("L_typeM")
    lane_common(a)
    a(f"s_lshr_b32 s52, s{sWV}, 1"); a("s_lshl_b32 s52, s52, 13"); a("s_add_u32 s52, s52, 2048")
    a(f"v_add_u32 v{vAX0}, s52, v{vAX0}"); a(f"v_xor_b32 v{vAX1}, 64, v{vAX0}")
    for cb in range(4):
        a(f"v_xor_b32 v1, {cb*32}, v3"); a(f"v_add_u32 v{vAWb+cb}, v2, v1")
    for r in range(aF, cS + 12): a(f"v_mov_b32 v{r}, 0")
    a(f"s_mov_b32 s{sBASE}, 0"); a(f"s_mov_b32 s{sRND}, 0")
    srd(a, sWS_, pWS, A2_BYTES); srd(a, sB1_, pB1, F * 2)
    p0_finish(a, 16, NPF)
    a(f"s_and_b32 s52, s{sWV}, 1"); a("s_mul_i32 s52, s52, 3"); a(f"s_add_u32 s52, s52, s{sFS}"); a("s_lshl_b32 s52, s52, 6")
    a(f"v_lshlrev_b32 v2, 3, v{vG}")
    for k in range(6): a(f"buffer_load_dwordx2 {vr(vB1+2*k,2)}, v2, {sr(sB1_,4)}, s52 offen offset:{k*32}")
    for w in range(1, 4):
        a(f"s_cmp_eq_u32 s{sWV}, {w}"); a(f"s_cbranch_scc1 L_mv{w}")
    for w in range(4):
        ch, rh = w & 1, w >> 1
        a.lab(f"L_mv{w}")
        def reads(buf, sub):
            o = [f"v_add_u32 v{vCX}, s{sBASE}, v{vAX1 if sub else vAX0}"]
            cbs = sorted(set((6*ch + k) & 3 for k in range(6)))
            if sub == 0:
                for cb in cbs: o.append(f"v_add_u32 v{vCW+cb}, s{sBASE}, v{vAWb+cb}")
            for k in range(6):
                cg = 6*ch + k; q, cb = cg >> 2, cg & 3
                o.append(f"ds_read_b64_tr_b16 {vr(WM[buf]+4*k,2)}, v{vCW+cb} offset:{q*8192+sub*4096}")
                o.append(f"ds_read_b64_tr_b16 {vr(WM[buf]+4*k+2,2)}, v{vCW+cb} offset:{q*8192+sub*4096+512}")
            for t in range(4): o.append(f"ds_read_b128 {vr(XM[buf]+4*t,4)}, v{vCX} offset:{t*2048}")
            return o
        def mfmas(buf):
            X, W = XM[buf], WM[buf]
            mf = []
            for k in range(6):
                for t in range(4): mf.append(MF32(aF + ((k >> 1)*4 + t)*8 + 4*(k & 1), W+4*k, X+4*t))
            for e in range(3): mf.append(MF32(cS+4*e, W+4*(3*rh+e), vONE))
            return mf
        main_loop(a, f"M{w}", mfmas, reads, w == 0)
        a(f"v_lshlrev_b32 v2, 4, v{vG}"); a(f"v_add_u32 v2, {T_CS}, v2")
        a("s_mov_b32 exec_lo, 0x00010001"); a("s_mov_b32 exec_hi, 0x00010001")
        for e in range(3): a(f"ds_write_b128 v2, {vr(cS+4*e,4)} offset:{(6*ch+3*rh+e)*64}")
        a("s_mov_b64 exec, -1")
        if w < 3: a("s_branch L_mepi")
    a.lab("L_mepi")
    a("s_waitcnt lgkmcnt(0)"); a("s_barrier")
    stamp(a, 4)
    CS, B1, RR_, MR_ = 32, 56, 80, 84
    a(f"s_lshr_b32 s52, s{sWV}, 1"); a("s_lshl_b32 s52, s52, 8")
    a(f"v_lshl_add_u32 v2, v{vI}, 2, s52"); a(f"v_add_u32 v2, {TAB + 64}, v2")
    for t in range(4):
        a(f"ds_read_b32 v{RR_+t}, v2 offset:{1152+t*64}"); a(f"ds_read_b32 v{MR_+t}, v2 offset:{1728+t*64}")
    a(f"s_and_b32 s53, s{sWV}, 1"); a("s_mul_i32 s54, s53, 384"); a(f"v_lshl_add_u32 v3, v{vG}, 4, s54"); a(f"v_add_u32 v3, {T_CS}, v3")
    for k in range(6): a(f"ds_read_b128 {vr(CS+4*k,4)}, v3 offset:{k*64}")
    for k in range(12):
        a(f"v_lshlrev_b32 v{B1+2*k}, 16, v{vB1+k}"); a(f"v_and_b32 v{B1+2*k+1}, s{sMASK}, v{vB1+k}")
    sC2, kC1 = 60, 112
    a(f"s_mov_b32 s{sC2}, {hexf(G2)}"); a(f"s_mov_b32 s{sC2+1}, {hexf(G2)}")
    a(f"v_mov_b32 v{kC1}, {hexf(G1)}"); a(f"v_mov_b32 v{kC1+1}, {hexf(G1)}")
    a("v_lshlrev_b32 v15, 4, v0")
    a(f"s_lshr_b32 s52, s{sWV}, 1"); a("s_lshl_b32 s52, s52, 2"); a(f"s_lshl_b32 s54, s{sRB}, 3"); a("s_add_u32 s52, s52, s54"); a(f"s_mul_i32 s52, s52, {NSTEP2}")
    a("s_mul_i32 s54, s53, 3"); a("s_add_u32 s52, s52, s54"); a(f"s_add_u32 s52, s52, s{sFS}"); a("s_add_u32 s52, s52, 16"); a("s_lshl_b32 s52, s52, 10")
    a(f"s_sub_u32 s55, s{sNF}, s54")
    a("s_waitcnt lgkmcnt(0)")
    for sp in range(3):
        stamp(a, 50+sp)
        if sp == 2:
            a("s_cmp_lt_u32 s55, 3"); a("s_cbranch_scc1 L_gelu_done")
        for t in range(4):
            g = sp*4 + t
            o = 104 + 4*(g & 1)
            r, m = RR_+t, MR_+t
            cs, b1, acc = CS + 8*sp, B1 + 8*sp, aF + 8*g
            T = 88
            for p in range(4):
                u = T + 2*p
                a(f"v_pk_fma_f32 {vr(u,2)}, {vr(cs+2*p,2)}, {vr(m&~1,2)}, {vr(b1+2*p,2)} op_sel:[0,{m&1},0] op_sel_hi:[1,{m&1},1] neg_lo:[0,1,0] neg_hi:[0,1,0]")
            for p in range(4):
                u = T + 2*p
                a(f"v_pk_fma_f32 {vr(u,2)}, {vr(acc+2*p,2)}, {vr(r&~1,2)}, {vr(u,2)} op_sel:[0,{r&1},0] op_sel_hi:[1,{r&1},1]")
            for p in range(4): a(f"v_pk_mul_f32 {vr(T+8+2*p,2)}, {vr(T+2*p,2)}, {vr(T+2*p,2)}")
            for p in range(4): a(f"v_pk_fma_f32 {vr(T+8+2*p,2)}, {vr(T+8+2*p,2)}, {sr(sC2,2)}, {vr(kC1,2)}")
            for p in range(4): a(f"v_pk_mul_f32 {vr(T+8+2*p,2)}, {vr(T+8+2*p,2)}, {vr(T+2*p,2)}")
            for p in range(8): a(f"v_exp_f32 v{T+8+p}, v{T+8+p}")
            for p in range(4): a(f"v_pk_add_f32 {vr(T+8+2*p,2)}, {vr(T+8+2*p,2)}, 1.0 op_sel_hi:[1,0]")
            for p in range(8): a(f"v_rcp_f32 v{T+8+p}, v{T+8+p}")
            for p in range(4): a(f"v_pk_mul_f32 {vr(T+8+2*p,2)}, {vr(T+8+2*p,2)}, {vr(T+2*p,2)}")
            if DEFER: o = acc
            for p in range(4): a(f"v_cvt_pk_bf16_f32 v{o+p}, v{T+8+2*p}, v{T+8+2*p+1}")
            if not DEFER and not NOST:
                a(f"s_add_u32 s53, s52, {(t*NSTEP2+sp)*1024}")
                a(f"buffer_store_dwordx4 {vr(o,4)}, v15, {sr(sWS_,4)}, s53 offen {SSC.replace('_',' ')}")
        if DEFER and sp == 1:
            pass
    if DEFER:
        for t in range(4):
            a(f"s_add_u32 s53, s52, {(t*NSTEP2+2)*1024}")
            a(f"buffer_store_dwordx4 {vr(aF+8*(8+t),4)}, v15, {sr(sWS_,4)}, s53 offen {SSC.replace('_',' ')}")
    a.lab("L_gelu_done")
    if DEFER:
        for sp in range(2):
            for t in range(4):
                a(f"s_add_u32 s53, s52, {(t*NSTEP2+sp)*1024}")
                a(f"buffer_store_dwordx4 {vr(aF+8*(sp*4+t),4)}, v15, {sr(sWS_,4)}, s53 offen {SSC.replace('_',' ')}")
    stamp(a, 6)

def compute(a):
    p0_stats(a)
    a(f"s_cmp_eq_u32 s{sTY}, 1"); a("s_cbranch_scc1 L_typeM")
    compute_A(a)
    compute_M(a)
    a.lab("L_p1done")
    a("s_waitcnt vmcnt(0)"); stamp(a, 33)
    srd(a, sB, pWS, WS_BYTES)
    a(f"v_mov_b32 v2, {PCNT}"); a("v_mov_b32 v3, 1"); a(f"v_mov_b32 v4, {NSLOT}")
    a("s_mov_b64 exec, 1")
    a("ds_add_rtn_u32 v3, v2, v3"); a("ds_read_b32 v5, v4")
    a("s_waitcnt lgkmcnt(0)")
    a("s_mov_b64 exec, -1")
    a("v_readfirstlane_b32 s52, v3"); a.nop(2); a("s_cmp_lg_u32 s52, 3"); a("s_cbranch_scc1 L_nopub")
    if MBX:
        a("v_readfirstlane_b32 s53, v5"); a(f"s_lshl_b32 s52, s{sRB}, 4"); a("v_add_u32 v2, s52, v0"); a("v_lshlrev_b32 v2, 7, v2")
        a(f"s_lshl_b32 s52, s{sJ}, 2"); a(f"s_add_u32 s52, s52, {MBX_OFF}"); a("v_add_u32 v2, s52, v2"); a("v_mov_b32 v5, s53")
        a("s_mov_b64 exec, 0xffff")
        a(f"buffer_store_dword v5, v2, {sr(sB,4)}, 0 offen sc1")
        a("s_mov_b64 exec, -1")
    else:
        flag_store(a, 1, sB, 2, 5)
    a.lab("L_nopub")
    p2_addr(a)
    a(f"s_lshl_b32 s52, s{sWV}, 12"); a("v_add_u32 v6, s52, v6")
    for cb in range(4):
        a(f"v_xor_b32 v10, {cb*32}, v7"); a(f"v_add_u32 v{2+cb}, v6, v10")
    p2_main(a)

AF2 = [12, 28, 44]; ACC2 = 60; WF2 = 124
def p2_addr(a):
    a(f"v_lshrrev_b32 v6, 2, v{vI}"); a(f"v_lshl_add_u32 v6, v{vG}, 2, v6")
    a("v_lshrrev_b32 v7, 1, v6"); a("v_and_b32 v7, 3, v7"); a("v_lshlrev_b32 v7, 5, v7")
    a("v_lshlrev_b32 v6, 7, v6"); a(f"v_and_b32 v10, 3, v{vI}"); a("v_lshl_add_u32 v6, v10, 3, v6")
def w_frag_reads(a, i):
    for cb in range(4):
        d = WF2 + 16*i + 4*cb
        a(f"ds_read_b64_tr_b16 {vr(d,2)}, v{2+cb} offset:{(i % 4)*16384}"); a(f"ds_read_b64_tr_b16 {vr(d+2,2)}, v{2+cb} offset:{(i % 4)*16384+2048}")

OFFS = [0, 3, 1, 4, 2, 5]
def fs_of(a, dst, wreg):
    a(f"s_mul_i32 s{dst}, s{wreg}, 6"); a(f"s_mul_i32 s53, s{wreg}, 5"); a("s_add_u32 s53, s53, 3"); a(f"s_cmp_lt_u32 s{wreg}, 3"); a(f"s_cselect_b32 s{dst}, s{dst}, s53")
def p2_main(a):
    a.lab("L_p2")
    vAo, sA2_, sAk, sOff = 1, sC, 56, 58
    srd(a, sA2_, pWS, WS_BYTES)
    a(f"v_lshlrev_b32 v{vAo}, 4, v0")
    a(f"s_lshl_b32 s{sAk}, s{sRG}, 2"); a(f"s_mul_i32 s{sAk}, s{sAk}, {NSTEP2}"); a(f"s_add_u32 s{sAk}, s{sAk}, s{sWV}"); a(f"s_lshl_b32 s{sAk}, s{sAk}, 10")
    if PMAP:
        fs_of(a, 59, sWV); a(f"s_lshl_b32 s52, s{sRG}, 2"); a(f"s_mul_i32 s52, s52, {NSTEP2}"); a("s_add_u32 s59, s59, s52"); a("s_add_u32 s59, s59, 16"); a("s_lshl_b32 s59, s59, 10")
        a(f"s_add_u32 s57, s59, {5*1024}"); a(f"s_cmp_lt_u32 s{sWV}, 3"); a("s_cselect_b32 s57, s57, 0x80000000")
    else:
        a(f"s_add_u32 s57, s{sAk}, {7*8192}"); a(f"s_cmp_lt_u32 s{sWV}, 3"); a("s_cselect_b32 s57, s57, 0x80000000")
    if HPRIO:
        a(f"s_cmp_lt_u32 s{sWV}, 4"); a("s_cbranch_scc1 L_np"); a(f"s_setprio {HPRIO}"); a.lab("L_np")
    a("s_barrier")
    stamp(a, 8)
    free = list(AF2); buf = {}; issued = []
    def issue(i):
        b0 = free.pop(0); buf[i] = b0; issued.append(i)
        for b in range(4):
            if i == 7: a(f"s_add_u32 s{sOff}, s57, {b*NSTEP2*1024}")
            elif PMAP and i >= 2: a(f"s_add_u32 s{sOff}, s59, {OFFS[i-2]*1024 + b*NSTEP2*1024}")
            else: a(f"s_add_u32 s{sOff}, s{sAk}, {i*8192 + b*NSTEP2*1024}")
            a(f"buffer_load_dwordx4 {vr(b0+4*b,4)}, v{vAo}, {sr(sA2_,4)}, s{sOff} offen {ASC.replace('_',' ') if ASC != 'none' else ''}")
    if FINE:
        sBIT = 64
        a(f"s_lshr_b32 s{sBIT}, s{sWV}, 1"); a(f"s_add_u32 s{sBIT+1}, s{sBIT}, 4")
        for i in range(2, 8):
            if PMAP:
                a(f"s_add_u32 s{sBIT+i}, s{sWV}, 8")
            else:
                a(f"s_add_u32 s52, s{sWV}, {8*i-16}"); a("s_mul_i32 s53, s52, 43"); a("s_lshr_b32 s53, s53, 8")
                a("s_sub_u32 s54, s52, 3"); a("s_mul_i32 s54, s54, 52"); a("s_lshr_b32 s54, s54, 8")
                a("s_cmp_lt_u32 s52, 18"); a("s_cselect_b32 s53, s53, s54"); a("s_min_u32 s53, s53, 7"); a(f"s_add_u32 s{sBIT+i}, s53, 8")
        a(f"s_cmp_lg_u32 s{sWV}, 4"); a("s_cbranch_scc1 L_fnp")
        a(f"s_mov_b32 s61, {SPIN_MAX}")
        a.lab("L_fpl")
        a("s_cmp_eq_u32 s60, 0xffff"); a("s_cbranch_scc1 L_fnp")
        a("s_mov_b64 exec, 0xffff"); a(f"buffer_load_dword v7, v6, {sr(sA2_,4)}, 0 offen sc1"); a("s_waitcnt vmcnt(0)")
        a("v_cmp_eq_u32 vcc, s97, v7"); a("s_mov_b64 exec, -1"); a.nop(1)
        a("s_mov_b32 s60, vcc_lo"); a("v_mov_b32 v11, s60"); a("ds_write_b32 v10, v11")
        a("s_sub_u32 s61, s61, 1"); a("s_cmp_lg_u32 s61, 0"); a("s_cbranch_scc1 L_fpl")
        a.lab("L_fnp")
        a(f"v_mov_b32 v10, {MSK}"); a("s_mov_b32 s72, 0")
        gates = []
        def gate(i):
            a(f"s_bitcmp1_b32 s72, s{sBIT+i}"); a(f"s_cbranch_scc0 L_gw{i}"); a.lab(f"L_gr{i}"); gates.append(i)
        _issue = issue
        def issue(i):
            gate(i); _issue(i)
        def wr():
            a(f"s_cmp_ge_u32 s{sWV}, 4"); a("s_cbranch_scc1 L_wrdy")
            for i in range(8):
                if i == 4:
                    for cb in range(4): a(f"v_add_u32 v{2+cb}, 65536, v{2+cb}")
                w_frag_reads(a, i)
            a("s_waitcnt lgkmcnt(0)")
            a.lab("L_wrdy")
        if WFIRST: wr()
        issue(0); issue(1); nxt = 2
        if not WFIRST: wr()
        if MWIN3: issue(2); nxt = 3
    elif MERGE:
        issue(0); issue(1); nxt = 2
        a(f"s_cmp_ge_u32 s{sWV}, 4"); a("s_cbranch_scc1 L_wrdy")
        for i in range(8):
            if i == 4:
                for cb in range(4): a(f"v_add_u32 v{2+cb}, 65536, v{2+cb}")
            w_frag_reads(a, i)
        a("s_waitcnt lgkmcnt(0)")
        a.lab("L_wrdy")
        if MWIN3: issue(2); nxt = 3
    else:
        a(f"s_cmp_lg_u32 s{sWV}, 4"); a("s_cbranch_scc1 L_nsn")
        a("s_mov_b64 exec, 0xffff"); a(f"buffer_load_dword v7, v6, {sr(sA2_,4)}, 0 offen sc1"); a("s_mov_b64 exec, -1")
        a.lab("L_nsn")
        issue(0); issue(1)
        def wreads():
            a(f"s_cmp_ge_u32 s{sWV}, 4"); a("s_cbranch_scc1 L_wrdy")
            for i in range(8):
                if i == 4:
                    for cb in range(4): a(f"v_add_u32 v{2+cb}, 65536, v{2+cb}")
                w_frag_reads(a, i)
            a("s_waitcnt lgkmcnt(0)")
            a.lab("L_wrdy")
        if WRD: wreads()
        a(f"s_cmp_lg_u32 s{sWV}, 4"); a("s_cbranch_scc1 L_g2")
        a("s_waitcnt vmcnt(8)")
        a("s_mov_b32 s60, 0xff00")
        a("s_mov_b32 exec_lo, s60"); a("s_mov_b32 exec_hi, 0"); a("v_cmp_eq_u32 vcc, s97, v7"); a("s_mov_b64 exec, -1"); a.nop(1)
        a("s_cmp_eq_u32 vcc_lo, s60"); a("s_cbranch_scc1 L_g2")
        poll(a, 6, 97, 7, 60, sA2_, "p1m")
        a.lab("L_g2")
        a("s_barrier"); stamp(a, 59)
        issue(2); nxt = 3
        if not WRD: wreads()
    tail_issued = False; tb = None
    for i in range(8):
        newer = len(issued) - 1 - issued.index(i)
        a(f"s_waitcnt vmcnt({min(63, 4*newer + ((3 if ADDTID else 2) if tail_issued else 0))})")
        stamp(a, 40+i)
        if i == 7: a(f"s_cmp_ge_u32 s{sWV}, 3"); a("s_cbranch_scc1 L_s7skip")
        for b in range(4):
            for cb in range(4):
                if ADDTID: a(MF32(ACC2+(cb*4+b)*4, buf[i]+4*b, WF2+16*i+4*cb, "0" if i == 0 else None))
                else: a(MF32(ACC2+(cb*4+b)*4, WF2+16*i+4*cb, buf[i]+4*b, "0" if i == 0 else None))
        if i == HDROP: a("s_setprio 0")
        free.append(buf[i]); free.append(WF2 + 16*i)
        while free and nxt < 8 and nxt < i + 1 + WIN: issue(nxt); nxt += 1
        if nxt == 8 and not tail_issued and free:
            tail_issued = True; tb = free.pop(0); tail_loads(a, tb)
    if FINE:
        a("s_branch L_s7skip")
        for i in gates:
            a.lab(f"L_gw{i}")
            a(f"s_mov_b32 s61, {SPIN_MAX*16}")
            a.lab(f"L_gl{i}")
            a("ds_read_b32 v11, v10"); a("s_waitcnt lgkmcnt(0)"); a("v_readfirstlane_b32 s72, v11"); a.nop(2)
            a(f"s_bitcmp1_b32 s72, s{sBIT+i}"); a(f"s_cbranch_scc1 L_gr{i}")
            a("s_sub_u32 s61, s61, 1"); a("s_cmp_lg_u32 s61, 0"); a(f"s_cbranch_scc1 L_gl{i}")
            a(f"s_branch L_gr{i}")
    a.lab("L_s7skip")
    stamp(a, 9)
    if ADDTID:
        a(f"s_lshl_b32 s52, s{sWV}, 14"); a(f"s_cmp_ge_u32 s{sWV}, 4"); a("s_cselect_b32 s53, 49216, 0"); a("s_sub_u32 s52, s52, s53"); a("s_mov_b32 m0, s52")
        a.nop(6)
        a(f"s_cmp_ge_u32 s{sWV}, 4"); a("s_cbranch_scc1 L_wrhi")
        for k in range(64): a(f"ds_write_addtid_b32 v{ACC2+k} offset:{k*256}")
        a("s_branch L_wrd")
        a.lab("L_wrhi")
        for k in range(64): a(f"ds_write_addtid_b32 v{ACC2+k} offset:{49216 + k*256}")
        a.lab("L_wrd")
    else:
        a.nop(8)
        a(f"s_mul_i32 s52, s{sWV}, 17408"); a(f"v_mul_u32_u24 v6, 272, v{vI}"); a(f"v_lshl_add_u32 v6, v{vG}, 4, v6"); a("v_add_u32 v6, s52, v6")
        for cb in range(4):
            for b in range(4):
                a(f"ds_write_b128 v6, {vr(ACC2+(cb*4+b)*4,4)} offset:{b*16*272 + cb*64}")
    move_tail(a, tb)
    a("s_waitcnt lgkmcnt(0)")

TB = 12
vXO, vRow, vCol, vXD, vB2 = TB, TB+1, TB+2, TB+8, TB+12
def tail_loads(a, tb):
    sXs, sB2_ = sB, sDD
    srd(a, sXs, pX, S*D*2); srd(a, sB2_, pB2, D*2)
    if ADDTID:
        a(f"v_bfe_u32 v{tb+1}, v0, 2, 2"); a(f"v_lshrrev_b32 v{tb+2}, 4, v0"); a(f"v_lshl_add_u32 v{tb+3}, v{tb+1}, 2, v{tb+2}")
        a(f"s_lshr_b32 s52, s{sWV}, 2"); a("s_lshl_b32 s52, s52, 5"); a(f"s_lshl_b32 s53, s{sRG}, 6"); a("s_add_u32 s52, s52, s53")
        a(f"v_add_u32 v{tb+3}, s52, v{tb+3}"); a(f"v_lshlrev_b32 v{tb+3}, 10, v{tb+3}")
        a(f"s_and_b32 s52, s{sWV}, 3"); a("s_lshl_b32 s52, s52, 5"); a(f"s_lshl_b32 s53, s{sCG}, 7"); a("s_add_u32 s52, s52, s53")
        a(f"v_and_b32 v{tb+4}, 3, v0"); a(f"v_lshl_add_u32 v{tb+4}, v{tb+4}, 3, s52")
        a(f"v_add_u32 v{tb}, v{tb+3}, v{tb+4}")
        a(f"buffer_load_dwordx2 {vr(tb+8,2)}, v{tb}, {sr(sXs,4)}, 0 offen")
        a(f"s_mov_b32 s52, 16384"); a(f"buffer_load_dwordx2 {vr(tb+10,2)}, v{tb}, {sr(sXs,4)}, s52 offen")
        a(f"buffer_load_dwordx2 {vr(tb+12,2)}, v{tb+4}, {sr(sB2_,4)}, 0 offen")
        return
    a(f"s_lshl_b32 s52, s{sWV}, 3"); a(f"v_lshrrev_b32 v{tb+1}, 3, v0"); a(f"v_add_u32 v{tb+1}, s52, v{tb+1}"); a(f"v_and_b32 v{tb+2}, 7, v0")
    a(f"s_lshl_b32 s52, s{sRG}, 6"); a(f"v_add_u32 v{tb+3}, s52, v{tb+1}"); a(f"v_lshlrev_b32 v{tb+3}, 10, v{tb+3}")
    a(f"s_lshl_b32 s53, s{sCG}, 7"); a(f"v_lshlrev_b32 v{tb+4}, 4, v{tb+2}"); a(f"v_add_u32 v{tb+4}, s53, v{tb+4}")
    a(f"v_add_u32 v{tb}, v{tb+3}, v{tb+4}")
    a(f"buffer_load_dwordx4 {vr(tb+8,4)}, v{tb}, {sr(sXs,4)}, 0 offen")
    a(f"buffer_load_dwordx4 {vr(tb+12,4)}, v{tb+4}, {sr(sB2_,4)}, 0 offen")
def move_tail(a, tb):
    if tb == TB: return
    a("s_waitcnt vmcnt(0)")
    for k in list(range(3)) + list(range(8, 16)): a(f"v_mov_b32 v{TB+k}, v{tb+k}")

def final(a, END):
    a.lab("L_final")
    if ADDTID:
        R = 28
        a("s_waitcnt vmcnt(0)")
        for bb in range(2):
            for h in range(2):
                d = R + 4*bb + 2*h
                a(f"v_lshlrev_b32 v{d}, 16, v{vXD+2*bb+h}"); a(f"v_and_b32 v{d+1}, s{sMASK}, v{vXD+2*bb+h}")
                a(f"v_lshlrev_b32 v36, 16, v{vB2+h}"); a(f"v_and_b32 v37, s{sMASK}, v{vB2+h}")
                a(f"v_pk_add_f32 {vr(d,2)}, {vr(d,2)}, {vr(36,2)}")
    a("s_barrier")
    stamp(a, 10)
    srd(a, sA, pOUT, S*D*2)
    if ADDTID:
        a(f"s_and_b32 s52, s{sWV}, 3"); a("s_lshl_b32 s52, s52, 12"); a(f"s_lshr_b32 s53, s{sWV}, 2"); a("s_lshl_b32 s53, s53, 11"); a("s_add_u32 s52, s52, s53")
        a(f"v_lshlrev_b32 v40, 8, v{vCol}"); a(f"v_lshl_add_u32 v40, v{vRow}, 6, v40"); a("v_and_b32 v41, 3, v0"); a("v_lshl_add_u32 v40, v41, 4, v40"); a("v_add_u32 v40, s52, v40")
        P = 128
        for w in range(8):
            if w == 4: a("v_add_u32 v40, 65536, v40")
            o = (w % 4)*16384
            a(f"ds_read_b128 {vr(P+8*w,4)}, v40 offset:{o}"); a(f"ds_read_b128 {vr(P+8*w+4,4)}, v40 offset:{o+1024}")
        R = 28
        for w in range(8):
            a(f"s_waitcnt lgkmcnt({min(15, 2*(7-w))})")
            for d in range(4):
                a(f"v_pk_add_f32 {vr(R+2*d,2)}, {vr(R+2*d,2)}, {vr(P+8*w+2*d,2)}")
        for d in range(4): a(f"v_cvt_pk_bf16_f32 v{76+d}, v{R+2*d}, v{R+2*d+1}")
        a(f"buffer_store_dwordx2 {vr(76,2)}, v{vXO}, {sr(sA,4)}, 0 offen {OSC.replace('_',' ')}")
        a("s_mov_b32 s52, 16384"); a(f"buffer_store_dwordx2 {vr(78,2)}, v{vXO}, {sr(sA,4)}, s52 offen {OSC.replace('_',' ')}")
    else:
        a(f"v_mul_u32_u24 v30, 272, v{vRow}"); a(f"v_lshl_add_u32 v30, v{vCol}, 5, v30")
        P = 128
        for w in range(8):
            if w == 3: a(f"v_add_u32 v31, {3*17408}, v30")
            if w == 6: a(f"v_add_u32 v31, {6*17408}, v30")
            ad = 30 if w < 3 else 31
            o = (w % 3)*17408
            a(f"ds_read_b128 {vr(P+8*w,4)}, v{ad} offset:{o}"); a(f"ds_read_b128 {vr(P+8*w+4,4)}, v{ad} offset:{o+16}")
        R = 64
        a("s_waitcnt vmcnt(0)")
        for d in range(4):
            a(f"v_lshlrev_b32 v{R+2*d}, 16, v{vXD+d}"); a(f"v_and_b32 v{R+2*d+1}, s{sMASK}, v{vXD+d}")
            a(f"v_lshlrev_b32 v72, 16, v{vB2+d}"); a(f"v_and_b32 v73, s{sMASK}, v{vB2+d}")
            a(f"v_pk_add_f32 {vr(R+2*d,2)}, {vr(R+2*d,2)}, {vr(72,2)}")
        for w in range(8):
            a(f"s_waitcnt lgkmcnt({min(15, 2*(7-w))})")
            for d in range(4):
                a(f"v_pk_add_f32 {vr(R+2*d,2)}, {vr(R+2*d,2)}, {vr(P+8*w+2*d,2)}")
        for d in range(4): a(f"v_cvt_pk_bf16_f32 v{76+d}, v{R+2*d}, v{R+2*d+1}")
        a(f"buffer_store_dwordx4 {vr(76,4)}, v{vXO}, {sr(sA,4)}, 0 offen {OSC.replace('_',' ')}")
    if PROF:
        a("s_waitcnt vmcnt(0)")
        stamp(a, 12); stamp_rt(a, 13)
        a(f"s_mov_b32 s96, s{pWS}"); a(f"s_and_b32 s97, s{pWS+1}, 0xffff"); a("s_mov_b32 s98, 0x10000000"); a("s_mov_b32 s99, 0x20000")
        a(f"s_lshl_b32 s94, s2, 3"); a(f"s_add_u32 s94, s94, s{sWV}"); a("s_lshl_b32 s94, s94, 8"); a(f"s_add_u32 s94, s94, {0x4000000}")
        a("v_lshlrev_b32 v250, 2, v0")
        a("buffer_store_dword v255, v250, s[96:99], s94 offen")
        a("s_waitcnt vmcnt(0)")

def helper(a):
    a.lab("L_helper")
    sX, sW, sST, sDB = sA, sB, sC, sDD
    sSLW, sKX, sKW, sKWs, sCST, sM0X, sM0W, sHM, sHMUL = 56, 57, 58, 59, 92, 93, 94, 95, 96
    vX0, vX1, vW0, vW1, vHo, vL16 = 3, 4, 8, 9, 5, 7
    a("v_lshrrev_b32 v1, 3, v0"); a("v_and_b32 v2, 7, v0"); a("v_lshrrev_b32 v6, 4, v0")
    a("v_xor_b32 v10, v2, v6"); a("v_lshlrev_b32 v10, 4, v10")
    a(f"s_lshl_b32 s52, s{sH}, 5"); a(f"s_add_u32 s52, s52, s{sR0}")
    a(f"v_add_u32 v{vX0}, s52, v1"); a(f"v_lshl_add_u32 v{vX0}, v{vX0}, 10, v10")
    a(f"v_xor_b32 v{vX1}, 64, v{vX0}"); a(f"v_add_u32 v{vX1}, 8192, v{vX1}")
    a(f"s_lshl_b32 s52, s{sH}, 3"); a(f"s_add_u32 s52, s52, s{sR0}"); a("s_sub_u32 s52, s52, 16")
    a(f"v_add_u32 v{vHo}, s52, v1"); a(f"v_lshl_add_u32 v{vHo}, v{vHo}, 10, v10")
    a(f"s_and_b32 s52, s{sH}, 1"); a("s_lshl_b32 s52, s52, 6"); a(f"v_xor_b32 v{vHo}, s52, v{vHo}")
    a(f"s_lshr_b32 s52, s{sH}, 1"); a(f"s_or_b32 s52, s52, s{sTY}")
    a("s_cmp_eq_u32 s52, 0"); a(f"s_cselect_b32 s{sHMUL}, 1, 0"); a(f"s_lshl_b32 s{sHM}, s{sH}, 10");
    a("s_cmp_eq_u32 s52, 0"); a(f"s_cselect_b32 s{sHM}, s{sHM}, {DUMMY}")
    a(f"s_cselect_b32 s53, 0, 0x80000000"); a(f"s_cmp_eq_u32 s{sRB}, 0"); a("s_cselect_b32 s53, 0x80000000, s53")
    a(f"v_or_b32 v{vHo}, s53, v{vHo}")
    a(f"s_cmp_eq_u32 s{sTY}, 0"); a("s_mov_b32 s53, 2752"); a("s_cselect_b32 s52, 3072, s53")
    a("s_mov_b32 s54, 128"); a(f"s_cselect_b32 s{sCST}, 1024, s54")
    a(f"s_lshl_b32 s{sKWs}, s52, 6")
    a("v_and_b32 v6, 1, v6"); a("v_lshlrev_b32 v6, 1, v6"); a("v_xor_b32 v6, v6, v2"); a("v_lshlrev_b32 v6, 4, v6")
    a(f"s_lshl_b32 s53, s{sH}, 4")
    a(f"v_add_u32 v{vW0}, s53, v1"); a(f"v_mul_u32_u24 v{vW0}, s52, v{vW0}")
    a("s_lshl_b32 s54, s52, 3"); a(f"v_add_u32 v{vW1}, s54, v{vW0}")
    a(f"v_add_u32 v{vW0}, v{vW0}, v6"); a("v_xor_b32 v6, 64, v6"); a(f"v_add_u32 v{vW1}, v{vW1}, v6")
    a(f"s_lshl_b32 s53, s{sGR}, 7"); a(f"s_lshl_b32 s54, s{sFS}, 6"); a(f"s_cmp_eq_u32 s{sTY}, 0"); a(f"s_cselect_b32 s{sKW}, s53, s54")
    a(f"s_lshl_b32 s{sM0X}, s{sH}, 12"); a(f"s_add_u32 s{sM0X}, s{sM0X}, 2048")
    a(f"s_lshl_b32 s{sM0W}, s{sH}, 11"); a(f"s_add_u32 s{sM0W}, s{sM0W}, {WOFF}")
    a(f"v_lshlrev_b32 v{vL16}, 4, v0")
    a(f"s_mov_b32 s{sSLW}, 0"); a(f"s_mov_b32 s{sKX}, 0")
    sROT, sCB = 100, 101
    if ROT:
        if ROTM == 8:
            a("s_lshr_b32 s52, s2, 6"); a("s_lshl_b32 s52, s52, 1"); a("s_lshr_b32 s53, s2, 3"); a("s_add_u32 s52, s52, s53"); a(f"s_and_b32 s{sROT}, s52, 7")
        elif ROTM == 4:
            a("s_lshr_b32 s52, s2, 6"); a("s_lshr_b32 s53, s2, 3"); a("s_add_u32 s52, s52, s53"); a("s_and_b32 s52, s52, 3"); a(f"s_lshl_b32 s{sROT}, s52, 1")
        elif ROTM == 2:
            a("s_lshr_b32 s52, s2, 6"); a("s_lshr_b32 s53, s2, 3"); a("s_add_u32 s52, s52, s53"); a("s_and_b32 s52, s52, 1"); a(f"s_lshl_b32 s{sROT}, s52, 2")
        elif ROTM == 40:
            a(f"s_and_b32 s52, s{sRB}, 3"); a(f"s_lshl_b32 s{sROT}, s52, 1")
        a(f"s_mov_b32 s{sCB}, s{sKW}")
        a(f"s_lshl_b32 s{sKX}, s{sROT}, 7"); a(f"s_mul_i32 s52, s{sROT}, s{sKWs}"); a(f"s_add_u32 s{sKW}, s{sCB}, s52")
    a("s_waitcnt lgkmcnt(0)")
    srd(a, sX, pX, S*D*2)
    a(f"s_cmp_eq_u32 s{sTY}, 0")
    a(f"s_cselect_b32 s{sW}, s{pWQKV}, s{pW1}"); a(f"s_cselect_b32 s{sW+1}, s{pWQKV+1}, s{pW1+1}")
    a(f"s_mov_b32 s52, {D*F*2}"); a(f"s_cselect_b32 s{sW+2}, {D*3*D*2}, s52")
    a(f"s_and_b32 s{sW+1}, s{sW+1}, 0xffff"); a(f"s_mov_b32 s{sW+3}, 0x20000")
    def dma_round():
        def ld(v, srdr, so): a(f"buffer_load_dwordx4 v{v}, {sr(srdr,4)}, s{so} offen lds")
        a(f"s_add_u32 m0, s{sSLW}, s{sM0W}"); a(f"s_add_u32 s53, s{sKW}, s{sCST}"); ld(vW0, sW, sKW)
        a("s_add_u32 m0, m0, 8192"); a(f"s_add_u32 s54, s53, s{sCST}"); ld(vW0, sW, 53)
        a("s_add_u32 m0, m0, 8192"); a.nop(1); ld(vW0, sW, 54)
        a(f"s_add_u32 m0, s{sSLW}, s{sM0X}"); a(f"s_add_u32 s55, s{sKX}, 16384"); ld(vX0, sX, sKX)
        a("s_add_u32 m0, m0, 1024"); a.nop(1); ld(vX1, sX, sKX)
        a(f"s_add_u32 m0, s{sSLW}, s{sM0W}"); a("s_add_u32 m0, m0, 1024"); a.nop(1); ld(vW1, sW, sKW)
        a("s_add_u32 m0, m0, 8192"); a.nop(1); ld(vW1, sW, 53)
        a("s_add_u32 m0, m0, 8192"); a.nop(1); ld(vW1, sW, 54)
        a(f"s_add_u32 m0, s{sSLW}, s{sM0X}"); a("s_add_u32 m0, m0, 2048"); a.nop(1); ld(vX0, sX, 55)
        a("s_add_u32 m0, m0, 1024"); a.nop(1); ld(vX1, sX, 55)
        a(f"s_mul_i32 s52, s{sSLW}, s{sHMUL}"); a(f"s_add_u32 m0, s52, s{sHM}"); a.nop(1); ld(vHo, sX, sKX)
        a(f"s_add_u32 s{sKX}, s{sKX}, 128"); a(f"s_add_u32 s{sKW}, s{sKW}, s{sKWs}")
        if ROT:
            a(f"s_cmp_eq_u32 s{sKX}, 1024"); a(f"s_cselect_b32 s{sKX}, 0, s{sKX}"); a(f"s_cselect_b32 s{sKW}, s{sCB}, s{sKW}")
        a(f"s_add_u32 s{sSLW}, s{sSLW}, {RS}"); a(f"s_cmp_eq_u32 s{sSLW}, {RS*NR}"); a(f"s_cselect_b32 s{sSLW}, 0, s{sSLW}")
    sNON, sEX = 97, 60
    srd(a, sST, pWS, WS_BYTES)
    a("v_mov_b32 v36, 0"); a("v_mov_b32 v37, 0"); a(f"s_mov_b32 s{sEX}, 1"); a(f"s_mov_b32 s{sNON}, 0")
    a(f"v_mov_b32 v38, {PCNT}"); a("v_mov_b32 v39, 0"); a("v_mov_b32 v40, 0"); a("v_mov_b32 v41, 0"); a("v_mov_b32 v42, 0"); a("v_mov_b32 v43, 0")
    a("ds_write_b128 v38, v[40:43]")
    a(f"s_or_b32 s52, s2, s{sH}"); a("s_cmp_lg_u32 s52, 0"); a("s_cbranch_scc1 L_nonon")
    a("s_memrealtime s[60:61]"); a("s_waitcnt lgkmcnt(0)"); a("s_or_b32 s60, s60, 1")
    a("v_mov_b32 v36, s60"); a("v_mov_b32 v37, 0"); a("s_mov_b64 exec, 1")
    a(f"global_store_dword v37, v36, s[{pDBG}:{pDBG+1}] sc1")
    a("s_mov_b64 exec, -1")
    a.lab("L_nonon")
    def pf1(r0):
        a(f"s_lshr_b32 s52, s{sKWs}, 6")
        a("v_lshrrev_b32 v12, 2, v0"); a("v_mul_u32_u24 v12, s52, v12"); a("v_and_b32 v13, 3, v0"); a(f"v_mul_u32_u24 v14, s{sCST}, v13"); a("v_add_u32 v12, v12, v14")
        a(f"s_cmp_eq_u32 s{sTY}, 0"); a("s_cselect_b32 s53, 3, 99"); a("v_cmp_eq_u32 vcc, s53, v13"); a("v_mov_b32 v14, 0x80000000"); a.nop(1); a("v_cndmask_b32 v12, v12, v14, vcc")
        a(f"s_lshl_b32 s55, s{sGR}, 7"); a(f"s_lshl_b32 s53, s{sFS}, 6"); a(f"s_cmp_eq_u32 s{sTY}, 0"); a("s_cselect_b32 s55, s55, s53")
        a("s_lshr_b32 s54, s2, 6"); a("s_lshl_b32 s54, s54, 4")
        a(f"s_add_u32 s53, s{sH}, {r0}"); a("s_lshl_b32 s53, s53, 6"); a("s_add_u32 s53, s53, s54"); a("s_mul_i32 s53, s53, s52"); a("s_add_u32 s53, s53, s55")
        a(f"buffer_load_dword v15, v12, {sr(sW,4)}, s53 offen")
        a("v_mul_u32_u24 v13, 57, v0"); a("v_lshrrev_b32 v13, 10, v13"); a("v_mul_u32_u24 v14, 18, v13"); a("v_sub_u32 v14, v0, v14")
        a("s_lshr_b32 s61, s2, 3"); a("s_and_b32 s61, s61, 7"); a("s_mul_i32 s61, s61, 18"); a(f"s_add_u32 s61, s61, s{sR0}"); a("s_sub_u32 s61, s61, 16")
        a("v_add_u32 v14, s61, v14"); a("v_lshlrev_b32 v14, 10, v14"); a("v_lshl_add_u32 v14, v13, 7, v14")
        a("v_cmp_lt_u32 vcc, 2, v13"); a("v_mov_b32 v13, 0x80000000"); a.nop(1); a("v_cndmask_b32 v14, v14, v13, vcc")
        if r0 == 0:
            a(f"s_mul_i32 s53, s{sH}, 384"); a(f"s_cmp_lt_u32 s{sH}, 3"); a("s_cselect_b32 s53, s53, 0x80000000")
        else:
            a("s_mov_b32 s53, 0x80000000"); a(f"s_cmp_eq_u32 s{sH}, 2"); a("s_cselect_b32 s53, 256, s53"); a(f"s_cmp_eq_u32 s{sH}, 3"); a("s_cselect_b32 s53, 640, s53")
        a(f"buffer_load_dword v15, v14, {sr(sX,4)}, s53 offen")
        a(f"s_add_u32 s53, s{sH}, {r0+4}"); a("s_lshl_b32 s53, s53, 6"); a("s_add_u32 s53, s53, s54"); a("s_mul_i32 s53, s53, s52"); a("s_add_u32 s53, s53, s55")
        if r0: a(f"s_cmp_lt_u32 s{sH}, 2"); a("s_cselect_b32 s53, s53, 0x80000000")
        a(f"buffer_load_dword v15, v12, {sr(sW,4)}, s53 offen")
    if PF1 and PFPOS == 'first': pf1(0)
    stamp(a, 14)
    dma_round()
    stamp(a, 15); dma_round(); stamp(a, 11)
    npf = (3 if PF1 and PFPOS == 'mid' else 0)
    if PF1 and PFPOS == 'mid': pf1(2)
    a(f"s_waitcnt vmcnt({11}+NPFX) lgkmcnt(0)".replace("11+NPFX", str(11+npf))); a("s_barrier")
    stamp(a, 2)
    dma_round()
    a(f"s_cmp_lg_u32 s{sH}, 0"); a("s_cbranch_scc1 L_nost")
    a(f"v_add_u32 v36, {PSX}, v{vL16}"); a("ds_read_b128 v[40:43], v36")
    a(f"s_lshl_b32 s52, s{sJ}, 3"); a(f"s_add_u32 s52, s52, s{sR0}"); a("s_lshl_b32 s52, s52, 4"); a(f"s_add_u32 s52, s52, {STATS_OFF}")
    a("s_waitcnt lgkmcnt(0)"); a("s_mov_b64 exec, 0xff")
    a(f"buffer_store_dwordx4 v[40:43], v{vL16}, {sr(sST,4)}, s52 offen sc1")
    a("s_mov_b64 exec, -1")
    a("v_mov_b32 v37, 0"); a(f"global_load_dword v38, v37, s[{pDBG}:{pDBG+1}]")
    a.lab("L_nost")
    def h0(name):
        a(f"s_cmp_lg_u32 s{sH}, 0"); a(f"s_cbranch_scc1 {name}")
    a(f"s_waitcnt vmcnt({11+npf})"); stamp(a, 16); a("s_barrier"); stamp(a, 24)
    dma_round(); stamp(a, 32)
    a(f"s_waitcnt vmcnt(11)"); stamp(a, 17); a("s_barrier"); stamp(a, 25)
    h0("L_h0b")
    a(f"v_readfirstlane_b32 s{sNON}, v38"); a.nop(2); a(f"s_cmp_lg_u32 s{sNON}, 0"); a("s_cbranch_scc1 L_non_ok")
    a(f"s_mov_b32 s{sT}, {SPIN_MAX}"); a("v_mov_b32 v37, 0")
    a.lab("L_non_poll")
    a(f"global_load_dword v38, v37, s[{pDBG}:{pDBG+1}] sc1"); a("s_waitcnt vmcnt(0)"); a(f"v_readfirstlane_b32 s{sNON}, v38"); a.nop(2)
    a(f"s_cmp_lg_u32 s{sNON}, 0"); a("s_cbranch_scc1 L_non_ok")
    a("s_sleep 2"); a(f"s_sub_u32 s{sT}, s{sT}, 1"); a(f"s_cmp_lg_u32 s{sT}, 0"); a("s_cbranch_scc1 L_non_poll")
    a.lab("L_non_ok")
    a(f"v_mov_b32 v39, s{sNON}")
    a("s_waitcnt vmcnt(0)")
    flag_store(a, 0, sST, 36, 39)
    a(f"v_mov_b32 v36, {NSLOT}"); a("ds_write_b32 v36, v39")
    a.lab("L_h0b")
    dma_round(); stamp(a, 33)
    a("s_waitcnt vmcnt(11)"); stamp(a, 18); a("s_barrier"); stamp(a, 26)
    dma_round(); stamp(a, 34)
    a("s_waitcnt vmcnt(11)"); stamp(a, 19); a("s_barrier"); stamp(a, 27)
    h0("L_h0c")
    a("v_subrev_u32 v36, 18, v0"); a("v_cmp_gt_u32 vcc, 16, v0"); a.nop(2); a("v_cndmask_b32 v36, v36, v0, vcc")
    a(f"s_lshl_b32 s52, s{sRB}, 4"); a("v_add_u32 v36, s52, v36"); a("v_lshlrev_b32 v36, 7, v36"); a(f"v_add_u32 v36, {FLG_OFF}, v36")
    a(f"s_cmp_eq_u32 s{sRB}, 0"); a(f"s_mov_b32 s{sEX}, 0x3ffff"); a(f"s_cselect_b32 s{sEX}, 0xffff, s{sEX}")
    a(f"s_mov_b32 exec_lo, s{sEX}"); a("s_mov_b32 exec_hi, 0")
    a(f"buffer_load_dword v38, v36, {sr(sST,4)}, 0 offen sc1")
    a("s_mov_b64 exec, -1")
    a.lab("L_h0c")
    dma_round(); stamp(a, 35)
    a("s_waitcnt vmcnt(11)"); stamp(a, 20); a("s_barrier"); stamp(a, 28)
    h0("L_h0d")
    a(f"s_mov_b32 exec_lo, s{sEX}"); a("s_mov_b32 exec_hi, 0")
    a(f"v_cmp_eq_u32 vcc, s{sNON}, v38"); a("s_mov_b64 exec, -1"); a.nop(1)
    a(f"s_cmp_eq_u32 vcc_lo, s{sEX}"); a("s_cbranch_scc1 L_p0ok")
    poll(a, 36, sNON, 38, sEX, sST, "p0")
    a.lab("L_p0ok")
    a(f"s_sub_u32 s52, s{sR0}, 16"); a("s_lshl_b32 s52, s52, 4"); a(f"s_add_u32 s52, s52, {STATS_OFF}")
    a(f"v_add_u32 v36, s52, v{vL16}")
    a(f"s_cmp_eq_u32 s{sRB}, 0"); a("s_cselect_b32 s53, 16, 0"); a("v_cmp_gt_u32 vcc, s53, v0"); a("v_mov_b32 v37, 0x80000000"); a.nop(1)
    a("v_cndmask_b32 v37, v36, v37, vcc")
    a(f"buffer_load_dwordx4 {vr(40,4)}, v37, {sr(sST,4)}, 0 offen sc1")
    a(f"buffer_load_dwordx4 {vr(44,4)}, v36, {sr(sST,4)}, 0 offen offset:1024 sc1")
    a("s_mov_b64 exec, 0xffff")
    a(f"buffer_load_dwordx4 {vr(48,4)}, v36, {sr(sST,4)}, 0 offen offset:2048 sc1")
    a("s_mov_b64 exec, -1")
    a.lab("L_h0d")
    dma_round(); stamp(a, 36)
    npf2 = 0
    if PF2:
        a(f"s_cmp_eq_u32 s{sH}, 0")
        a(f"s_cselect_b32 s{sDD}, s{pWO}, s{pW2}"); a(f"s_cselect_b32 s{sDD+1}, s{pWO+1}, s{pW2+1}")
        a(f"s_mov_b32 s53, {F*D*2}"); a(f"s_cselect_b32 s{sDD+2}, {D*D*2}, s53"); a(f"s_mov_b32 s{sDD+3}, 0x20000")
        a(f"s_and_b32 s{sDD+1}, s{sDD+1}, 0xffff")
        a("s_lshr_b32 s53, s2, 3"); a("s_lshl_b32 s54, s53, 14"); a("s_mul_i32 s53, s53, 44032")
        a(f"s_sub_u32 s55, s{sH}, 1"); a("s_lshl_b32 s55, s55, 14"); a("s_add_u32 s53, s53, s55")
        a(f"s_cmp_eq_u32 s{sH}, 0"); a("s_cselect_b32 s53, s54, s53")
        a("v_lshlrev_b32 v12, 7, v0")
        a(f"buffer_load_dword v13, v12, {sr(sDD,4)}, s53 offen"); a("s_add_u32 s53, s53, 8192")
        a(f"buffer_load_dword v14, v12, {sr(sDD,4)}, s53 offen")
        npf2 = 2
    a(f"s_waitcnt vmcnt({11+npf2})"); stamp(a, 21); a("s_barrier"); stamp(a, 29)
    h0("L_h0e")
    a("v_lshlrev_b32 v36, 2, v0"); a(f"v_add_u32 v36, {TAB}, v36")
    for q in range(3):
        if q == 2: a("s_mov_b64 exec, 0xffff")
        for k in range(4): a(f"ds_write_b32 v36, v{40+4*q+k} offset:{q*256 + k*576}")
    a("s_mov_b64 exec, -1")
    a.lab("L_h0e")
    a(f"s_waitcnt vmcnt({npf2}) lgkmcnt(0)"); stamp(a, 22); a("s_barrier")
    a("s_barrier")
    stamp(a, 3)
    a(f"s_cmp_eq_u32 s{sTY}, 0"); a("s_cbranch_scc1 L_e1a"); a("s_barrier"); a.lab("L_e1a")
    vWo, vAo = 10, 11
    a("v_lshrrev_b32 v6, 4, v0"); a("v_lshlrev_b32 v6, 1, v6"); a("v_and_b32 v8, 7, v0"); a("v_xor_b32 v6, v6, v8")
    a("v_lshlrev_b32 v6, 4, v6"); a("v_lshrrev_b32 v8, 3, v0"); a("v_lshl_add_u32 v6, v8, 10, v6")
    a(f"s_lshl_b32 s52, s{sCG}, 7"); a(f"v_add_u32 v{vWo}, s52, v6")
    a(f"v_lshlrev_b32 v{vAo}, 4, v0")
    sWO_, sW2_ = sA, sB
    srd(a, sWO_, pWO, D*D*2); srd(a, sW2_, pW2, F*D*2)
    sSL, sWk = 56, 57
    a(f"s_lshl_b32 s{sSL}, s{sH}, 12"); a(f"s_lshl_b32 s{sWk}, s{sH}, 15")
    sWo, sWe, sFo, sFe = 58, 57, 59, 60
    if PMAP:
        a(f"s_add_u32 s{sWo}, s{sWk}, {4*32768}")
        fs_of(a, sFe, sH); a(f"s_lshl_b32 s{sFe}, s{sFe}, 15")
        fs_of(a, sFo, sWV); a(f"s_lshl_b32 s{sFo}, s{sFo}, 15")
        a(f"s_add_u32 s61, s{sFe}, {5*32768}"); a(f"s_cmp_lt_u32 s{sH}, 3"); a("s_cselect_b32 s61, s61, 0x80000000")
    def wdma(own, i):
        for q in range(4):
            if PMAP:
                if i < 2: base, off, sr_ = (sWo if own else sWe), i*8*32768, sWO_
                elif i == 7: base, off, sr_ = 61, 0, sW2_
                else: base, off, sr_ = (sFo if own else sFe), OFFS[i-2]*32768, sW2_
            else:
                t0 = 8*i + (4 if own else 0)
                base, off, sr_ = sWk, (t0 if t0 < 16 else t0 - 16)*32768, (sWO_ if t0 < 16 else sW2_)
            a(f"s_add_u32 m0, s{sSL}, {i*16384 + q*1024}"); a(f"s_add_u32 s53, s{base}, {off + q*8192}")
            a(f"buffer_load_dwordx4 v{vWo}, {sr(sr_,4)}, s53 offen lds")
    if NOW2: a("s_branch L_now2")
    order = []
    def iss(kind, i):
        wdma(kind == 'o', i)
        order.append((kind, i))
    for i in range(min(WAHEAD, 7)): iss('o', i)
    a(f"v_and_b32 v{vI}, 15, v0"); a(f"v_lshrrev_b32 v{vG}, 4, v0")
    a("v_mov_b32 v12, v10")
    p2_addr(a)
    a(f"v_add_u32 v6, s{sSL}, v6")
    for cb in range(4):
        a(f"v_xor_b32 v1, {cb*32}, v7"); a(f"v_add_u32 v{2+cb}, v6, v1")
    vWo = 12
    for i in range(7):
        if i == 4:
            for cb in range(4): a(f"v_add_u32 v{2+cb}, 65536, v{2+cb}")
        newer = len(order) - 1 - order.index(('o', i))
        a(f"s_waitcnt vmcnt({4*newer})")
        w_frag_reads(a, i)
        if not STRICT and i + WAHEAD < 7: iss('o', i + WAHEAD)
        a("s_waitcnt lgkmcnt(0)")
        iss('e', i)
        if STRICT and i + WAHEAD < 7: iss('o', i + WAHEAD)
    iss('e', 7)
    for r in range(WF2+112, WF2+128): a(f"v_mov_b32 v{r}, 0")
    srd(a, sC, pWS, WS_BYTES)
    if MBX:
        a(f"s_lshl_b32 s52, s{sRG}, 3"); a(f"s_add_u32 s52, s52, s{sCG}"); a("s_lshl_b32 s52, s52, 7"); a(f"s_add_u32 s52, s52, {MBX_OFF}"); a("v_lshl_add_u32 v6, v0, 2, s52")
    else:
        a(f"s_lshr_b32 s52, s{sRG}, 1"); a("s_lshl_b32 s52, s52, 4"); a("v_add_u32 v6, s52, v0"); a("v_lshlrev_b32 v6, 7, v6"); a(f"v_add_u32 v6, {FLG_OFF+4}, v6")
    stamp(a, 62)
    a(f"s_cmp_lg_u32 s{sH}, 0"); a("s_cbranch_scc1 L_nef")
    a("s_mov_b64 exec, 0xffff")
    a(f"buffer_load_dword v7, v6, {sr(sC,4)}, 0 offen sc1")
    a("s_mov_b64 exec, -1")
    a("s_waitcnt vmcnt(0)")
    stamp(a, 61)
    if FINE:
        a("s_mov_b64 exec, 0xffff"); a("v_cmp_eq_u32 vcc, s97, v7"); a("s_mov_b64 exec, -1"); a.nop(1)
        a("s_mov_b32 s60, vcc_lo"); a(f"v_mov_b32 v10, {MSK}"); a("v_mov_b32 v11, s60"); a("ds_write_b32 v10, v11"); a("s_waitcnt lgkmcnt(0)")
    else:
        a(f"s_mov_b32 s{sT}, {SPIN_MAX}")
        a.lab("L_pa")
        need = "0xffff" if MERGE else "0xff"
        a(f"s_mov_b64 exec, {need}"); a("v_cmp_eq_u32 vcc, s97, v7"); a("s_mov_b64 exec, -1"); a.nop(1)
        a(f"s_cmp_eq_u32 vcc_lo, {need}"); a("s_cbranch_scc1 L_nef")
        a("s_mov_b64 exec, 0xffff")
        a(f"buffer_load_dword v7, v6, {sr(sC,4)}, 0 offen sc1")
        a("s_mov_b64 exec, -1")
        a("s_waitcnt vmcnt(0)")
        a(f"s_sub_u32 s{sT}, s{sT}, 1"); a(f"s_cmp_lg_u32 s{sT}, 0"); a("s_cbranch_scc1 L_pa")
    a.lab("L_nef")
    a("s_waitcnt vmcnt(0)")
    stamp(a, 56)
    a("s_branch L_p2")

def build():
    a = A()
    for l in """; parallel_sum( sliding-window dilated attention , mixer channel MLP ) : out = x + A(LN(x)) + B(LN(LN(x)))
; Kernarg (88 bytes): A_x@0 A_wqkv@8 A_wo@16 B_x@24 B_w1@32 B_b1@40 B_w2@48 B_b2@56 out@64 debug@72 ws@80
; One persistent launch, 256 workgroups (one per CU), 8 waves: 4 compute waves + 4 loader ("helper") waves.
;  phase 0: every workgroup computes the LayerNorm statistics of 8 rows and shares them through the workspace.
;  phase 1: x @ [wqkv | w1] on raw x (LayerNorm folded into the epilogue: row scale, mean * column-sum correction);
;           A-type workgroups (128 rows x 4 heads) finish the windowed attention in registers, M-type workgroups
;           (128 rows x 5-6 x 32 hidden columns) apply bias + tanh-GELU.  Both publish MFMA-ready bf16 fragments.
;  phase 2: 64x64 output tiles, K = 512 + 1376 split over the 8 waves, reduced through LDS, + x + b2.
; Hand-offs use write-through (sc1) stores, vmcnt(0), then a flag word holding a per-launch nonce (from d_debug).""".split("\n"): a(l)
    a(f"; @launch grid=(256,1,1) block=(512,1,1) lds={LDS}")
    a('.amdgcn_target "amdgcn-amd-amdhsa--gfx950"')
    a(".text"); a(f".globl {KN}"); a(".p2align 8"); a(f".type {KN},@function"); a.lab(KN)
    END = "L_end"
    prologue(a, END)
    helper(a)
    a.lab("L_compute")
    compute(a)
    final(a, END)
    a.lab(END); a("s_endpgm")
    a.lab("L_code_end")
    a('.section .rodata,"a"'); a(".p2align 6")
    t = a.text()
    t += f""".amdhsa_kernel {KN}
  .amdhsa_next_free_vgpr 256
  .amdhsa_next_free_sgpr 102
  .amdhsa_accum_offset 256
  .amdhsa_group_segment_fixed_size 0
  .amdhsa_kernarg_size 88
  .amdhsa_user_sgpr_count 2
  .amdhsa_user_sgpr_kernarg_segment_ptr 1
  .amdhsa_system_sgpr_workgroup_id_x 1
.end_amdhsa_kernel
"""
    return t

if __name__ == "__main__":
    out = sys.argv[1] if len(sys.argv) > 1 else "v43.s"
    PROF = len(sys.argv) > 2 and sys.argv[2] == "p"
    for arg in sys.argv[3:]:
        k, v = arg.split("=")
        globals()[k] = {"True": True, "False": False}.get(v, int(v) if v.isdigit() else v)
    open(out, "w").write(build())
```

```python
import sys, math, struct
NAME = "parallel_sum__sliding_local_dilated__mixer_channel_mlp__prompt"
KN = NAME + "_kernel"
def f2u(x): return struct.unpack("<I", struct.pack("<f", x))[0]
def hexf(x): return "0x%08x" % f2u(x)

class A:
    def __init__(s): s.l = []; s.uid = 0
    def __call__(s, t): s.l.append(t)
    def lab(s, n): s.l.append(n + ":")
    def nop(s, n):
        while n > 0:
            k = min(n, 16); s.l.append(f"s_nop {k-1}"); n -= k
    def u(s): s.uid += 1; return s.uid
    def text(s): return "\n".join(s.l) + "\n"

PROF = False
PF1 = False; PF2 = True; PRIO = 0; ASC = 'sc1'; SSC = 'sc1'; PFA = 'sc1'; DEFER = False; NOW2 = False; NOST = False; PFPOS = 'mid'; ROT = True; WIN = 3; HPRIO = 1; ROTM = 40; OSC = ''; LIGHT = False; EARLYF = True; MBX = False; WRD = 1; PSL = 2; SPREAD = 99; MAP = 0; ADDTID = True; HDROP = 3; WPACE = 0; WPACE2 = 0; WAHEAD = 1; STRICT = False; TOUCH = True; MERGE = True; MWIN3 = True; FINE = True; PMAP = True; WFIRST = True; PF2POS = 4
MSK = 151552 + 256 + 12
def stamp(a, i):
    if PROF and not (LIGHT and i not in (1,2,3,4,5,6,8,9,10,12,33,59,50,51,52,56,61,62,22)): a("s_memtime s[90:91]"); a("s_waitcnt lgkmcnt(0)"); a(f"v_writelane_b32 v255, s90, {i}")
def stamp_dyn(a, sreg, base):
    if PROF and not LIGHT:
        a("s_memtime s[90:91]"); a(f"s_add_u32 s89, s{sreg}, {base}"); a("s_mov_b32 m0, s89"); a("s_waitcnt lgkmcnt(0)"); a("v_writelane_b32 v255, s90, m0")
def stamp_rt(a, i):
    if PROF: a("s_memrealtime s[90:91]"); a("s_waitcnt lgkmcnt(0)"); a(f"v_writelane_b32 v255, s90, {i}")

def vr(b, n=1): return f"v{b}" if n == 1 else f"v[{b}:{b+n-1}]"
def sr(b, n=1): return f"s{b}" if n == 1 else f"s[{b}:{b+n-1}]"
def srd(a, d, lo, size):
    a(f"s_mov_b32 s{d}, s{lo}"); a(f"s_and_b32 s{d+1}, s{lo+1}, 0xffff")
    a(f"s_mov_b32 s{d+2}, {size}"); a(f"s_mov_b32 s{d+3}, 0x20000")

S, D, F = 2048, 512, 1376
NSTEP2 = 60
A2_BYTES = 128 * NSTEP2 * 1024
STATS_OFF = 0x800000
FLG_OFF = 0x810000
MBX_OFF = FLG_OFF + 256 * 128
WS_BYTES = MBX_OFF + 256 * 128
NSLOT = 151552
PCNT = 151552 + 256
PSX = 151552 + 64
RS = 43008; NR = 3; WOFF = 18432
TAB = 131072
T_CS = TAB + 2304
DUMMY = TAB + 3072
XB = TAB + 4096
LDS = 163840
BIG = -1e30
C_EXP = 0.25 * math.log2(math.e)
G1 = -2.0 * math.sqrt(2.0 / math.pi) * math.log2(math.e)
G2 = G1 * 0.044715
SPIN_MAX = 1 << 16

pX, pWQKV, pWO, pW1, pB1, pW2, pB2, pOUT, pDBG, pWS = 4, 6, 8, 12, 14, 16, 18, 20, 22, 24
sWV, sRB, sJ, sFS, sNF, sR0, sRG, sCG, sH = 26, 27, 28, 29, 30, 31, 32, 33, 34
sMASK = 35
sTY, sGR = 62, 63
sA, sB, sC, sDD = 36, 40, 44, 48
sT = 52

def MF32(d, a_, b_, c_=None):
    c_ = vr(d, 4) if c_ is None else c_
    return f"v_mfma_f32_16x16x32_bf16 {vr(d,4)}, {vr(a_,4)}, {vr(b_,4)}, {c_}"
def bf16r(a, dst, src):
    a(f"v_cvt_pk_bf16_f32 v{dst}, v{src}, v{src}"); a(f"v_and_b32 v{dst}, s{sMASK}, v{dst}")
def xlane(a, op, xs, ts):
    for sw in ("v_permlane16_swap_b32", "v_permlane32_swap_b32"):
        for x, t in zip(xs, ts): a(f"v_mov_b32 v{t}, v{x}")
        a.nop(max(0, 2 - (len(xs) - 1)))
        for x, t in zip(xs, ts): a(f"{sw} v{x}, v{t}")
        a.nop(max(0, 2 - (len(xs) - 1)))
        for x, t in zip(xs, ts): a(f"{op} v{x}, v{x}, v{t}")
def interleave(a, mf, fill, per=1):
    if SPREAD > 50:
        fi = 0
        for m in mf:
            a(m)
            for _ in range(per):
                if fi < len(fill): a(fill[fi]); fi += 1
        while fi < len(fill): a(fill[fi]); fi += 1
        return
    n = len(mf) - SPREAD
    cheap = [f for f in fill if not f.startswith("ds_")]
    reads = [f for f in fill if f.startswith("ds_")]
    slots = [[] for _ in mf]
    for k, f in enumerate(cheap): slots[min(k // 2, len(mf) - 1)].append(f)
    first = (len(cheap) + 1) // 2
    for k, f in enumerate(reads):
        slots[min(first + (k * (n - first)) // len(reads), len(mf) - 1)].append(f)
    for m, sl in zip(mf, slots):
        a(m)
        for f in sl: a(f)

def poll(a, vOff, sExp, vD, sExec, srdreg, name):
    a(f"s_mov_b32 exec_lo, s{sExec}"); a("s_mov_b32 exec_hi, 0")
    a(f"s_mov_b32 s{sT}, {SPIN_MAX}")
    a.lab(f"L_poll_{name}")
    a(f"buffer_load_dword v{vD}, v{vOff}, {sr(srdreg,4)}, 0 offen sc1")
    a("s_waitcnt vmcnt(0)")
    a(f"v_cmp_eq_u32 vcc, s{sExp}, v{vD}")
    a.nop(2)
    a(f"s_cmp_eq_u32 vcc_lo, s{sExec}")
    a(f"s_cbranch_scc1 L_polld_{name}")
    if PSL: a(f"s_sleep {PSL}")
    a(f"s_sub_u32 s{sT}, s{sT}, 1"); a(f"s_cmp_lg_u32 s{sT}, 0")
    a(f"s_cbranch_scc1 L_poll_{name}")
    a.lab(f"L_polld_{name}")
    a("s_mov_b64 exec, -1")

def flag_store(a, which, srdreg, vT, vN):
    a(f"s_lshl_b32 s{sT}, s{sRB}, 4"); a(f"s_add_u32 s{sT}, s{sT}, s{sJ}"); a(f"s_lshl_b32 s{sT}, s{sT}, 7"); a(f"s_add_u32 s{sT}, s{sT}, {FLG_OFF + 4*which}")
    a(f"v_mov_b32 v{vT}, s{sT}")
    a("s_mov_b64 exec, 1")
    a(f"buffer_store_dword v{vN}, v{vT}, {sr(srdreg,4)}, 0 offen sc1")
    a("s_mov_b64 exec, -1")

def prologue(a, END):
    a("s_cmp_ge_u32 s2, 256"); a(f"s_cbranch_scc1 {END}")
    stamp_rt(a, 0); stamp(a, 1)
    a("s_load_dwordx16 s[4:19], s[0:1], 0")
    a("s_load_dwordx4 s[20:23], s[0:1], 64")
    a("s_load_dwordx2 s[24:25], s[0:1], 80")
    a("s_getpc_b64 s[98:99]")
    a.lab("L_pc")
    a("v_lshrrev_b32 v1, 6, v0"); a("v_and_b32 v0, 63, v0")
    a(f"v_readfirstlane_b32 s{sWV}, v1")
    a("s_and_b32 s52, s2, 7"); a("s_lshr_b32 s53, s2, 3")
    if MAP == 0:
        a(f"s_lshr_b32 s{sRB}, s52, 1"); a(f"s_lshl_b32 s{sRB}, s{sRB}, 2"); a("s_lshr_b32 s54, s53, 3"); a(f"s_add_u32 s{sRB}, s{sRB}, s54")
        a(f"s_bfe_u32 s{sTY}, s53, 0x10002")
        a(f"s_and_b32 s{sGR}, s52, 1"); a(f"s_lshl_b32 s{sGR}, s{sGR}, 2"); a("s_and_b32 s55, s53, 3"); a(f"s_add_u32 s{sGR}, s{sGR}, s55")
    else:
        a(f"s_lshr_b32 s{sRB}, s52, 1"); a(f"s_lshl_b32 s{sRB}, s{sRB}, 2"); a("s_and_b32 s54, s53, 3"); a(f"s_add_u32 s{sRB}, s{sRB}, s54")
        a(f"s_lshr_b32 s{sTY}, s53, 4"); a(f"s_xor_b32 s{sTY}, s{sTY}, 1")
        a(f"s_and_b32 s{sGR}, s52, 1"); a(f"s_lshl_b32 s{sGR}, s{sGR}, 2"); a("s_bfe_u32 s55, s53, 0x20002"); a(f"s_add_u32 s{sGR}, s{sGR}, s55")
        a("s_lshr_b32 s54, s53, 3")
    a(f"s_lshl_b32 s{sJ}, s{sTY}, 3"); a(f"s_add_u32 s{sJ}, s{sJ}, s{sGR}")
    a(f"s_lshl_b32 s{sRG}, s52, 2"); a(f"s_add_u32 s{sRG}, s{sRG}, s54"); a(f"s_and_b32 s{sCG}, s53, 7")
    a(f"s_mul_i32 s{sFS}, s{sGR}, 6"); a(f"s_mul_i32 s54, s{sGR}, 5"); a("s_add_u32 s54, s54, 3")
    a(f"s_cmp_lt_u32 s{sGR}, 3"); a(f"s_cselect_b32 s{sFS}, s{sFS}, s54"); a(f"s_cselect_b32 s{sNF}, 6, 5")
    a(f"s_lshl_b32 s{sR0}, s{sRB}, 7")
    a(f"s_mov_b32 s{sMASK}, 0xffff0000")
    a(f"s_and_b32 s{sH}, s{sWV}, 3")
    a("v_mov_b32 v6, 0"); a("v_mov_b32 v7, 0")
    a(f"s_cmp_lt_u32 s{sWV}, 4"); a("s_cbranch_scc1 L_compute")

def p0_stats(a):
    sX, sST, vL16, vP = sDD, sC, 7, 16
    a(f"v_lshlrev_b32 v{vL16}, 4, v0")
    a(f"s_lshl_b32 s52, s{sJ}, 3"); a(f"s_add_u32 s52, s52, s{sR0}"); a(f"s_lshl_b32 s53, s{sWV}, 1"); a("s_add_u32 s52, s52, s53")
    a("s_lshl_b32 s60, s52, 10"); a("s_lshl_b32 s61, s52, 4")
    a("s_waitcnt lgkmcnt(0)")
    srd(a, sX, pX, S*D*2)
    a(f"buffer_load_dwordx4 {vr(vP,4)}, v{vL16}, {sr(sX,4)}, s60 offen")
    a(f"buffer_load_dwordx4 {vr(vP+4,4)}, v{vL16}, {sr(sX,4)}, s60 offen offset:1024")
    a("s_lshr_b32 s53, s2, 3"); a(f"s_lshl_b32 s54, s{sWV}, 5"); a("s_add_u32 s53, s53, s54")
    a("s_lshl_b32 s53, s53, 10"); a("v_add_u32 v2, s53, v7")
    a("s_mov_b32 s54, L_code_end-L_pc-16"); a("v_min_u32 v2, s54, v2")
    a("global_load_dwordx4 v[248:251], v2, s[98:99]")
    if TOUCH:
        lst = [(pWO, 0), (pW2, 0), (pW2, 1048576), (pB1, 0), (pB2, 0), (pOUT, 0), (pOUT, 1048576), (pWS, 60416), (pWS, 34*61440+60416), (pWS, 68*61440+60416),
               (pWS, 102*61440+60416), (pWS, STATS_OFF + 0x8000), (pDBG, 128)]
        a(f"v_mov_b32 v2, s{pWO}"); a(f"v_mov_b32 v3, s{pWO+1}")
        for k, (p, off) in enumerate(lst):
            a(f"s_add_u32 s52, s{p}, {off}"); a(f"s_addc_u32 s53, s{p+1}, 0")
            a(f"v_writelane_b32 v2, s52, {k}"); a(f"v_writelane_b32 v3, s53, {k}")
        a(f"s_mov_b64 exec, {(1 << len(lst)) - 1}")
        a("global_load_dword v252, v[2:3], off")
        a("s_mov_b64 exec, -1")
    global NPF
    NPF = 2 if TOUCH else 1
    return vP

def p0_finish(a, vP, nwait):
    sST, vL16 = sC, 7
    a(f"s_waitcnt vmcnt({nwait})")
    sA_, qA, sB_, qB = 24, 25, 26, 27
    for r in range(24, 28): a(f"v_mov_b32 v{r}, 0")
    a("v_mov_b32 v28, 0x3f803f80")
    for d in range(4):
        a(f"v_dot2c_f32_bf16 v{sA_}, v{vP+d}, v28"); a(f"v_dot2c_f32_bf16 v{qA}, v{vP+d}, v{vP+d}")
        a(f"v_dot2c_f32_bf16 v{sB_}, v{vP+4+d}, v28"); a(f"v_dot2c_f32_bf16 v{qB}, v{vP+4+d}, v{vP+4+d}")
    a.nop(2)
    for rot in (8, 4, 2, 1):
        for x in (sA_, qA, sB_, qB): a(f"v_add_f32_dpp v{x}, v{x}, v{x} row_ror:{rot} row_mask:0xf bank_mask:0xf")
    xlane(a, "v_add_f32", [sA_, qA, sB_, qB], [28, 29, 30, 31])
    a("v_and_b32 v28, 1, v0"); a("v_cmp_eq_u32 vcc, 1, v28"); a.nop(2)
    sm, sq, t0, t1, t2, t3 = 24, 25, 33, 32, 34, 35
    a(f"v_cndmask_b32 v{sm}, v{sA_}, v{sB_}, vcc"); a(f"v_cndmask_b32 v{sq}, v{qA}, v{qB}, vcc")
    a(f"v_mul_f32 v{sm}, {hexf(1/512)}, v{sm}"); a(f"v_mul_f32 v{sq}, {hexf(1/512)}, v{sq}")
    a(f"v_fma_f32 v{sq}, -v{sm}, v{sm}, v{sq}"); a(f"v_max_f32 v{sq}, 0, v{sq}")
    bf16r(a, t0, sm); bf16r(a, t1, sq)
    a(f"v_add_f32 v{t1}, {hexf(1e-5)}, v{t1}"); bf16r(a, t1, t1)
    a(f"v_sqrt_f32 v{t1}, v{t1}"); a.nop(1); bf16r(a, t1, t1)
    a(f"v_rcp_f32 v{t1}, v{t1}"); a.nop(1)
    a(f"v_mul_f32 v{t2}, v{sq}, v{t1}"); a(f"v_mul_f32 v{t2}, v{t2}, v{t1}"); bf16r(a, t2, t2)
    a(f"v_add_f32 v{t2}, {hexf(1e-5)}, v{t2}"); bf16r(a, t2, t2)
    a(f"v_sqrt_f32 v{t2}, v{t2}"); a.nop(1); bf16r(a, t2, t2)
    a(f"v_rcp_f32 v{t2}, v{t2}"); a.nop(1)
    a(f"v_mul_f32 v{t2}, v{t2}, v{t1}"); a(f"v_mul_f32 v{t0}, v{t0}, v{t1}"); a(f"v_mul_f32 v{t3}, v{sm}, v{t2}")
    a(f"s_lshl_b32 s52, s{sWV}, 5"); a(f"s_add_u32 s52, s52, {PSX}"); a(f"v_add_u32 v28, s52, v{vL16}")
    a("s_mov_b64 exec, 3")
    a(f"ds_write_b128 v28, {vr(32,4)}")
    a("s_mov_b64 exec, -1")
    a("s_waitcnt lgkmcnt(0)")

vI, vG, vAX0, vAX1, vCX = 8, 9, 10, 11, 12
vONE = 244; cS = 232
sBASE, sRND = 56, 57

def lane_common(a):
    a(f"v_and_b32 v{vI}, 15, v0"); a(f"v_lshrrev_b32 v{vG}, 4, v0")
    a(f"v_lshrrev_b32 v2, 1, v{vI}"); a(f"v_xor_b32 v2, v2, v{vG}"); a("v_lshlrev_b32 v2, 4, v2")
    a(f"v_lshl_add_u32 v{vAX0}, v{vI}, 7, v2")
    a(f"v_lshrrev_b32 v2, 2, v{vI}"); a(f"v_lshl_add_u32 v2, v{vG}, 3, v2"); a("v_lshlrev_b32 v2, 7, v2")
    a(f"v_and_b32 v3, 3, v{vI}"); a("v_lshl_add_u32 v2, v3, 3, v2"); a(f"v_add_u32 v2, {WOFF}, v2")
    a(f"v_bfe_u32 v3, v{vI}, 3, 1"); a(f"v_and_b32 v1, 1, v{vG}"); a("v_lshl_add_u32 v3, v1, 1, v3"); a("v_lshlrev_b32 v3, 5, v3")
    for i in range(4): a(f"v_mov_b32 v{vONE+i}, 0x3f803f80")

def adv_base():
    return [f"s_add_u32 s{sBASE}, s{sBASE}, {RS}", f"s_cmp_eq_u32 s{sBASE}, {RS*NR}", f"s_cselect_b32 s{sBASE}, 0, s{sBASE}"]

def main_loop(a, tag, mfmas, reads, w0):
    a("s_barrier")
    if w0: stamp(a, 2)
    for o in reads(0, 0): a(o)
    a("s_waitcnt lgkmcnt(0)")
    a.lab(f"L_cloop{tag}")
    interleave(a, mfmas(0), reads(1, 1))
    a("s_waitcnt lgkmcnt(0)"); stamp_dyn(a, sRND, 16); a("s_barrier")
    stamp_dyn(a, sRND, 24)
    interleave(a, mfmas(1), adv_base() + reads(0, 0))
    a(f"s_add_u32 s{sRND}, s{sRND}, 1"); a(f"s_cmp_lt_u32 s{sRND}, 8")
    a("s_waitcnt lgkmcnt(0)")
    a(f"s_cbranch_scc1 L_cloop{tag}")
    stamp(a, 3)
    if PRIO: a(f"s_setprio {PRIO}")
    a("s_waitcnt vmcnt(0)")
    a.nop(8)

def lds_sync(a, addr_expr_sgpr, target, name):
    a(f"v_mov_b32 v2, s{addr_expr_sgpr}"); a("v_mov_b32 v3, 1")
    a("s_mov_b64 exec, 1"); a("ds_add_u32 v2, v3");
    a.lab(f"L_ls_{name}")
    a("ds_read_b32 v3, v2"); a("s_waitcnt lgkmcnt(0)"); a("v_readfirstlane_b32 s59, v3"); a.nop(2)
    a(f"s_cmp_lt_u32 s59, {target}"); a(f"s_cbranch_scc1 L_ls_{name}")
    a("s_mov_b64 exec, -1")

def conv(a, acc, dst, r, m, cs, layout_b, t=4):
    for h in range(2):
        tp = t + 2*h
        if not layout_b:
            a(f"v_pk_mul_f32 {vr(tp,2)}, {vr(cs+2*h,2)}, {vr(m & ~1,2)} op_sel:[0,{m&1}] op_sel_hi:[1,{m&1}]")
            a(f"v_pk_fma_f32 {vr(tp,2)}, {vr(acc+2*h,2)}, {vr(r & ~1,2)}, {vr(tp,2)} op_sel:[0,{r&1},0] op_sel_hi:[1,{r&1},1] neg_lo:[0,0,1] neg_hi:[0,0,1]")
        else:
            a(f"v_pk_mul_f32 {vr(tp,2)}, {vr(m+2*h,2)}, {vr(cs,2)} op_sel:[0,0] op_sel_hi:[1,0]")
            a(f"v_pk_fma_f32 {vr(tp,2)}, {vr(acc+2*h,2)}, {vr(r+2*h,2)}, {vr(tp,2)} neg_lo:[0,0,1] neg_hi:[0,0,1]")
    for h in range(2): a(f"v_cvt_pk_bf16_f32 v{dst+h}, v{t+2*h}, v{t+2*h+1}")

def compute_A(a):
    XA, WA = [32, 68], [104, 116]
    aQ, aK, aV = 128, 160, 196
    vAW, vCW = 13, 14
    sWS_ = sA
    a.lab("L_typeA")
    lane_common(a)
    a(f"v_xor_b32 v{vAX1}, 64, v{vAX0}")
    a(f"s_lshl_b32 s52, s{sWV}, 5"); a("v_xor_b32 v3, s52, v3"); a(f"v_add_u32 v{vAW}, v2, v3")
    for r in range(aQ, cS + 12): a(f"v_mov_b32 v{r}, 0")
    a(f"s_mov_b32 s{sBASE}, 0"); a(f"s_mov_b32 s{sRND}, 0")
    srd(a, sWS_, pWS, A2_BYTES)
    p0_finish(a, 16, NPF)
    bC, bP, bPF = 16, 20, 24
    Mc0, Mc1, Mp0, Mp1 = 28, 29, 30, 31
    tt = 84
    a(f"v_mov_b32 v{tt+3}, {hexf(BIG)}")
    for r in range(4):
        a(f"v_lshl_add_u32 v{tt}, v{vG}, 2, {r}"); a(f"v_sub_u32 v{tt}, v{vI}, v{tt}")
        a(f"v_and_b32 v{tt+1}, 1, v{tt}")
        a(f"v_cmp_eq_u32 vcc, 0, v{tt+1}"); a(f"v_cmp_le_i32 s[52:53], 0, v{tt}")
        hm = "0xffff0000" if (r & 1) else "0xffff"
        a(f"v_mov_b32 v{tt+2}, {hm}"); a.nop(1)
        a("s_and_b64 s[54:55], vcc, s[52:53]"); a("s_andn2_b64 s[58:59], vcc, s[52:53]")
        a(f"v_cndmask_b32 v{bC+r}, v{tt+3}, 0, s[54:55]"); a(f"v_cndmask_b32 v{bP+r}, v{tt+3}, 0, s[58:59]")
        mc, mp = (Mc0, Mp0) if r < 2 else (Mc1, Mp1)
        z = "0" if (r & 1) == 0 else None
        a(f"v_cndmask_b32 v{mc}, {z or 'v%d' % mc}, v{tt+2}, s[54:55]"); a(f"v_cndmask_b32 v{mp}, {z or 'v%d' % mp}, v{tt+2}, s[58:59]")
    a(f"s_cmp_eq_u32 s{sRB}, 0"); a("s_cselect_b64 vcc, -1, 0")
    for r in range(4): a(f"v_cndmask_b32 v{bPF+r}, v{bP+r}, v{tt+3}, vcc")
    def reads(buf, sub):
        o = [f"v_add_u32 v{vCX}, s{sBASE}, v{vAX1 if sub else vAX0}"]
        if sub == 0: o.append(f"v_add_u32 v{vCW}, s{sBASE}, v{vAW}")
        for p in range(3):
            o.append(f"ds_read_b64_tr_b16 {vr(WA[buf]+4*p,2)}, v{vCW} offset:{p*8192+sub*4096}")
            o.append(f"ds_read_b64_tr_b16 {vr(WA[buf]+4*p+2,2)}, v{vCW} offset:{p*8192+sub*4096+512}")
        for t in range(9): o.append(f"ds_read_b128 {vr(XA[buf]+4*t,4)}, v{vCX} offset:{t*2048}")
        return o
    def mfmas(buf):
        X, W = XA[buf], WA[buf]
        mf = []
        for t in range(9):
            mf.append(MF32(aK+4*t, W+4, X+4*t)); mf.append(MF32(aV+4*t, X+4*t, W+8))
            if t >= 1: mf.append(MF32(aQ+4*(t-1), W, X+4*t))
        mf += [MF32(cS, W, vONE), MF32(cS+4, W+4, vONE), MF32(cS+8, vONE, W+8)]
        return mf
    main_loop(a, "A", mfmas, reads, True)
    stamp(a, 4)
    vTA, vTB = 13, 14
    a(f"v_lshlrev_b32 v{vTA}, 2, v{vI}"); a(f"v_add_u32 v{vTA}, {TAB}, v{vTA}")
    a(f"v_lshlrev_b32 v{vTB}, 4, v{vG}"); a(f"v_add_u32 v{vTB}, {TAB}, v{vTB}")
    RA, MA = 32, 42
    RB_, MB_ = 52, 88
    for t in range(9): a(f"ds_read_b32 v{RA+t}, v{vTA} offset:{t*64}")
    for t in range(3): a(f"ds_read_b128 {vr(RB_+4*t,4)}, v{vTB} offset:{t*64}"); a(f"ds_read_b128 {vr(MB_+4*t,4)}, v{vTB} offset:{576+t*64}")
    a("s_waitcnt lgkmcnt(6)")
    for t in range(9): a(f"ds_read_b32 v{MA+t}, v{vTA} offset:{576+t*64}")
    a("s_waitcnt lgkmcnt(3)")
    for t in range(3, 9): a(f"ds_read_b128 {vr(RB_+4*t,4)}, v{vTB} offset:{t*64}"); a(f"ds_read_b128 {vr(MB_+4*t,4)}, v{vTB} offset:{576+t*64}")
    a("s_waitcnt lgkmcnt(12)")
    Kb, Vb, Qb = aK, aV, aQ
    for t in range(9):
        conv(a, aK+4*t, Kb+2*t, RA+t, MA+t, cS+4, False)
        if t >= 1: conv(a, aQ+4*(t-1), Qb+2*(t-1), RA+t, MA+t, cS, False)
    a("s_waitcnt lgkmcnt(0)")
    for t in range(9):
        conv(a, aV+4*t, Vb+2*t, RB_+4*t, MB_+4*t, cS+8, True)
    a(f"s_mov_b32 s54, {hexf(C_EXP)}")
    Sr, Tr, Pr, Or = 88, 144, 178, 214
    for b in range(2):
        U = range(4)
        for u in U:
            gu = 4*b + u; t = gu + 1
            bp = bPF if gu == 0 else bP
            a(f"v_mfma_f32_16x16x16_bf16 {vr(Sr+8*u,4)}, {vr(Kb+2*(t-1),2)}, {vr(Qb+2*gu,2)}, {vr(bp,4)}")
            a(f"v_mfma_f32_16x16x16_bf16 {vr(Sr+8*u+4,4)}, {vr(Kb+2*t,2)}, {vr(Qb+2*gu,2)}, {vr(bC,4)}")
        a.nop(4)
        for u in U:
            Sp, Sc, a0, a1 = Sr+8*u, Sr+8*u+4, Tr+4*u, Tr+4*u+1
            a(f"v_max3_f32 v{a0}, v{Sp}, v{Sp+1}, v{Sc}"); a(f"v_max3_f32 v{a1}, v{Sp+2}, v{Sp+3}, v{Sc+2}")
            a(f"v_max_f32 v{a0}, v{a0}, v{Sc+1}"); a(f"v_max_f32 v{a1}, v{a1}, v{Sc+3}")
            a(f"v_max_f32 v{Tr+4*u+2}, v{a0}, v{a1}")
        xlane(a, "v_max_f32", [Tr+4*u+2 for u in U], [Tr+4*u+3 for u in U])
        for u in U: a(f"v_mul_f32 v{Tr+4*u+2}, s54, v{Tr+4*u+2}")
        for u in U:
            for k in range(2): a(f"v_fma_f32 v{Tr+4*u+k}, v{Tr+4*u+k}, s54, -v{Tr+4*u+2}")
        for u in U:
            for k in range(2): a(f"v_exp_f32 v{Tr+4*u+k}, v{Tr+4*u+k}")
        for u in U:
            for k in range(2): a(f"v_cvt_pk_bf16_f32 v{Tr+4*u+k}, v{Tr+4*u+k}, v{Tr+4*u+k}")
        for u in U:
            P = Pr+4*u; a0, a1 = Tr+4*u, Tr+4*u+1
            a(f"v_and_b32 v{P}, v{a0}, v{Mp0}"); a(f"v_and_b32 v{P+1}, v{a1}, v{Mp1}")
            a(f"v_and_b32 v{P+2}, v{a0}, v{Mc0}"); a(f"v_and_b32 v{P+3}, v{a1}, v{Mc1}")
        a.nop(2)
        for u in U:
            t = 4*b + u + 1
            a(MF32(Sr+8*u, vONE, Pr+4*u, "0")); a(MF32(Sr+8*u+4, Vb+2*(t-1), Pr+4*u, "0"))
        a.nop(4)
        for u in U: a(f"v_rcp_f32 v{Sr+8*u}, v{Sr+8*u}")
        for u in U:
            for k in range(4): a(f"v_mul_f32 v{Sr+8*u+4+k}, v{Sr+8*u+4+k}, v{Sr+8*u}")
        for u in U:
            for k in range(2): a(f"v_cvt_pk_bf16_f32 v{Or+2*(4*b+u)+k}, v{Sr+8*u+4+2*k}, v{Sr+8*u+4+2*k+1}")
    stamp(a, 5)
    a(f"s_lshr_b32 s52, s{sWV}, 1"); a("s_lshl_b32 s52, s52, 13"); a(f"s_add_u32 s52, s52, {XB}")
    a(f"s_and_b32 s53, s{sWV}, 1"); a("s_lshl_b32 s54, s53, 3"); a("s_add_u32 s54, s54, s52")
    a("v_lshlrev_b32 v15, 4, v0"); a("v_add_u32 v2, s54, v15")
    for u in range(8): a(f"ds_write_b64 v2, {vr(Or+2*u,2)} offset:{u*1024}")
    a("s_lshl_b32 s54, s53, 12"); a("s_add_u32 s54, s54, s52")
    a(f"s_lshr_b32 s55, s{sWV}, 1"); a("s_lshl_b32 s55, s55, 2"); a(f"s_add_u32 s55, s55, {PCNT+4}")
    lds_sync(a, 55, 2, "xa")
    a("v_add_u32 v3, s54, v15")
    for u in range(4): a(f"ds_read_b128 {vr(88+4*u,4)}, v3 offset:{u*1024}")
    a(f"s_lshl_b32 s52, s{sRB}, 3"); a("s_lshl_b32 s54, s53, 2"); a("s_add_u32 s52, s52, s54"); a(f"s_mul_i32 s52, s52, {NSTEP2}")
    a(f"s_lshl_b32 s54, s{sGR}, 1"); a("s_add_u32 s52, s52, s54"); a(f"s_lshr_b32 s54, s{sWV}, 1"); a("s_add_u32 s52, s52, s54"); a("s_lshl_b32 s52, s52, 10")
    for u in range(4):
        a(f"s_waitcnt lgkmcnt({3-u})")
        a(f"buffer_store_dwordx4 {vr(88+4*u,4)}, v15, {sr(sWS_,4)}, s52 offen {SSC.replace('_',' ')}")
        if u < 3: a(f"s_add_u32 s52, s52, {NSTEP2*1024}")
    stamp(a, 6)
    a("s_branch L_p1done")

def compute_M(a):
    XM, WM = [32, 48], [64, 88]
    aF = 128
    vAW, vCW = 13, 112
    vAWb = 116
    vB1 = 16
    sWS_, sB1_ = sA, sB
    a.lab("L_typeM")
    lane_common(a)
    a(f"s_lshr_b32 s52, s{sWV}, 1"); a("s_lshl_b32 s52, s52, 13"); a("s_add_u32 s52, s52, 2048")
    a(f"v_add_u32 v{vAX0}, s52, v{vAX0}"); a(f"v_xor_b32 v{vAX1}, 64, v{vAX0}")
    for cb in range(4):
        a(f"v_xor_b32 v1, {cb*32}, v3"); a(f"v_add_u32 v{vAWb+cb}, v2, v1")
    for r in range(aF, cS + 12): a(f"v_mov_b32 v{r}, 0")
    a(f"s_mov_b32 s{sBASE}, 0"); a(f"s_mov_b32 s{sRND}, 0")
    srd(a, sWS_, pWS, A2_BYTES); srd(a, sB1_, pB1, F * 2)
    p0_finish(a, 16, NPF)
    a(f"s_and_b32 s52, s{sWV}, 1"); a("s_mul_i32 s52, s52, 3"); a(f"s_add_u32 s52, s52, s{sFS}"); a("s_lshl_b32 s52, s52, 6")
    a(f"v_lshlrev_b32 v2, 3, v{vG}")
    for k in range(6): a(f"buffer_load_dwordx2 {vr(vB1+2*k,2)}, v2, {sr(sB1_,4)}, s52 offen offset:{k*32}")
    for w in range(1, 4):
        a(f"s_cmp_eq_u32 s{sWV}, {w}"); a(f"s_cbranch_scc1 L_mv{w}")
    for w in range(4):
        ch, rh = w & 1, w >> 1
        a.lab(f"L_mv{w}")
        def reads(buf, sub):
            o = [f"v_add_u32 v{vCX}, s{sBASE}, v{vAX1 if sub else vAX0}"]
            cbs = sorted(set((6*ch + k) & 3 for k in range(6)))
            if sub == 0:
                for cb in cbs: o.append(f"v_add_u32 v{vCW+cb}, s{sBASE}, v{vAWb+cb}")
            for k in range(6):
                cg = 6*ch + k; q, cb = cg >> 2, cg & 3
                o.append(f"ds_read_b64_tr_b16 {vr(WM[buf]+4*k,2)}, v{vCW+cb} offset:{q*8192+sub*4096}")
                o.append(f"ds_read_b64_tr_b16 {vr(WM[buf]+4*k+2,2)}, v{vCW+cb} offset:{q*8192+sub*4096+512}")
            for t in range(4): o.append(f"ds_read_b128 {vr(XM[buf]+4*t,4)}, v{vCX} offset:{t*2048}")
            return o
        def mfmas(buf):
            X, W = XM[buf], WM[buf]
            mf = []
            for k in range(6):
                for t in range(4): mf.append(MF32(aF + ((k >> 1)*4 + t)*8 + 4*(k & 1), W+4*k, X+4*t))
            for e in range(3): mf.append(MF32(cS+4*e, W+4*(3*rh+e), vONE))
            return mf
        main_loop(a, f"M{w}", mfmas, reads, w == 0)
        a(f"v_lshlrev_b32 v2, 4, v{vG}"); a(f"v_add_u32 v2, {T_CS}, v2")
        a("s_mov_b32 exec_lo, 0x00010001"); a("s_mov_b32 exec_hi, 0x00010001")
        for e in range(3): a(f"ds_write_b128 v2, {vr(cS+4*e,4)} offset:{(6*ch+3*rh+e)*64}")
        a("s_mov_b64 exec, -1")
        if w < 3: a("s_branch L_mepi")
    a.lab("L_mepi")
    a("s_waitcnt lgkmcnt(0)"); a("s_barrier")
    stamp(a, 4)
    CS, B1, RR_, MR_ = 32, 56, 80, 84
    a(f"s_lshr_b32 s52, s{sWV}, 1"); a("s_lshl_b32 s52, s52, 8")
    a(f"v_lshl_add_u32 v2, v{vI}, 2, s52"); a(f"v_add_u32 v2, {TAB + 64}, v2")
    for t in range(4):
        a(f"ds_read_b32 v{RR_+t}, v2 offset:{1152+t*64}"); a(f"ds_read_b32 v{MR_+t}, v2 offset:{1728+t*64}")
    a(f"s_and_b32 s53, s{sWV}, 1"); a("s_mul_i32 s54, s53, 384"); a(f"v_lshl_add_u32 v3, v{vG}, 4, s54"); a(f"v_add_u32 v3, {T_CS}, v3")
    for k in range(6): a(f"ds_read_b128 {vr(CS+4*k,4)}, v3 offset:{k*64}")
    for k in range(12):
        a(f"v_lshlrev_b32 v{B1+2*k}, 16, v{vB1+k}"); a(f"v_and_b32 v{B1+2*k+1}, s{sMASK}, v{vB1+k}")
    sC2, kC1 = 60, 112
    a(f"s_mov_b32 s{sC2}, {hexf(G2)}"); a(f"s_mov_b32 s{sC2+1}, {hexf(G2)}")
    a(f"v_mov_b32 v{kC1}, {hexf(G1)}"); a(f"v_mov_b32 v{kC1+1}, {hexf(G1)}")
    a("v_lshlrev_b32 v15, 4, v0")
    a(f"s_lshr_b32 s52, s{sWV}, 1"); a("s_lshl_b32 s52, s52, 2"); a(f"s_lshl_b32 s54, s{sRB}, 3"); a("s_add_u32 s52, s52, s54"); a(f"s_mul_i32 s52, s52, {NSTEP2}")
    a("s_mul_i32 s54, s53, 3"); a("s_add_u32 s52, s52, s54"); a(f"s_add_u32 s52, s52, s{sFS}"); a("s_add_u32 s52, s52, 16"); a("s_lshl_b32 s52, s52, 10")
    a(f"s_sub_u32 s55, s{sNF}, s54")
    a("s_waitcnt lgkmcnt(0)")
    for sp in range(3):
        stamp(a, 50+sp)
        if sp == 2:
            a("s_cmp_lt_u32 s55, 3"); a("s_cbranch_scc1 L_gelu_done")
        for t in range(4):
            g = sp*4 + t
            o = 104 + 4*(g & 1)
            r, m = RR_+t, MR_+t
            cs, b1, acc = CS + 8*sp, B1 + 8*sp, aF + 8*g
            T = 88
            for p in range(4):
                u = T + 2*p
                a(f"v_pk_fma_f32 {vr(u,2)}, {vr(cs+2*p,2)}, {vr(m&~1,2)}, {vr(b1+2*p,2)} op_sel:[0,{m&1},0] op_sel_hi:[1,{m&1},1] neg_lo:[0,1,0] neg_hi:[0,1,0]")
            for p in range(4):
                u = T + 2*p
                a(f"v_pk_fma_f32 {vr(u,2)}, {vr(acc+2*p,2)}, {vr(r&~1,2)}, {vr(u,2)} op_sel:[0,{r&1},0] op_sel_hi:[1,{r&1},1]")
            for p in range(4): a(f"v_pk_mul_f32 {vr(T+8+2*p,2)}, {vr(T+2*p,2)}, {vr(T+2*p,2)}")
            for p in range(4): a(f"v_pk_fma_f32 {vr(T+8+2*p,2)}, {vr(T+8+2*p,2)}, {sr(sC2,2)}, {vr(kC1,2)}")
            for p in range(4): a(f"v_pk_mul_f32 {vr(T+8+2*p,2)}, {vr(T+8+2*p,2)}, {vr(T+2*p,2)}")
            for p in range(8): a(f"v_exp_f32 v{T+8+p}, v{T+8+p}")
            for p in range(4): a(f"v_pk_add_f32 {vr(T+8+2*p,2)}, {vr(T+8+2*p,2)}, 1.0 op_sel_hi:[1,0]")
            for p in range(8): a(f"v_rcp_f32 v{T+8+p}, v{T+8+p}")
            for p in range(4): a(f"v_pk_mul_f32 {vr(T+8+2*p,2)}, {vr(T+8+2*p,2)}, {vr(T+2*p,2)}")
            if DEFER: o = acc
            for p in range(4): a(f"v_cvt_pk_bf16_f32 v{o+p}, v{T+8+2*p}, v{T+8+2*p+1}")
            if not DEFER and not NOST:
                a(f"s_add_u32 s53, s52, {(t*NSTEP2+sp)*1024}")
                a(f"buffer_store_dwordx4 {vr(o,4)}, v15, {sr(sWS_,4)}, s53 offen {SSC.replace('_',' ')}")
        if DEFER and sp == 1:
            pass
    if DEFER:
        for t in range(4):
            a(f"s_add_u32 s53, s52, {(t*NSTEP2+2)*1024}")
            a(f"buffer_store_dwordx4 {vr(aF+8*(8+t),4)}, v15, {sr(sWS_,4)}, s53 offen {SSC.replace('_',' ')}")
    a.lab("L_gelu_done")
    if DEFER:
        for sp in range(2):
            for t in range(4):
                a(f"s_add_u32 s53, s52, {(t*NSTEP2+sp)*1024}")
                a(f"buffer_store_dwordx4 {vr(aF+8*(sp*4+t),4)}, v15, {sr(sWS_,4)}, s53 offen {SSC.replace('_',' ')}")
    stamp(a, 6)

def compute(a):
    p0_stats(a)
    a(f"s_cmp_eq_u32 s{sTY}, 1"); a("s_cbranch_scc1 L_typeM")
    compute_A(a)
    compute_M(a)
    a.lab("L_p1done")
    a("s_waitcnt vmcnt(0)"); stamp(a, 33)
    srd(a, sB, pWS, WS_BYTES)
    a(f"v_mov_b32 v2, {PCNT}"); a("v_mov_b32 v3, 1"); a(f"v_mov_b32 v4, {NSLOT}")
    a("s_mov_b64 exec, 1")
    a("ds_add_rtn_u32 v3, v2, v3"); a("ds_read_b32 v5, v4")
    a("s_waitcnt lgkmcnt(0)")
    a("s_mov_b64 exec, -1")
    a("v_readfirstlane_b32 s52, v3"); a.nop(2); a("s_cmp_lg_u32 s52, 3"); a("s_cbranch_scc1 L_nopub")
    if MBX:
        a("v_readfirstlane_b32 s53, v5"); a(f"s_lshl_b32 s52, s{sRB}, 4"); a("v_add_u32 v2, s52, v0"); a("v_lshlrev_b32 v2, 7, v2")
        a(f"s_lshl_b32 s52, s{sJ}, 2"); a(f"s_add_u32 s52, s52, {MBX_OFF}"); a("v_add_u32 v2, s52, v2"); a("v_mov_b32 v5, s53")
        a("s_mov_b64 exec, 0xffff")
        a(f"buffer_store_dword v5, v2, {sr(sB,4)}, 0 offen sc1")
        a("s_mov_b64 exec, -1")
    else:
        flag_store(a, 1, sB, 2, 5)
    a.lab("L_nopub")
    p2_addr(a)
    a(f"s_lshl_b32 s52, s{sWV}, 12"); a("v_add_u32 v6, s52, v6")
    for cb in range(4):
        a(f"v_xor_b32 v10, {cb*32}, v7"); a(f"v_add_u32 v{2+cb}, v6, v10")
    p2_main(a)

AF2 = [12, 28, 44]; ACC2 = 60; WF2 = 124
def p2_addr(a):
    a(f"v_lshrrev_b32 v6, 2, v{vI}"); a(f"v_lshl_add_u32 v6, v{vG}, 2, v6")
    a("v_lshrrev_b32 v7, 1, v6"); a("v_and_b32 v7, 3, v7"); a("v_lshlrev_b32 v7, 5, v7")
    a("v_lshlrev_b32 v6, 7, v6"); a(f"v_and_b32 v10, 3, v{vI}"); a("v_lshl_add_u32 v6, v10, 3, v6")
def w_frag_reads(a, i):
    for cb in range(4):
        d = WF2 + 16*i + 4*cb
        a(f"ds_read_b64_tr_b16 {vr(d,2)}, v{2+cb} offset:{(i % 4)*16384}"); a(f"ds_read_b64_tr_b16 {vr(d+2,2)}, v{2+cb} offset:{(i % 4)*16384+2048}")

OFFS = [0, 3, 1, 4, 2, 5]
def fs_of(a, dst, wreg):
    a(f"s_mul_i32 s{dst}, s{wreg}, 6"); a(f"s_mul_i32 s53, s{wreg}, 5"); a("s_add_u32 s53, s53, 3"); a(f"s_cmp_lt_u32 s{wreg}, 3"); a(f"s_cselect_b32 s{dst}, s{dst}, s53")
def p2_main(a):
    a.lab("L_p2")
    vAo, sA2_, sAk, sOff = 1, sC, 56, 58
    srd(a, sA2_, pWS, WS_BYTES)
    a(f"v_lshlrev_b32 v{vAo}, 4, v0")
    a(f"s_lshl_b32 s{sAk}, s{sRG}, 2"); a(f"s_mul_i32 s{sAk}, s{sAk}, {NSTEP2}"); a(f"s_add_u32 s{sAk}, s{sAk}, s{sWV}"); a(f"s_lshl_b32 s{sAk}, s{sAk}, 10")
    if PMAP:
        fs_of(a, 59, sWV); a(f"s_lshl_b32 s52, s{sRG}, 2"); a(f"s_mul_i32 s52, s52, {NSTEP2}"); a("s_add_u32 s59, s59, s52"); a("s_add_u32 s59, s59, 16"); a("s_lshl_b32 s59, s59, 10")
        a(f"s_add_u32 s57, s59, {5*1024}"); a(f"s_cmp_lt_u32 s{sWV}, 3"); a("s_cselect_b32 s57, s57, 0x80000000")
    else:
        a(f"s_add_u32 s57, s{sAk}, {7*8192}"); a(f"s_cmp_lt_u32 s{sWV}, 3"); a("s_cselect_b32 s57, s57, 0x80000000")
    if HPRIO:
        a(f"s_cmp_lt_u32 s{sWV}, 4"); a("s_cbranch_scc1 L_np"); a(f"s_setprio {HPRIO}"); a.lab("L_np")
    a("s_barrier")
    stamp(a, 8)
    free = list(AF2); buf = {}; issued = []
    def issue(i):
        b0 = free.pop(0); buf[i] = b0; issued.append(i)
        for b in range(4):
            if i == 7: a(f"s_add_u32 s{sOff}, s57, {b*NSTEP2*1024}")
            elif PMAP and i >= 2: a(f"s_add_u32 s{sOff}, s59, {OFFS[i-2]*1024 + b*NSTEP2*1024}")
            else: a(f"s_add_u32 s{sOff}, s{sAk}, {i*8192 + b*NSTEP2*1024}")
            a(f"buffer_load_dwordx4 {vr(b0+4*b,4)}, v{vAo}, {sr(sA2_,4)}, s{sOff} offen {ASC.replace('_',' ') if ASC != 'none' else ''}")
    if FINE:
        sBIT = 64
        a(f"s_lshr_b32 s{sBIT}, s{sWV}, 1"); a(f"s_add_u32 s{sBIT+1}, s{sBIT}, 4")
        for i in range(2, 8):
            if PMAP:
                a(f"s_add_u32 s{sBIT+i}, s{sWV}, 8")
            else:
                a(f"s_add_u32 s52, s{sWV}, {8*i-16}"); a("s_mul_i32 s53, s52, 43"); a("s_lshr_b32 s53, s53, 8")
                a("s_sub_u32 s54, s52, 3"); a("s_mul_i32 s54, s54, 52"); a("s_lshr_b32 s54, s54, 8")
                a("s_cmp_lt_u32 s52, 18"); a("s_cselect_b32 s53, s53, s54"); a("s_min_u32 s53, s53, 7"); a(f"s_add_u32 s{sBIT+i}, s53, 8")
        a(f"s_cmp_lg_u32 s{sWV}, 4"); a("s_cbranch_scc1 L_fnp")
        a(f"s_mov_b32 s61, {SPIN_MAX}")
        a.lab("L_fpl")
        a("s_cmp_eq_u32 s60, 0xffff"); a("s_cbranch_scc1 L_fnp")
        a("s_mov_b64 exec, 0xffff"); a(f"buffer_load_dword v7, v6, {sr(sA2_,4)}, 0 offen sc1"); a("s_waitcnt vmcnt(0)")
        a("v_cmp_eq_u32 vcc, s97, v7"); a("s_mov_b64 exec, -1"); a.nop(1)
        a("s_mov_b32 s60, vcc_lo"); a("v_mov_b32 v11, s60"); a("ds_write_b32 v10, v11")
        a("s_sub_u32 s61, s61, 1"); a("s_cmp_lg_u32 s61, 0"); a("s_cbranch_scc1 L_fpl")
        a.lab("L_fnp")
        a(f"v_mov_b32 v10, {MSK}"); a("s_mov_b32 s72, 0")
        gates = []
        def gate(i):
            a(f"s_bitcmp1_b32 s72, s{sBIT+i}"); a(f"s_cbranch_scc0 L_gw{i}"); a.lab(f"L_gr{i}"); gates.append(i)
        _issue = issue
        def issue(i):
            gate(i); _issue(i)
        def wr():
            a(f"s_cmp_ge_u32 s{sWV}, 4"); a("s_cbranch_scc1 L_wrdy")
            for i in range(8):
                if i == 4:
                    for cb in range(4): a(f"v_add_u32 v{2+cb}, 65536, v{2+cb}")
                w_frag_reads(a, i)
            a("s_waitcnt lgkmcnt(0)")
            a.lab("L_wrdy")
        if WFIRST: wr()
        issue(0); issue(1); nxt = 2
        if not WFIRST: wr()
        if MWIN3: issue(2); nxt = 3
    elif MERGE:
        issue(0); issue(1); nxt = 2
        a(f"s_cmp_ge_u32 s{sWV}, 4"); a("s_cbranch_scc1 L_wrdy")
        for i in range(8):
            if i == 4:
                for cb in range(4): a(f"v_add_u32 v{2+cb}, 65536, v{2+cb}")
            w_frag_reads(a, i)
        a("s_waitcnt lgkmcnt(0)")
        a.lab("L_wrdy")
        if MWIN3: issue(2); nxt = 3
    else:
        a(f"s_cmp_lg_u32 s{sWV}, 4"); a("s_cbranch_scc1 L_nsn")
        a("s_mov_b64 exec, 0xffff"); a(f"buffer_load_dword v7, v6, {sr(sA2_,4)}, 0 offen sc1"); a("s_mov_b64 exec, -1")
        a.lab("L_nsn")
        issue(0); issue(1)
        def wreads():
            a(f"s_cmp_ge_u32 s{sWV}, 4"); a("s_cbranch_scc1 L_wrdy")
            for i in range(8):
                if i == 4:
                    for cb in range(4): a(f"v_add_u32 v{2+cb}, 65536, v{2+cb}")
                w_frag_reads(a, i)
            a("s_waitcnt lgkmcnt(0)")
            a.lab("L_wrdy")
        if WRD: wreads()
        a(f"s_cmp_lg_u32 s{sWV}, 4"); a("s_cbranch_scc1 L_g2")
        a("s_waitcnt vmcnt(8)")
        a("s_mov_b32 s60, 0xff00")
        a("s_mov_b32 exec_lo, s60"); a("s_mov_b32 exec_hi, 0"); a("v_cmp_eq_u32 vcc, s97, v7"); a("s_mov_b64 exec, -1"); a.nop(1)
        a("s_cmp_eq_u32 vcc_lo, s60"); a("s_cbranch_scc1 L_g2")
        poll(a, 6, 97, 7, 60, sA2_, "p1m")
        a.lab("L_g2")
        a("s_barrier"); stamp(a, 59)
        issue(2); nxt = 3
        if not WRD: wreads()
    tail_issued = False; tb = None
    for i in range(8):
        newer = len(issued) - 1 - issued.index(i)
        a(f"s_waitcnt vmcnt({min(63, 4*newer + ((3 if ADDTID else 2) if tail_issued else 0))})")
        stamp(a, 40+i)
        if i == 7: a(f"s_cmp_ge_u32 s{sWV}, 3"); a("s_cbranch_scc1 L_s7skip")
        for b in range(4):
            for cb in range(4):
                if ADDTID: a(MF32(ACC2+(cb*4+b)*4, buf[i]+4*b, WF2+16*i+4*cb, "0" if i == 0 else None))
                else: a(MF32(ACC2+(cb*4+b)*4, WF2+16*i+4*cb, buf[i]+4*b, "0" if i == 0 else None))
        if i == HDROP: a("s_setprio 0")
        free.append(buf[i]); free.append(WF2 + 16*i)
        while free and nxt < 8 and nxt < i + 1 + WIN: issue(nxt); nxt += 1
        if nxt == 8 and not tail_issued and free:
            tail_issued = True; tb = free.pop(0); tail_loads(a, tb)
    if FINE:
        a("s_branch L_s7skip")
        for i in gates:
            a.lab(f"L_gw{i}")
            a(f"s_mov_b32 s61, {SPIN_MAX*16}")
            a.lab(f"L_gl{i}")
            a("ds_read_b32 v11, v10"); a("s_waitcnt lgkmcnt(0)"); a("v_readfirstlane_b32 s72, v11"); a.nop(2)
            a(f"s_bitcmp1_b32 s72, s{sBIT+i}"); a(f"s_cbranch_scc1 L_gr{i}")
            a("s_sub_u32 s61, s61, 1"); a("s_cmp_lg_u32 s61, 0"); a(f"s_cbranch_scc1 L_gl{i}")
            a(f"s_branch L_gr{i}")
    a.lab("L_s7skip")
    stamp(a, 9)
    if ADDTID:
        a(f"s_lshl_b32 s52, s{sWV}, 14"); a(f"s_cmp_ge_u32 s{sWV}, 4"); a("s_cselect_b32 s53, 49216, 0"); a("s_sub_u32 s52, s52, s53"); a("s_mov_b32 m0, s52")
        a.nop(6)
        a(f"s_cmp_ge_u32 s{sWV}, 4"); a("s_cbranch_scc1 L_wrhi")
        for k in range(64): a(f"ds_write_addtid_b32 v{ACC2+k} offset:{k*256}")
        a("s_branch L_wrd")
        a.lab("L_wrhi")
        for k in range(64): a(f"ds_write_addtid_b32 v{ACC2+k} offset:{49216 + k*256}")
        a.lab("L_wrd")
    else:
        a.nop(8)
        a(f"s_mul_i32 s52, s{sWV}, 17408"); a(f"v_mul_u32_u24 v6, 272, v{vI}"); a(f"v_lshl_add_u32 v6, v{vG}, 4, v6"); a("v_add_u32 v6, s52, v6")
        for cb in range(4):
            for b in range(4):
                a(f"ds_write_b128 v6, {vr(ACC2+(cb*4+b)*4,4)} offset:{b*16*272 + cb*64}")
    move_tail(a, tb)
    a("s_waitcnt lgkmcnt(0)")

TB = 12
vXO, vRow, vCol, vXD, vB2 = TB, TB+1, TB+2, TB+8, TB+12
def tail_loads(a, tb):
    sXs, sB2_ = sB, sDD
    srd(a, sXs, pX, S*D*2); srd(a, sB2_, pB2, D*2)
    if ADDTID:
        a(f"v_bfe_u32 v{tb+1}, v0, 2, 2"); a(f"v_lshrrev_b32 v{tb+2}, 4, v0"); a(f"v_lshl_add_u32 v{tb+3}, v{tb+1}, 2, v{tb+2}")
        a(f"s_lshr_b32 s52, s{sWV}, 2"); a("s_lshl_b32 s52, s52, 5"); a(f"s_lshl_b32 s53, s{sRG}, 6"); a("s_add_u32 s52, s52, s53")
        a(f"v_add_u32 v{tb+3}, s52, v{tb+3}"); a(f"v_lshlrev_b32 v{tb+3}, 10, v{tb+3}")
        a(f"s_and_b32 s52, s{sWV}, 3"); a("s_lshl_b32 s52, s52, 5"); a(f"s_lshl_b32 s53, s{sCG}, 7"); a("s_add_u32 s52, s52, s53")
        a(f"v_and_b32 v{tb+4}, 3, v0"); a(f"v_lshl_add_u32 v{tb+4}, v{tb+4}, 3, s52")
        a(f"v_add_u32 v{tb}, v{tb+3}, v{tb+4}")
        a(f"buffer_load_dwordx2 {vr(tb+8,2)}, v{tb}, {sr(sXs,4)}, 0 offen")
        a(f"s_mov_b32 s52, 16384"); a(f"buffer_load_dwordx2 {vr(tb+10,2)}, v{tb}, {sr(sXs,4)}, s52 offen")
        a(f"buffer_load_dwordx2 {vr(tb+12,2)}, v{tb+4}, {sr(sB2_,4)}, 0 offen")
        return
    a(f"s_lshl_b32 s52, s{sWV}, 3"); a(f"v_lshrrev_b32 v{tb+1}, 3, v0"); a(f"v_add_u32 v{tb+1}, s52, v{tb+1}"); a(f"v_and_b32 v{tb+2}, 7, v0")
    a(f"s_lshl_b32 s52, s{sRG}, 6"); a(f"v_add_u32 v{tb+3}, s52, v{tb+1}"); a(f"v_lshlrev_b32 v{tb+3}, 10, v{tb+3}")
    a(f"s_lshl_b32 s53, s{sCG}, 7"); a(f"v_lshlrev_b32 v{tb+4}, 4, v{tb+2}"); a(f"v_add_u32 v{tb+4}, s53, v{tb+4}")
    a(f"v_add_u32 v{tb}, v{tb+3}, v{tb+4}")
    a(f"buffer_load_dwordx4 {vr(tb+8,4)}, v{tb}, {sr(sXs,4)}, 0 offen")
    a(f"buffer_load_dwordx4 {vr(tb+12,4)}, v{tb+4}, {sr(sB2_,4)}, 0 offen")
def move_tail(a, tb):
    if tb == TB: return
    a("s_waitcnt vmcnt(0)")
    for k in list(range(3)) + list(range(8, 16)): a(f"v_mov_b32 v{TB+k}, v{tb+k}")

def final(a, END):
    a.lab("L_final")
    if ADDTID:
        R = 28
        a("s_waitcnt vmcnt(0)")
        for bb in range(2):
            for h in range(2):
                d = R + 4*bb + 2*h
                a(f"v_lshlrev_b32 v{d}, 16, v{vXD+2*bb+h}"); a(f"v_and_b32 v{d+1}, s{sMASK}, v{vXD+2*bb+h}")
                a(f"v_lshlrev_b32 v36, 16, v{vB2+h}"); a(f"v_and_b32 v37, s{sMASK}, v{vB2+h}")
                a(f"v_pk_add_f32 {vr(d,2)}, {vr(d,2)}, {vr(36,2)}")
    a("s_barrier")
    stamp(a, 10)
    srd(a, sA, pOUT, S*D*2)
    if ADDTID:
        a(f"s_and_b32 s52, s{sWV}, 3"); a("s_lshl_b32 s52, s52, 12"); a(f"s_lshr_b32 s53, s{sWV}, 2"); a("s_lshl_b32 s53, s53, 11"); a("s_add_u32 s52, s52, s53")
        a(f"v_lshlrev_b32 v40, 8, v{vCol}"); a(f"v_lshl_add_u32 v40, v{vRow}, 6, v40"); a("v_and_b32 v41, 3, v0"); a("v_lshl_add_u32 v40, v41, 4, v40"); a("v_add_u32 v40, s52, v40")
        P = 128
        for w in range(8):
            if w == 4: a("v_add_u32 v40, 65536, v40")
            o = (w % 4)*16384
            a(f"ds_read_b128 {vr(P+8*w,4)}, v40 offset:{o}"); a(f"ds_read_b128 {vr(P+8*w+4,4)}, v40 offset:{o+1024}")
        R = 28
        for w in range(8):
            a(f"s_waitcnt lgkmcnt({min(15, 2*(7-w))})")
            for d in range(4):
                a(f"v_pk_add_f32 {vr(R+2*d,2)}, {vr(R+2*d,2)}, {vr(P+8*w+2*d,2)}")
        for d in range(4): a(f"v_cvt_pk_bf16_f32 v{76+d}, v{R+2*d}, v{R+2*d+1}")
        a(f"buffer_store_dwordx2 {vr(76,2)}, v{vXO}, {sr(sA,4)}, 0 offen {OSC.replace('_',' ')}")
        a("s_mov_b32 s52, 16384"); a(f"buffer_store_dwordx2 {vr(78,2)}, v{vXO}, {sr(sA,4)}, s52 offen {OSC.replace('_',' ')}")
    else:
        a(f"v_mul_u32_u24 v30, 272, v{vRow}"); a(f"v_lshl_add_u32 v30, v{vCol}, 5, v30")
        P = 128
        for w in range(8):
            if w == 3: a(f"v_add_u32 v31, {3*17408}, v30")
            if w == 6: a(f"v_add_u32 v31, {6*17408}, v30")
            ad = 30 if w < 3 else 31
            o = (w % 3)*17408
            a(f"ds_read_b128 {vr(P+8*w,4)}, v{ad} offset:{o}"); a(f"ds_read_b128 {vr(P+8*w+4,4)}, v{ad} offset:{o+16}")
        R = 64
        a("s_waitcnt vmcnt(0)")
        for d in range(4):
            a(f"v_lshlrev_b32 v{R+2*d}, 16, v{vXD+d}"); a(f"v_and_b32 v{R+2*d+1}, s{sMASK}, v{vXD+d}")
            a(f"v_lshlrev_b32 v72, 16, v{vB2+d}"); a(f"v_and_b32 v73, s{sMASK}, v{vB2+d}")
            a(f"v_pk_add_f32 {vr(R+2*d,2)}, {vr(R+2*d,2)}, {vr(72,2)}")
        for w in range(8):
            a(f"s_waitcnt lgkmcnt({min(15, 2*(7-w))})")
            for d in range(4):
                a(f"v_pk_add_f32 {vr(R+2*d,2)}, {vr(R+2*d,2)}, {vr(P+8*w+2*d,2)}")
        for d in range(4): a(f"v_cvt_pk_bf16_f32 v{76+d}, v{R+2*d}, v{R+2*d+1}")
        a(f"buffer_store_dwordx4 {vr(76,4)}, v{vXO}, {sr(sA,4)}, 0 offen {OSC.replace('_',' ')}")
    if PROF:
        a("s_waitcnt vmcnt(0)")
        stamp(a, 12); stamp_rt(a, 13)
        a(f"s_mov_b32 s96, s{pWS}"); a(f"s_and_b32 s97, s{pWS+1}, 0xffff"); a("s_mov_b32 s98, 0x10000000"); a("s_mov_b32 s99, 0x20000")
        a(f"s_lshl_b32 s94, s2, 3"); a(f"s_add_u32 s94, s94, s{sWV}"); a("s_lshl_b32 s94, s94, 8"); a(f"s_add_u32 s94, s94, {0x4000000}")
        a("v_lshlrev_b32 v250, 2, v0")
        a("buffer_store_dword v255, v250, s[96:99], s94 offen")
        a("s_waitcnt vmcnt(0)")

def helper(a):
    a.lab("L_helper")
    sX, sW, sST, sDB = sA, sB, sC, sDD
    sSLW, sKX, sKW, sKWs, sCST, sM0X, sM0W, sHM, sHMUL = 56, 57, 58, 59, 92, 93, 94, 95, 96
    vX0, vX1, vW0, vW1, vHo, vL16 = 3, 4, 8, 9, 5, 7
    a("v_lshrrev_b32 v1, 3, v0"); a("v_and_b32 v2, 7, v0"); a("v_lshrrev_b32 v6, 4, v0")
    a("v_xor_b32 v10, v2, v6"); a("v_lshlrev_b32 v10, 4, v10")
    a(f"s_lshl_b32 s52, s{sH}, 5"); a(f"s_add_u32 s52, s52, s{sR0}")
    a(f"v_add_u32 v{vX0}, s52, v1"); a(f"v_lshl_add_u32 v{vX0}, v{vX0}, 10, v10")
    a(f"v_xor_b32 v{vX1}, 64, v{vX0}"); a(f"v_add_u32 v{vX1}, 8192, v{vX1}")
    a(f"s_lshl_b32 s52, s{sH}, 3"); a(f"s_add_u32 s52, s52, s{sR0}"); a("s_sub_u32 s52, s52, 16")
    a(f"v_add_u32 v{vHo}, s52, v1"); a(f"v_lshl_add_u32 v{vHo}, v{vHo}, 10, v10")
    a(f"s_and_b32 s52, s{sH}, 1"); a("s_lshl_b32 s52, s52, 6"); a(f"v_xor_b32 v{vHo}, s52, v{vHo}")
    a(f"s_lshr_b32 s52, s{sH}, 1"); a(f"s_or_b32 s52, s52, s{sTY}")
    a("s_cmp_eq_u32 s52, 0"); a(f"s_cselect_b32 s{sHMUL}, 1, 0"); a(f"s_lshl_b32 s{sHM}, s{sH}, 10");
    a("s_cmp_eq_u32 s52, 0"); a(f"s_cselect_b32 s{sHM}, s{sHM}, {DUMMY}")
    a(f"s_cselect_b32 s53, 0, 0x80000000"); a(f"s_cmp_eq_u32 s{sRB}, 0"); a("s_cselect_b32 s53, 0x80000000, s53")
    a(f"v_or_b32 v{vHo}, s53, v{vHo}")
    a(f"s_cmp_eq_u32 s{sTY}, 0"); a("s_mov_b32 s53, 2752"); a("s_cselect_b32 s52, 3072, s53")
    a("s_mov_b32 s54, 128"); a(f"s_cselect_b32 s{sCST}, 1024, s54")
    a(f"s_lshl_b32 s{sKWs}, s52, 6")
    a("v_and_b32 v6, 1, v6"); a("v_lshlrev_b32 v6, 1, v6"); a("v_xor_b32 v6, v6, v2"); a("v_lshlrev_b32 v6, 4, v6")
    a(f"s_lshl_b32 s53, s{sH}, 4")
    a(f"v_add_u32 v{vW0}, s53, v1"); a(f"v_mul_u32_u24 v{vW0}, s52, v{vW0}")
    a("s_lshl_b32 s54, s52, 3"); a(f"v_add_u32 v{vW1}, s54, v{vW0}")
    a(f"v_add_u32 v{vW0}, v{vW0}, v6"); a("v_xor_b32 v6, 64, v6"); a(f"v_add_u32 v{vW1}, v{vW1}, v6")
    a(f"s_lshl_b32 s53, s{sGR}, 7"); a(f"s_lshl_b32 s54, s{sFS}, 6"); a(f"s_cmp_eq_u32 s{sTY}, 0"); a(f"s_cselect_b32 s{sKW}, s53, s54")
    a(f"s_lshl_b32 s{sM0X}, s{sH}, 12"); a(f"s_add_u32 s{sM0X}, s{sM0X}, 2048")
    a(f"s_lshl_b32 s{sM0W}, s{sH}, 11"); a(f"s_add_u32 s{sM0W}, s{sM0W}, {WOFF}")
    a(f"v_lshlrev_b32 v{vL16}, 4, v0")
    a(f"s_mov_b32 s{sSLW}, 0"); a(f"s_mov_b32 s{sKX}, 0")
    sROT, sCB = 100, 101
    if ROT:
        if ROTM == 8:
            a("s_lshr_b32 s52, s2, 6"); a("s_lshl_b32 s52, s52, 1"); a("s_lshr_b32 s53, s2, 3"); a("s_add_u32 s52, s52, s53"); a(f"s_and_b32 s{sROT}, s52, 7")
        elif ROTM == 4:
            a("s_lshr_b32 s52, s2, 6"); a("s_lshr_b32 s53, s2, 3"); a("s_add_u32 s52, s52, s53"); a("s_and_b32 s52, s52, 3"); a(f"s_lshl_b32 s{sROT}, s52, 1")
        elif ROTM == 2:
            a("s_lshr_b32 s52, s2, 6"); a("s_lshr_b32 s53, s2, 3"); a("s_add_u32 s52, s52, s53"); a("s_and_b32 s52, s52, 1"); a(f"s_lshl_b32 s{sROT}, s52, 2")
        elif ROTM == 40:
            a(f"s_and_b32 s52, s{sRB}, 3"); a(f"s_lshl_b32 s{sROT}, s52, 1")
        a(f"s_mov_b32 s{sCB}, s{sKW}")
        a(f"s_lshl_b32 s{sKX}, s{sROT}, 7"); a(f"s_mul_i32 s52, s{sROT}, s{sKWs}"); a(f"s_add_u32 s{sKW}, s{sCB}, s52")
    a("s_waitcnt lgkmcnt(0)")
    srd(a, sX, pX, S*D*2)
    a(f"s_cmp_eq_u32 s{sTY}, 0")
    a(f"s_cselect_b32 s{sW}, s{pWQKV}, s{pW1}"); a(f"s_cselect_b32 s{sW+1}, s{pWQKV+1}, s{pW1+1}")
    a(f"s_mov_b32 s52, {D*F*2}"); a(f"s_cselect_b32 s{sW+2}, {D*3*D*2}, s52")
    a(f"s_and_b32 s{sW+1}, s{sW+1}, 0xffff"); a(f"s_mov_b32 s{sW+3}, 0x20000")
    def dma_round():
        def ld(v, srdr, so): a(f"buffer_load_dwordx4 v{v}, {sr(srdr,4)}, s{so} offen lds")
        a(f"s_add_u32 m0, s{sSLW}, s{sM0W}"); a(f"s_add_u32 s53, s{sKW}, s{sCST}"); ld(vW0, sW, sKW)
        a("s_add_u32 m0, m0, 8192"); a(f"s_add_u32 s54, s53, s{sCST}"); ld(vW0, sW, 53)
        a("s_add_u32 m0, m0, 8192"); a.nop(1); ld(vW0, sW, 54)
        a(f"s_add_u32 m0, s{sSLW}, s{sM0X}"); a(f"s_add_u32 s55, s{sKX}, 16384"); ld(vX0, sX, sKX)
        a("s_add_u32 m0, m0, 1024"); a.nop(1); ld(vX1, sX, sKX)
        a(f"s_add_u32 m0, s{sSLW}, s{sM0W}"); a("s_add_u32 m0, m0, 1024"); a.nop(1); ld(vW1, sW, sKW)
        a("s_add_u32 m0, m0, 8192"); a.nop(1); ld(vW1, sW, 53)
        a("s_add_u32 m0, m0, 8192"); a.nop(1); ld(vW1, sW, 54)
        a(f"s_add_u32 m0, s{sSLW}, s{sM0X}"); a("s_add_u32 m0, m0, 2048"); a.nop(1); ld(vX0, sX, 55)
        a("s_add_u32 m0, m0, 1024"); a.nop(1); ld(vX1, sX, 55)
        a(f"s_mul_i32 s52, s{sSLW}, s{sHMUL}"); a(f"s_add_u32 m0, s52, s{sHM}"); a.nop(1); ld(vHo, sX, sKX)
        a(f"s_add_u32 s{sKX}, s{sKX}, 128"); a(f"s_add_u32 s{sKW}, s{sKW}, s{sKWs}")
        if ROT:
            a(f"s_cmp_eq_u32 s{sKX}, 1024"); a(f"s_cselect_b32 s{sKX}, 0, s{sKX}"); a(f"s_cselect_b32 s{sKW}, s{sCB}, s{sKW}")
        a(f"s_add_u32 s{sSLW}, s{sSLW}, {RS}"); a(f"s_cmp_eq_u32 s{sSLW}, {RS*NR}"); a(f"s_cselect_b32 s{sSLW}, 0, s{sSLW}")
    sNON, sEX = 97, 60
    srd(a, sST, pWS, WS_BYTES)
    a("v_mov_b32 v36, 0"); a("v_mov_b32 v37, 0"); a(f"s_mov_b32 s{sEX}, 1"); a(f"s_mov_b32 s{sNON}, 0")
    a(f"v_mov_b32 v38, {PCNT}"); a("v_mov_b32 v39, 0"); a("v_mov_b32 v40, 0"); a("v_mov_b32 v41, 0"); a("v_mov_b32 v42, 0"); a("v_mov_b32 v43, 0")
    a("ds_write_b128 v38, v[40:43]")
    a(f"s_or_b32 s52, s2, s{sH}"); a("s_cmp_lg_u32 s52, 0"); a("s_cbranch_scc1 L_nonon")
    a("s_memrealtime s[60:61]"); a("s_waitcnt lgkmcnt(0)"); a("s_or_b32 s60, s60, 1")
    a("v_mov_b32 v36, s60"); a("v_mov_b32 v37, 0"); a("s_mov_b64 exec, 1")
    a(f"global_store_dword v37, v36, s[{pDBG}:{pDBG+1}] sc1")
    a("s_mov_b64 exec, -1")
    a.lab("L_nonon")
    def pf1(r0):
        a(f"s_lshr_b32 s52, s{sKWs}, 6")
        a("v_lshrrev_b32 v12, 2, v0"); a("v_mul_u32_u24 v12, s52, v12"); a("v_and_b32 v13, 3, v0"); a(f"v_mul_u32_u24 v14, s{sCST}, v13"); a("v_add_u32 v12, v12, v14")
        a(f"s_cmp_eq_u32 s{sTY}, 0"); a("s_cselect_b32 s53, 3, 99"); a("v_cmp_eq_u32 vcc, s53, v13"); a("v_mov_b32 v14, 0x80000000"); a.nop(1); a("v_cndmask_b32 v12, v12, v14, vcc")
        a(f"s_lshl_b32 s55, s{sGR}, 7"); a(f"s_lshl_b32 s53, s{sFS}, 6"); a(f"s_cmp_eq_u32 s{sTY}, 0"); a("s_cselect_b32 s55, s55, s53")
        a("s_lshr_b32 s54, s2, 6"); a("s_lshl_b32 s54, s54, 4")
        a(f"s_add_u32 s53, s{sH}, {r0}"); a("s_lshl_b32 s53, s53, 6"); a("s_add_u32 s53, s53, s54"); a("s_mul_i32 s53, s53, s52"); a("s_add_u32 s53, s53, s55")
        a(f"buffer_load_dword v15, v12, {sr(sW,4)}, s53 offen")
        a("v_mul_u32_u24 v13, 57, v0"); a("v_lshrrev_b32 v13, 10, v13"); a("v_mul_u32_u24 v14, 18, v13"); a("v_sub_u32 v14, v0, v14")
        a("s_lshr_b32 s61, s2, 3"); a("s_and_b32 s61, s61, 7"); a("s_mul_i32 s61, s61, 18"); a(f"s_add_u32 s61, s61, s{sR0}"); a("s_sub_u32 s61, s61, 16")
        a("v_add_u32 v14, s61, v14"); a("v_lshlrev_b32 v14, 10, v14"); a("v_lshl_add_u32 v14, v13, 7, v14")
        a("v_cmp_lt_u32 vcc, 2, v13"); a("v_mov_b32 v13, 0x80000000"); a.nop(1); a("v_cndmask_b32 v14, v14, v13, vcc")
        if r0 == 0:
            a(f"s_mul_i32 s53, s{sH}, 384"); a(f"s_cmp_lt_u32 s{sH}, 3"); a("s_cselect_b32 s53, s53, 0x80000000")
        else:
            a("s_mov_b32 s53, 0x80000000"); a(f"s_cmp_eq_u32 s{sH}, 2"); a("s_cselect_b32 s53, 256, s53"); a(f"s_cmp_eq_u32 s{sH}, 3"); a("s_cselect_b32 s53, 640, s53")
        a(f"buffer_load_dword v15, v14, {sr(sX,4)}, s53 offen")
        a(f"s_add_u32 s53, s{sH}, {r0+4}"); a("s_lshl_b32 s53, s53, 6"); a("s_add_u32 s53, s53, s54"); a("s_mul_i32 s53, s53, s52"); a("s_add_u32 s53, s53, s55")
        if r0: a(f"s_cmp_lt_u32 s{sH}, 2"); a("s_cselect_b32 s53, s53, 0x80000000")
        a(f"buffer_load_dword v15, v12, {sr(sW,4)}, s53 offen")
    if PF1 and PFPOS == 'first': pf1(0)
    stamp(a, 14)
    dma_round()
    stamp(a, 15); dma_round(); stamp(a, 11)
    npf = (3 if PF1 and PFPOS == 'mid' else 0)
    if PF1 and PFPOS == 'mid': pf1(2)
    a(f"s_waitcnt vmcnt({11}+NPFX) lgkmcnt(0)".replace("11+NPFX", str(11+npf))); a("s_barrier")
    stamp(a, 2)
    dma_round()
    a(f"s_cmp_lg_u32 s{sH}, 0"); a("s_cbranch_scc1 L_nost")
    a(f"v_add_u32 v36, {PSX}, v{vL16}"); a("ds_read_b128 v[40:43], v36")
    a(f"s_lshl_b32 s52, s{sJ}, 3"); a(f"s_add_u32 s52, s52, s{sR0}"); a("s_lshl_b32 s52, s52, 4"); a(f"s_add_u32 s52, s52, {STATS_OFF}")
    a("s_waitcnt lgkmcnt(0)"); a("s_mov_b64 exec, 0xff")
    a(f"buffer_store_dwordx4 v[40:43], v{vL16}, {sr(sST,4)}, s52 offen sc1")
    a("s_mov_b64 exec, -1")
    a("v_mov_b32 v37, 0"); a(f"global_load_dword v38, v37, s[{pDBG}:{pDBG+1}]")
    a.lab("L_nost")
    def pf2():
        a(f"s_cmp_eq_u32 s{sH}, 0")
        a(f"s_cselect_b32 s{sDD}, s{pWO}, s{pW2}"); a(f"s_cselect_b32 s{sDD+1}, s{pWO+1}, s{pW2+1}")
        a(f"s_mov_b32 s53, {F*D*2}"); a(f"s_cselect_b32 s{sDD+2}, {D*D*2}, s53"); a(f"s_mov_b32 s{sDD+3}, 0x20000")
        a(f"s_and_b32 s{sDD+1}, s{sDD+1}, 0xffff")
        a("s_lshr_b32 s53, s2, 3"); a("s_lshl_b32 s54, s53, 14"); a("s_mul_i32 s53, s53, 44032")
        a(f"s_sub_u32 s55, s{sH}, 1"); a("s_lshl_b32 s55, s55, 14"); a("s_add_u32 s53, s53, s55")
        a(f"s_cmp_eq_u32 s{sH}, 0"); a("s_cselect_b32 s53, s54, s53")
        a("v_lshlrev_b32 v12, 7, v0")
        a(f"buffer_load_dword v13, v12, {sr(sDD,4)}, s53 offen"); a("s_add_u32 s53, s53, 8192")
        a(f"buffer_load_dword v14, v12, {sr(sDD,4)}, s53 offen")
    def h0(name):
        a(f"s_cmp_lg_u32 s{sH}, 0"); a(f"s_cbranch_scc1 {name}")
    a(f"s_waitcnt vmcnt({11+npf})"); stamp(a, 16); a("s_barrier"); stamp(a, 24)
    dma_round(); stamp(a, 32)
    a(f"s_waitcnt vmcnt(11)"); stamp(a, 17); a("s_barrier"); stamp(a, 25)
    h0("L_h0b")
    a(f"v_readfirstlane_b32 s{sNON}, v38"); a.nop(2); a(f"s_cmp_lg_u32 s{sNON}, 0"); a("s_cbranch_scc1 L_non_ok")
    a(f"s_mov_b32 s{sT}, {SPIN_MAX}"); a("v_mov_b32 v37, 0")
    a.lab("L_non_poll")
    a(f"global_load_dword v38, v37, s[{pDBG}:{pDBG+1}] sc1"); a("s_waitcnt vmcnt(0)"); a(f"v_readfirstlane_b32 s{sNON}, v38"); a.nop(2)
    a(f"s_cmp_lg_u32 s{sNON}, 0"); a("s_cbranch_scc1 L_non_ok")
    a("s_sleep 2"); a(f"s_sub_u32 s{sT}, s{sT}, 1"); a(f"s_cmp_lg_u32 s{sT}, 0"); a("s_cbranch_scc1 L_non_poll")
    a.lab("L_non_ok")
    a(f"v_mov_b32 v39, s{sNON}")
    a("s_waitcnt vmcnt(0)")
    flag_store(a, 0, sST, 36, 39)
    a(f"v_mov_b32 v36, {NSLOT}"); a("ds_write_b32 v36, v39")
    a.lab("L_h0b")
    dma_round(); stamp(a, 33)
    a("s_waitcnt vmcnt(11)"); stamp(a, 18); a("s_barrier"); stamp(a, 26)
    dma_round(); stamp(a, 34)
    if PF2 and PF2POS == 2: pf2()
    a(f"s_waitcnt vmcnt({13 if (PF2 and PF2POS == 2) else 11})"); stamp(a, 19); a("s_barrier"); stamp(a, 27)
    h0("L_h0c")
    a("v_subrev_u32 v36, 18, v0"); a("v_cmp_gt_u32 vcc, 16, v0"); a.nop(2); a("v_cndmask_b32 v36, v36, v0, vcc")
    a(f"s_lshl_b32 s52, s{sRB}, 4"); a("v_add_u32 v36, s52, v36"); a("v_lshlrev_b32 v36, 7, v36"); a(f"v_add_u32 v36, {FLG_OFF}, v36")
    a(f"s_cmp_eq_u32 s{sRB}, 0"); a(f"s_mov_b32 s{sEX}, 0x3ffff"); a(f"s_cselect_b32 s{sEX}, 0xffff, s{sEX}")
    a(f"s_mov_b32 exec_lo, s{sEX}"); a("s_mov_b32 exec_hi, 0")
    a(f"buffer_load_dword v38, v36, {sr(sST,4)}, 0 offen sc1")
    a("s_mov_b64 exec, -1")
    a.lab("L_h0c")
    dma_round(); stamp(a, 35)
    if PF2 and PF2POS == 3: pf2()
    a(f"s_waitcnt vmcnt({13 if (PF2 and PF2POS == 3) else 11})"); stamp(a, 20); a("s_barrier"); stamp(a, 28)
    h0("L_h0d")
    a(f"s_mov_b32 exec_lo, s{sEX}"); a("s_mov_b32 exec_hi, 0")
    a(f"v_cmp_eq_u32 vcc, s{sNON}, v38"); a("s_mov_b64 exec, -1"); a.nop(1)
    a(f"s_cmp_eq_u32 vcc_lo, s{sEX}"); a("s_cbranch_scc1 L_p0ok")
    poll(a, 36, sNON, 38, sEX, sST, "p0")
    a.lab("L_p0ok")
    a(f"s_sub_u32 s52, s{sR0}, 16"); a("s_lshl_b32 s52, s52, 4"); a(f"s_add_u32 s52, s52, {STATS_OFF}")
    a(f"v_add_u32 v36, s52, v{vL16}")
    a(f"s_cmp_eq_u32 s{sRB}, 0"); a("s_cselect_b32 s53, 16, 0"); a("v_cmp_gt_u32 vcc, s53, v0"); a("v_mov_b32 v37, 0x80000000"); a.nop(1)
    a("v_cndmask_b32 v37, v36, v37, vcc")
    a(f"buffer_load_dwordx4 {vr(40,4)}, v37, {sr(sST,4)}, 0 offen sc1")
    a(f"buffer_load_dwordx4 {vr(44,4)}, v36, {sr(sST,4)}, 0 offen offset:1024 sc1")
    a("s_mov_b64 exec, 0xffff")
    a(f"buffer_load_dwordx4 {vr(48,4)}, v36, {sr(sST,4)}, 0 offen offset:2048 sc1")
    a("s_mov_b64 exec, -1")
    a.lab("L_h0d")
    dma_round(); stamp(a, 36)
    npf2 = 2 if (PF2 and PF2POS == 4) else 0
    if PF2 and PF2POS == 4: pf2()
    a(f"s_waitcnt vmcnt({11+npf2})"); stamp(a, 21); a("s_barrier"); stamp(a, 29)
    h0("L_h0e")
    a("v_lshlrev_b32 v36, 2, v0"); a(f"v_add_u32 v36, {TAB}, v36")
    for q in range(3):
        if q == 2: a("s_mov_b64 exec, 0xffff")
        for k in range(4): a(f"ds_write_b32 v36, v{40+4*q+k} offset:{q*256 + k*576}")
    a("s_mov_b64 exec, -1")
    a.lab("L_h0e")
    if PF2 and PF2POS == 5: pf2(); npf2 = 2
    a(f"s_waitcnt vmcnt({npf2}) lgkmcnt(0)"); stamp(a, 22); a("s_barrier")
    a("s_barrier")
    stamp(a, 3)
    a(f"s_cmp_eq_u32 s{sTY}, 0"); a("s_cbranch_scc1 L_e1a"); a("s_barrier"); a.lab("L_e1a")
    vWo, vAo = 10, 11
    a("v_lshrrev_b32 v6, 4, v0"); a("v_lshlrev_b32 v6, 1, v6"); a("v_and_b32 v8, 7, v0"); a("v_xor_b32 v6, v6, v8")
    a("v_lshlrev_b32 v6, 4, v6"); a("v_lshrrev_b32 v8, 3, v0"); a("v_lshl_add_u32 v6, v8, 10, v6")
    a(f"s_lshl_b32 s52, s{sCG}, 7"); a(f"v_add_u32 v{vWo}, s52, v6")
    a(f"v_lshlrev_b32 v{vAo}, 4, v0")
    sWO_, sW2_ = sA, sB
    srd(a, sWO_, pWO, D*D*2); srd(a, sW2_, pW2, F*D*2)
    sSL, sWk = 56, 57
    a(f"s_lshl_b32 s{sSL}, s{sH}, 12"); a(f"s_lshl_b32 s{sWk}, s{sH}, 15")
    sWo, sWe, sFo, sFe = 58, 57, 59, 60
    if PMAP:
        a(f"s_add_u32 s{sWo}, s{sWk}, {4*32768}")
        fs_of(a, sFe, sH); a(f"s_lshl_b32 s{sFe}, s{sFe}, 15")
        fs_of(a, sFo, sWV); a(f"s_lshl_b32 s{sFo}, s{sFo}, 15")
        a(f"s_add_u32 s61, s{sFe}, {5*32768}"); a(f"s_cmp_lt_u32 s{sH}, 3"); a("s_cselect_b32 s61, s61, 0x80000000")
    def wdma(own, i):
        for q in range(4):
            if PMAP:
                if i < 2: base, off, sr_ = (sWo if own else sWe), i*8*32768, sWO_
                elif i == 7: base, off, sr_ = 61, 0, sW2_
                else: base, off, sr_ = (sFo if own else sFe), OFFS[i-2]*32768, sW2_
            else:
                t0 = 8*i + (4 if own else 0)
                base, off, sr_ = sWk, (t0 if t0 < 16 else t0 - 16)*32768, (sWO_ if t0 < 16 else sW2_)
            a(f"s_add_u32 m0, s{sSL}, {i*16384 + q*1024}"); a(f"s_add_u32 s53, s{base}, {off + q*8192}")
            a(f"buffer_load_dwordx4 v{vWo}, {sr(sr_,4)}, s53 offen lds")
    if NOW2: a("s_branch L_now2")
    order = []
    def iss(kind, i):
        wdma(kind == 'o', i)
        order.append((kind, i))
    for i in range(min(WAHEAD, 7)): iss('o', i)
    a(f"v_and_b32 v{vI}, 15, v0"); a(f"v_lshrrev_b32 v{vG}, 4, v0")
    a("v_mov_b32 v12, v10")
    p2_addr(a)
    a(f"v_add_u32 v6, s{sSL}, v6")
    for cb in range(4):
        a(f"v_xor_b32 v1, {cb*32}, v7"); a(f"v_add_u32 v{2+cb}, v6, v1")
    vWo = 12
    for i in range(7):
        if i == 4:
            for cb in range(4): a(f"v_add_u32 v{2+cb}, 65536, v{2+cb}")
        newer = len(order) - 1 - order.index(('o', i))
        a(f"s_waitcnt vmcnt({4*newer})")
        w_frag_reads(a, i)
        if not STRICT and i + WAHEAD < 7: iss('o', i + WAHEAD)
        a("s_waitcnt lgkmcnt(0)")
        iss('e', i)
        if STRICT and i + WAHEAD < 7: iss('o', i + WAHEAD)
    iss('e', 7)
    for r in range(WF2+112, WF2+128): a(f"v_mov_b32 v{r}, 0")
    srd(a, sC, pWS, WS_BYTES)
    if MBX:
        a(f"s_lshl_b32 s52, s{sRG}, 3"); a(f"s_add_u32 s52, s52, s{sCG}"); a("s_lshl_b32 s52, s52, 7"); a(f"s_add_u32 s52, s52, {MBX_OFF}"); a("v_lshl_add_u32 v6, v0, 2, s52")
    else:
        a(f"s_lshr_b32 s52, s{sRG}, 1"); a("s_lshl_b32 s52, s52, 4"); a("v_add_u32 v6, s52, v0"); a("v_lshlrev_b32 v6, 7, v6"); a(f"v_add_u32 v6, {FLG_OFF+4}, v6")
    stamp(a, 62)
    a(f"s_cmp_lg_u32 s{sH}, 0"); a("s_cbranch_scc1 L_nef")
    a("s_mov_b64 exec, 0xffff")
    a(f"buffer_load_dword v7, v6, {sr(sC,4)}, 0 offen sc1")
    a("s_mov_b64 exec, -1")
    a("s_waitcnt vmcnt(0)")
    stamp(a, 61)
    if FINE:
        a("s_mov_b64 exec, 0xffff"); a("v_cmp_eq_u32 vcc, s97, v7"); a("s_mov_b64 exec, -1"); a.nop(1)
        a("s_mov_b32 s60, vcc_lo"); a(f"v_mov_b32 v10, {MSK}"); a("v_mov_b32 v11, s60"); a("ds_write_b32 v10, v11"); a("s_waitcnt lgkmcnt(0)")
    else:
        a(f"s_mov_b32 s{sT}, {SPIN_MAX}")
        a.lab("L_pa")
        need = "0xffff" if MERGE else "0xff"
        a(f"s_mov_b64 exec, {need}"); a("v_cmp_eq_u32 vcc, s97, v7"); a("s_mov_b64 exec, -1"); a.nop(1)
        a(f"s_cmp_eq_u32 vcc_lo, {need}"); a("s_cbranch_scc1 L_nef")
        a("s_mov_b64 exec, 0xffff")
        a(f"buffer_load_dword v7, v6, {sr(sC,4)}, 0 offen sc1")
        a("s_mov_b64 exec, -1")
        a("s_waitcnt vmcnt(0)")
        a(f"s_sub_u32 s{sT}, s{sT}, 1"); a(f"s_cmp_lg_u32 s{sT}, 0"); a("s_cbranch_scc1 L_pa")
    a.lab("L_nef")
    a("s_waitcnt vmcnt(0)")
    stamp(a, 56)
    a("s_branch L_p2")

def build():
    a = A()
    for l in """; parallel_sum( sliding-window dilated attention , mixer channel MLP ) : out = x + A(LN(x)) + B(LN(LN(x)))
; Kernarg (88 bytes): A_x@0 A_wqkv@8 A_wo@16 B_x@24 B_w1@32 B_b1@40 B_w2@48 B_b2@56 out@64 debug@72 ws@80
; One persistent launch, 256 workgroups (one per CU), 8 waves: 4 compute waves + 4 loader ("helper") waves.
;  phase 0: every workgroup computes the LayerNorm statistics of 8 rows and shares them through the workspace.
;  phase 1: x @ [wqkv | w1] on raw x (LayerNorm folded into the epilogue: row scale, mean * column-sum correction);
;           A-type workgroups (128 rows x 4 heads) finish the windowed attention in registers, M-type workgroups
;           (128 rows x 5-6 x 32 hidden columns) apply bias + tanh-GELU.  Both publish MFMA-ready bf16 fragments.
;  phase 2: 64x64 output tiles, K = 512 + 1376 split over the 8 waves, reduced through LDS, + x + b2.
; Hand-offs use write-through (sc1) stores, vmcnt(0), then a flag word holding a per-launch nonce (from d_debug).""".split("\n"): a(l)
    a(f"; @launch grid=(256,1,1) block=(512,1,1) lds={LDS}")
    a('.amdgcn_target "amdgcn-amd-amdhsa--gfx950"')
    a(".text"); a(f".globl {KN}"); a(".p2align 8"); a(f".type {KN},@function"); a.lab(KN)
    END = "L_end"
    prologue(a, END)
    helper(a)
    a.lab("L_compute")
    compute(a)
    final(a, END)
    a.lab(END); a("s_endpgm")
    a.lab("L_code_end")
    a('.section .rodata,"a"'); a(".p2align 6")
    t = a.text()
    t += f""".amdhsa_kernel {KN}
  .amdhsa_next_free_vgpr 256
  .amdhsa_next_free_sgpr 102
  .amdhsa_accum_offset 256
  .amdhsa_group_segment_fixed_size 0
  .amdhsa_kernarg_size 88
  .amdhsa_user_sgpr_count 2
  .amdhsa_user_sgpr_kernarg_segment_ptr 1
  .amdhsa_system_sgpr_workgroup_id_x 1
.end_amdhsa_kernel
"""
    return t

if __name__ == "__main__":
    out = sys.argv[1] if len(sys.argv) > 1 else "v43.s"
    PROF = len(sys.argv) > 2 and sys.argv[2] == "p"
    for arg in sys.argv[3:]:
        k, v = arg.split("=")
        globals()[k] = {"True": True, "False": False}.get(v, int(v) if v.isdigit() else v)
    open(out, "w").write(build())
```
